```python
import torch

def _softmax(x, axis=-1):
    return torch.softmax(x, dim=axis)
def _gelu(x):
    return torch.nn.functional.gelu(x, approximate="tanh")
def _silu(x):
    return torch.nn.functional.silu(x)
def _sigmoid(x):
    return torch.sigmoid(x)
def _layernorm(x, axis=-1, eps=1e-5):
    m = x.mean(dim=axis, keepdim=True)
    v = x.var(dim=axis, keepdim=True, unbiased=False)
    return (x - m) / torch.sqrt(v + eps)
def _scatter_add(tgt, idx, src, axis=0):
    return tgt.clone().index_add_(axis, idx, src)
def _segment_sum(src, seg, n):
    out = torch.zeros((n,) + src.shape[1:], dtype=src.dtype)
    return out.index_add_(0, seg, src)
def _pad(x, pw):
    flat = tuple(v for pair in reversed(pw) for v in pair)
    return torch.nn.functional.pad(x, flat)

kernel_name = 'gated_mix__mha_block__glu_gated_geglu__prompt'

def setup_inputs():

    _w = (lambda a: (lambda t: t.to(torch.bfloat16) if t.is_floating_point() else t)(torch.as_tensor(a)))
    def _A_setup():
        B, S, D, H = 1, 2048, 640, 32
        return {
            "x": _w((lambda *s: torch.randn(*s, dtype=torch.bfloat16) * 0.05)(B, S, D)),
            "wqkv": _w((lambda *s: torch.randn(*s, dtype=torch.bfloat16) * 0.8)(D, 3 * D)),
            "wo": _w((lambda *s: torch.randn(*s, dtype=torch.bfloat16) * 0.05)(D, D)),
        }
    _A_in = _A_setup()

    def _B_setup():
        B, S, Dm, Df = 1, 2048, 640, 1536
        return {
            "x": _w((lambda *s: torch.randn(*s, dtype=torch.bfloat16) * 0.05)(B, S, Dm)),
            "w_gate": _w((lambda *s: torch.randn(*s, dtype=torch.bfloat16) * 3.2)(Dm, Df) * (Dm ** -0.5)),
            "w_up": _w((lambda *s: torch.randn(*s, dtype=torch.bfloat16) * 3.2)(Dm, Df) * (Dm ** -0.5)),
            "w_down": _w((lambda *s: torch.randn(*s, dtype=torch.bfloat16) * 3.2)(Df, Dm) * (Df ** -0.5)),
        }
    _B_in = _B_setup()

    return {
        "A_x": _A_in["x"],
        "A_wqkv": _A_in["wqkv"],
        "A_wo": _A_in["wo"],
        "B_x": _B_in["x"],
        "B_w_gate": _B_in["w_gate"],
        "B_w_up": _B_in["w_up"],
        "B_w_down": _B_in["w_down"],
        "gate_w": _w((lambda *s: torch.randn(*s, dtype=torch.bfloat16) * 0.05)(640) * 16.0),
    }

def reference(A_x, A_wqkv, A_wo, B_x, B_w_gate, B_w_up, B_w_down, gate_w):
    def _A_ref(x, wqkv, wo):
        B, S, D = x.shape
        H = 32
        Dh = D // H
        qkv = (lambda x, *d: x.permute(*d))((x @ wqkv).reshape(B, S, 3, H, Dh), 2, 0, 3, 1, 4)
        q, k, v = qkv[0], qkv[1], qkv[2]
        scores = torch.einsum("bhqd,bhkd->bhqk", q, k) * (Dh ** -0.5)
        p = _softmax(scores, axis=-1)
        o = torch.einsum("bhqk,bhkd->bhqd", p, v)
        return (lambda x, *d: x.permute(*d))(o, 0, 2, 1, 3).reshape(B, S, D) @ wo

    def _B_ref(x, w_gate, w_up, w_down):
        g = torch.einsum("bsd,df->bsf", x, w_gate)
        u = torch.einsum("bsd,df->bsf", x, w_up)
        h = _gelu(g) * u
        return torch.einsum("bsf,fd->bsd", h, w_down)

    x = A_x
    g = _sigmoid((x * gate_w).sum(-1, keepdims=True))
    a = _A_ref(x, A_wqkv, A_wo)
    b = _B_ref(x, B_w_gate, B_w_up, B_w_down)
    return g * a + (1 - g) * b
```

```python
class Asm:
    def __init__(self, prefix=""):
        self.lines = []
        self._lab = 0
        self.prefix = prefix

    def __call__(self, s=""):
        for ln in s.split("\n"):
            ln = ln.strip()
            if ln:
                if ln.endswith(":"):
                    self.lines.append(ln)
                else:
                    self.lines.append("    " + ln)

    def c(self, s):
        self.lines.append("    ; " + s)

    def label(self, name):
        self.lines.append(name + ":")

    def newlabel(self, base="L"):
        self._lab += 1
        return f"{base}_{self.prefix}{self._lab}"

    def text(self):
        return "\n".join(self.lines) + "\n"


def v(a, n=1):
    return f"v{a}" if n == 1 else f"v[{a}:{a+n-1}]"


def s(a, n=1):
    return f"s{a}" if n == 1 else f"s[{a}:{a+n-1}]"


def mfma32(d, a, b, c=None):
    cs = v(d, 16) if c is None else (c if isinstance(c, str) else v(c, 16))
    return f"v_mfma_f32_32x32x16_bf16 {v(d,16)}, {v(a,4)}, {v(b,4)}, {cs}"


def mfma16(d, a, b, c=None):
    cs = v(d, 4) if c is None else (c if isinstance(c, str) else v(c, 4))
    return f"v_mfma_f32_16x16x32_bf16 {v(d,4)}, {v(a,4)}, {v(b,4)}, {cs}"


def srd(A, sd, sptr, nbytes, add=0):
    if add:
        A(f"s_add_u32 s{sd}, s{sptr}, {add}")
        A(f"s_addc_u32 s{sd+1}, s{sptr+1}, 0")
    else:
        A(f"s_mov_b32 s{sd}, s{sptr}")
        A(f"s_mov_b32 s{sd+1}, s{sptr+1}")
    A(f"s_and_b32 s{sd+1}, s{sd+1}, 0xffff")
    A(f"s_mov_b32 s{sd+2}, {nbytes}")
    A(f"s_mov_b32 s{sd+3}, 0x20000")


def kernel_desc(name, vgpr, sgpr=102, accum=None):
    if accum is None:
        accum = (vgpr + 3) // 4 * 4
    return f""".section .rodata,"a"
.p2align 6
.amdhsa_kernel {name}
  .amdhsa_next_free_vgpr {vgpr}
  .amdhsa_next_free_sgpr {sgpr}
  .amdhsa_accum_offset {accum}
  .amdhsa_group_segment_fixed_size 0
  .amdhsa_kernarg_size 88
  .amdhsa_user_sgpr_count 2
  .amdhsa_user_sgpr_kernarg_segment_ptr 1
  .amdhsa_system_sgpr_workgroup_id_x 1
  .amdhsa_float_denorm_mode_32 3
.end_amdhsa_kernel
"""


def magic_div(A, vd, vs, d, maxval, stmp):
    for sh in range(8, 32):
        m = -(-(1 << sh) // d)
        if m * maxval >= (1 << 32):
            continue
        if all(((x * m) >> sh) == x // d for x in range(maxval)):
            A(f"s_mov_b32 s{stmp}, {m}")
            A(f"v_mul_lo_u32 v{vd}, v{vs}, s{stmp}")
            A(f"v_lshrrev_b32 v{vd}, {sh}, v{vd}")
            return
    raise ValueError("no magic")


def smagic_div(A, sd, ss, d, maxval):
    for sh in range(8, 32):
        m = -(-(1 << sh) // d)
        if m * maxval >= (1 << 32):
            continue
        if all(((x * m) >> sh) == x // d for x in range(maxval)):
            A(f"s_mul_i32 s{sd}, s{ss}, {m}")
            A(f"s_lshr_b32 s{sd}, s{sd}, {sh}")
            return
    raise ValueError("no magic")
```

```python
import sys
from asmlib import *

NAME = "gated_mix__mha_block__glu_gated_geglu__prompt"

QF_OFF = 0
QF_SZ = 32 * 64 * 1280
KV_OFF = QF_OFF + QF_SZ
KV_SZ = 32 * 64 * 2560
H_OFF = KV_OFF + KV_SZ
H_SZ = 64 * 96 * 1024
O_OFF = H_OFF + H_SZ
O_SZ = 64 * 48 * 1024
G_OFF = O_OFF + O_SZ
G_SZ = 8192
WS_USED = G_OFF + G_SZ

LOG2E = 1.4426950408889634
QSCALE = LOG2E * (20 ** -0.5)


def f2u(x):
    import struct
    return struct.unpack("<I", struct.pack("<f", x))[0]


def hx(x):
    return hex(x & 0xffffffff)


S_WG = 2
S_W = 3
P_AX, P_WQKV, P_WO, P_BX, P_WG, P_WU, P_WD, P_GW = 36, 38, 40, 42, 44, 46, 48, 50
P_OUT, P_WS = 52, 54


def prologue(A, nwg):
    A(f"s_cmp_ge_u32 s2, {nwg}")
    end = A.newlabel("L_exit")
    go = A.newlabel("L_go")
    A(f"s_cbranch_scc0 {go}")
    A("s_endpgm")
    A.label(go)
    A("s_load_dwordx16 s[36:51], s[0:1], 0")
    A("s_load_dwordx2 s[52:53], s[0:1], 64")
    A("s_load_dwordx2 s[54:55], s[0:1], 80")
    A("v_lshrrev_b32 v2, 6, v0")
    A("v_and_b32 v1, 63, v0")
    A("s_nop 0")
    A("v_readfirstlane_b32 s3, v2")
    A("s_waitcnt lgkmcnt(0)")


def gen_k1():
    A = Asm("k1_")
    name = "k1_kernel"
    A(f".p2align 8\n.type {name},@function")
    A.label(name)
    prologue(A, 256)
    SX, SW, SWU, SWS, SGW, SW1 = 4, 8, 12, 16, 56, 60
    srd(A, SX, P_AX, 2048 * 1280)
    srd(A, SW, P_WQKV, 640 * 3840)
    srd(A, SWS, P_WS, WS_USED)
    srd(A, SGW, P_GW, 1280)
    sXCD, sIDX, sTB, sCG = 20, 21, 22, 23
    sTT, sWC = 24, 25
    A(f"s_and_b32 s{sXCD}, s2, 7")
    A(f"s_lshr_b32 s{sIDX}, s2, 3")
    A(f"s_lshr_b32 s{sTB}, s{sXCD}, 1")
    A(f"s_lshl_b32 s{sTB}, s{sTB}, 2")
    A(f"s_and_b32 s26, s{sIDX}, 3")
    A(f"s_add_u32 s{sTB}, s{sTB}, s26")
    A(f"s_and_b32 s{sCG}, s{sXCD}, 1")
    A(f"s_lshl_b32 s{sCG}, s{sCG}, 3")
    A(f"s_lshr_b32 s26, s{sIDX}, 2")
    A(f"s_add_u32 s{sCG}, s{sCG}, s26")
    A(f"s_and_b32 s{sTT}, s3, 3")
    A(f"s_lshr_b32 s{sWC}, s3, 2")

    vGX, vGW = 100, 106
    A("s_lshl_b32 s26, s2, 3")
    A("s_add_u32 s26, s26, s3")
    sTOK = 27
    A(f"s_mov_b32 s{sTOK}, s26")
    A("s_mul_i32 s26, s26, 1280")
    A("v_lshlrev_b32 v2, 2, v1")
    for m in range(5):
        A(f"buffer_load_dword v{vGX+m}, v2, s[{SX}:{SX+3}], s26 offen offset:{256*m}")
    for m in range(5):
        A(f"buffer_load_dword v{vGW+m}, v2, s[{SGW}:{SGW+3}], 0 offen offset:{256*m}")

    vXo, vWo0, vWo1, vWo2 = 4, 5, 6, 7
    A("v_lshrrev_b32 v8, 3, v1")
    A("s_lshl_b32 s26, s3, 3")
    A("v_add_u32 v8, s26, v8")
    A("v_lshrrev_b32 v9, 1, v8")
    A("v_and_b32 v9, 7, v9")
    A("v_and_b32 v10, 7, v1")
    A("v_xor_b32 v9, v9, v10")
    A("v_lshlrev_b32 v9, 4, v9")
    A("v_mul_u32_u24 v8, 1280, v8")
    A(f"v_add_u32 v{vXo}, v8, v9")
    A("v_lshrrev_b32 v8, 4, v1")
    A("v_lshlrev_b32 v9, 2, v8")
    A("v_and_b32 v10, 15, v1")
    A("v_xor_b32 v9, v9, v10")
    A("v_lshlrev_b32 v9, 4, v9")
    A("s_lshl_b32 s26, s3, 2")
    A("v_add_u32 v8, s26, v8")
    A("v_mul_u32_u24 v8, 3840, v8")
    A(f"v_add_u32 v{vWo0}, v8, v9")

    vXa = 8
    vWa = 12
    A("v_and_b32 v14, 31, v1")
    A("v_lshrrev_b32 v15, 5, v1")
    A("v_lshrrev_b32 v16, 1, v14")
    A("v_and_b32 v16, 7, v16")
    A(f"s_lshl_b32 s26, s{sTT}, 5")
    A("v_add_u32 v17, s26, v14")
    A("v_lshlrev_b32 v17, 7, v17")
    for j in range(4):
        A(f"v_add_u32 v18, {2*j}, v15")
        A("v_xor_b32 v18, v18, v16")
        A("v_lshlrev_b32 v18, 4, v18")
        A(f"v_add_u32 v{vXa+j}, v17, v18")

    vI2, vG = 19, 20
    A("v_and_b32 v18, 15, v1")
    A(f"v_lshrrev_b32 v{vI2}, 2, v18")
    A(f"v_lshrrev_b32 v{vG}, 4, v1")
    XRING = 0
    WRING = 49152
    A(f"s_cmp_lt_u32 s{sCG}, 11")
    A("s_cselect_b32 s26, 8, 0")
    A("s_sub_u32 s26, 128, s26")
    A(f"s_mul_i32 s26, s26, s{sWC}")
    A("v_lshrrev_b32 v21, 1, v20")
    A(f"v_lshl_add_u32 v21, v21, 3, v{vI2}")
    A("v_lshlrev_b32 v21, 8, v21")
    A(f"v_add_u32 v21, {WRING}, v21")
    A("v_and_b32 v22, 1, v20")
    A("v_lshlrev_b32 v22, 5, v22")
    A("v_and_b32 v23, 3, v1")
    A("v_lshl_add_u32 v22, v23, 3, v22")
    A("v_add_u32 v22, s26, v22")
    A(f"v_and_b32 v24, 3, v{vI2}")
    A("v_lshlrev_b32 v24, 2, v24")
    for t in range(2):
        A(f"v_add_u32 v25, {64*t}, v22")
        A("v_lshrrev_b32 v26, 4, v25")
        A("v_xor_b32 v26, v26, v24")
        A("v_lshlrev_b32 v26, 4, v26")
        A("v_and_b32 v25, 15, v25")
        A("v_add3_u32 v%d, v21, v26, v25" % (vWa + t))

    sXs, sXs2, sWs, sWs2 = 28, 29, 30, 31
    sStage, sSlot = 32, 33
    sM0x, sM0w = 34, 35
    sT0, sT1 = 64, 65
    sXslot, sWslot = 66, 67
    sDX, sDW = 68, 69

    def qkv_dma():
        A(f"s_add_u32 m0, s{sM0x}, s{sXslot}")
        A(f"s_add_u32 s{sXs2}, s{sXs}, 81920")
        A(f"buffer_load_dwordx4 v{vXo}, s[{SX}:{SX+3}], s{sXs} offen lds")
        A("s_add_u32 m0, m0, 8192")
        A(f"s_add_u32 s{sWs2}, s{sWs}, {32*3840}")
        A(f"buffer_load_dwordx4 v{vXo}, s[{SX}:{SX+3}], s{sXs2} offen lds")
        A(f"s_add_u32 m0, s{sM0w}, s{sWslot}")
        A(f"s_add_u32 s{sXs}, s{sXs}, 128")
        A(f"buffer_load_dwordx4 v{vWo0}, s[{SW}:{SW+3}], s{sWs} offen lds")
        A("s_add_u32 m0, m0, 8192")
        A(f"s_add_u32 s{sWs}, s{sWs}, {64*3840}")
        A(f"buffer_load_dwordx4 v{vWo0}, s[{SW}:{SW+3}], s{sWs2} offen lds")

    A(f"s_mul_i32 s{sXs}, s{sTB}, {128*1280}")
    A(f"s_cmp_lt_u32 s{sCG}, 11")
    A(f"s_mul_i32 s26, s{sCG}, 240")
    A(f"s_sub_u32 s{sT0}, s{sCG}, 11")
    A(f"s_lshl_b32 s{sT0}, s{sT0}, 8")
    A(f"s_add_u32 s{sT0}, s{sT0}, 2560")
    A(f"s_cmp_lt_u32 s{sCG}, 11")
    A(f"s_cselect_b32 s{sWs}, s26, s{sT0}")
    A(f"s_lshl_b32 s{sM0x}, s3, 10")
    A(f"s_add_u32 s{sM0w}, s{sM0x}, {WRING}")
    for st in range(3):
        A(f"s_mov_b32 s{sXslot}, {st*16384}")
        A(f"s_mov_b32 s{sWslot}, {st*16384}")
        qkv_dma()

    A("s_waitcnt vmcnt(12)")
    A(f"v_mov_b32 v30, 0")
    for m in range(5):
        A(f"v_dot2_f32_bf16 v30, v{vGX+m}, v{vGW+m}, v30")
    A("s_nop 3")
    for sh in (1, 2, 4, 8):
        A(f"v_add_f32_dpp v30, v30, v30 row_shr:{sh} row_mask:0xf bank_mask:0xf bound_ctrl:0")
        A("s_nop 1")
    A("v_add_f32_dpp v30, v30, v30 row_bcast:15 row_mask:0xa bank_mask:0xf")
    A("s_nop 1")
    A("v_add_f32_dpp v30, v30, v30 row_bcast:31 row_mask:0xc bank_mask:0xf")
    A("s_nop 1")
    A(f"v_mul_f32 v30, {hx(f2u(-LOG2E))}, v30")
    A("v_exp_f32 v30, v30")
    A("s_nop 0")
    A("v_add_f32 v30, 1.0, v30")
    A("v_rcp_f32 v30, v30")
    A(f"s_lshl_b32 s26, s{sTOK}, 2")
    A(f"s_add_u32 s26, s26, {G_OFF}")
    A("v_mov_b32 v31, 0")
    A("s_mov_b64 s[70:71], exec")
    A("s_mov_b32 exec_lo, 0")
    A("s_mov_b32 exec_hi, 0x80000000")
    A(f"buffer_store_dword v30, v31, s[{SWS}:{SWS+3}], s26 offen")
    A("s_mov_b64 exec, s[70:71]")

    ACC = 64
    XA, XB = 32, 40
    WA, WB = 112, 136

    def ring_advance(xsz, wsz, nW):
        A(f"s_add_u32 s{sSlot}, s{sSlot}, 1")
        A(f"s_cmp_eq_u32 s{sSlot}, 3")
        A(f"s_cselect_b32 s{sDX}, {3*xsz}, 0")
        A(f"s_cselect_b32 s{sDW}, {3*wsz}, 0")
        A(f"s_cselect_b32 s{sSlot}, 0, s{sSlot}")
        A(f"s_sub_u32 s{sDX}, {xsz}, s{sDX}")
        A(f"s_sub_u32 s{sDW}, {wsz}, s{sDW}")
        for j in range(4):
            A(f"v_add_u32 v{vXa+j}, s{sDX}, v{vXa+j}")
        for j in range(nW):
            A(f"v_add_u32 v{vWa+j}, s{sDW}, v{vWa+j}")

    def qkv_reads(setX, setW, half):
        r = []
        for jj in range(2):
            j = 2 * half + jj
            r.append(f"ds_read_b128 {v(setX+4*jj,4)}, v{vXa+j}")
            for t in range(2):
                d = setW + 8 * jj + 4 * t
                r.append(f"ds_read_b64_tr_b16 {v(d,2)}, v{vWa+t} offset:{j*4096}")
                r.append(f"ds_read_b64_tr_b16 {v(d+2,2)}, v{vWa+t} offset:{j*4096+1024}")
        return r

    def qkv_mfmas(setX, setW, vtype):
        m = []
        for jj in range(2):
            for t in range(2):
                a, b = setW + 8 * jj + 4 * t, setX + 4 * jj
                if vtype:
                    a, b = b, a
                m.append(mfma32(ACC + 16 * t, a, b))
        return m

    def gemm_loop(lbl, reads, mfmas, dma, ndma, xsz, wsz, nW, nreads):
        A(f"s_mov_b32 s{sStage}, 0")
        A(f"s_mov_b32 s{sSlot}, 0")
        A(f"s_mov_b32 s{sXslot}, 0")
        A(f"s_mov_b32 s{sWslot}, 0")
        for r in reads(XA, WA, 0):
            A(r)
        A.label(lbl)
        for r in reads(XB, WB, 1):
            A(r)
        ring_advance(xsz, wsz, nW)
        A(f"s_waitcnt lgkmcnt({nreads})")
        for m in mfmas(XA, WA):
            A(m)
        A(f"s_cmp_ge_u32 s{sStage}, 8")
        l1 = A.newlabel("L_tail"); l2 = A.newlabel("L_j")
        A(f"s_cbranch_scc1 {l1}")
        A(f"s_waitcnt vmcnt({ndma}) lgkmcnt(0)")
        A(f"s_branch {l2}")
        A.label(l1)
        A("s_waitcnt vmcnt(0) lgkmcnt(0)")
        A.label(l2)
        A("s_barrier")
        mm = mfmas(XB, WB)
        rr = reads(XA, WA, 0)
        per = (len(rr) + 1) // 2
        A(mm[0])
        for r in rr[:per]:
            A(r)
        A(mm[1])
        for r in rr[per:]:
            A(r)
        k = 2
        while k < len(mm) - 1:
            A(mm[k]); k += 1
        A(f"s_cmp_ge_u32 s{sStage}, 7")
        l3 = A.newlabel("L_nodma")
        A(f"s_cbranch_scc1 {l3}")
        dma()
        A.label(l3)
        A(mm[k])
        A(f"s_add_u32 s{sXslot}, s{sXslot}, s{sDX}")
        A(f"s_add_u32 s{sWslot}, s{sWslot}, s{sDW}")
        A(f"s_add_u32 s{sStage}, s{sStage}, 1")
        A(f"s_cmp_lt_u32 s{sStage}, 10")
        A(f"s_cbranch_scc1 {lbl}")

    for r in range(ACC, ACC + 32):
        A(f"v_mov_b32 v{r}, 0")
    A("s_waitcnt vmcnt(9)")
    A("s_barrier")
    A(f"s_cmp_ge_u32 s{sCG}, 11")
    A("s_cbranch_scc1 L_k1_vtype")
    gemm_loop("L_k1_qk", qkv_reads, lambda x, w: qkv_mfmas(x, w, False), qkv_dma, 4, 16384, 16384, 2, 10)
    A("s_waitcnt lgkmcnt(0)")
    A("s_nop 7\ns_nop 7")
    PK = 32
    sU, sTile, sD = 72, 73, 74
    A(f"s_mul_i32 s{sU}, s{sCG}, 6")
    A(f"s_mul_i32 s26, s{sWC}, 3")
    A(f"s_add_u32 s{sU}, s{sU}, s26")
    A(f"s_lshl_b32 s{sTile}, s{sTB}, 2")
    A(f"s_add_u32 s{sTile}, s{sTile}, s{sTT}")
    A(f"s_add_u32 s26, s{sU}, 1")
    A("s_cmp_lt_u32 s26, 32")
    A(f"s_cselect_b32 s75, {hx(f2u(QSCALE))}, 1.0")
    A(f"s_add_u32 s26, s{sU}, 2")
    A("s_cmp_lt_u32 s26, 32")
    A(f"s_cselect_b32 s76, {hx(f2u(QSCALE))}, 1.0")
    for r in range(32):
        G = r // 4
        A(f"v_mul_f32 v{ACC+r}, s{75 if G < 5 else 76}, v{ACC+r}")
    for p in range(16):
        A(f"v_cvt_pk_bf16_f32 v{PK+p}, v{ACC+2*p}, v{ACC+2*p+1}")
    vL16, vL16x, vT8 = 48, 49, 50
    A(f"v_lshlrev_b32 v{vL16}, 4, v1")
    A(f"v_xor_b32 v{vL16x}, 512, v{vL16}")
    A(f"v_and_b32 v{vT8}, 31, v1")
    A(f"v_lshlrev_b32 v{vT8}, 3, v{vT8}")

    def dest(a):
        A(f"s_add_u32 s26, s{sU}, {a}")
        A(f"s_lshl_b32 s77, s26, 6")
        A(f"s_add_u32 s77, s77, s{sTile}")
        A(f"s_mul_i32 s78, s77, 1280")
        A(f"s_sub_u32 s77, s77, {32*64}")
        A(f"s_mul_i32 s77, s77, 2560")
        A(f"s_add_u32 s77, s77, {KV_OFF}")
        A("s_cmp_lt_u32 s26, 32")
        A(f"s_cselect_b32 s{sD}, s78, s77")
    LO = "s_mov_b64 exec, 0xffffffff"
    dest(0)
    A(f"buffer_store_dwordx4 {v(PK,4)}, v{vL16}, s[{SWS}:{SWS+3}], s{sD} offen")
    A("s_mov_b32 exec_lo, -1\ns_mov_b32 exec_hi, 0")
    A(f"buffer_store_dwordx2 {v(PK+4,2)}, v{vT8}, s[{SWS}:{SWS+3}], s{sD} offen offset:1024")
    A("s_mov_b32 exec_hi, -1")
    A(f"s_cmp_ge_u32 s{sU}, 63")
    A("s_cbranch_scc1 L_k1_qkv_done")
    dest(1)
    A("s_mov_b32 exec_hi, 0")
    A(f"buffer_store_dwordx4 {v(PK+6,4)}, v{vL16x}, s[{SWS}:{SWS+3}], s{sD} offen")
    A("s_mov_b32 exec_lo, 0\ns_mov_b32 exec_hi, -1")
    A(f"buffer_store_dwordx4 {v(PK+4,4)}, v{vL16x}, s[{SWS}:{SWS+3}], s{sD} offen")
    A(f"buffer_store_dwordx2 {v(PK+8,2)}, v{vT8}, s[{SWS}:{SWS+3}], s{sD} offen offset:1024")
    A("s_mov_b32 exec_lo, -1")
    dest(2)
    A(f"buffer_store_dwordx4 {v(PK+10,4)}, v{vL16}, s[{SWS}:{SWS+3}], s{sD} offen")
    A("s_mov_b32 exec_hi, 0")
    A(f"buffer_store_dwordx2 {v(PK+14,2)}, v{vT8}, s[{SWS}:{SWS+3}], s{sD} offen offset:1024")
    A("s_mov_b32 exec_hi, -1")
    A("s_branch L_k1_qkv_done")

    A.label("L_k1_vtype")
    gemm_loop("L_k1_v", qkv_reads, lambda x, w: qkv_mfmas(x, w, True), qkv_dma, 4, 16384, 16384, 2, 10)
    A("s_waitcnt lgkmcnt(0)")
    A("s_nop 7\ns_nop 7")
    A(f"s_lshl_b32 s{sTile}, s{sTB}, 2")
    A(f"s_add_u32 s{sTile}, s{sTile}, s{sTT}")
    A(f"s_mul_i32 s{sD}, s{sTile}, 2560")
    A(f"s_add_u32 s{sD}, s{sD}, {KV_OFF + 1280}")
    A(f"s_sub_u32 s26, s{sCG}, 11")
    A("s_lshl_b32 s26, s26, 7")
    A(f"s_lshl_b32 s77, s{sWC}, 6")
    A("s_add_u32 s26, s26, s77")
    A("v_and_b32 v48, 31, v1")
    A("v_lshrrev_b32 v49, 5, v1")
    A("v_mul_u32_u24 v49, 320, v49")
    for t in range(2):
        A(f"v_add_u32 v50, s26, v48")
        if t:
            A("v_add_u32 v50, 32, v50")
        magic_div(A, 51, 50, 20, 640, 77)
        A("v_mul_u32_u24 v52, 20, v51")
        A("v_sub_u32 v52, v50, v52")
        A("v_lshlrev_b32 v52, 4, v52")
        A("s_mov_b32 s77, 163840")
        A("v_mul_lo_u32 v51, v51, s77")
        A(f"v_add3_u32 v{53+t}, v51, v52, v49")
    for t in range(2):
        for hf in range(2):
            base = ACC + 16 * t + 8 * hf
            dst = 32 + 8 * t + 4 * hf
            for p in range(4):
                A(f"v_cvt_pk_bf16_f32 v{dst+p}, v{base+2*p}, v{base+2*p+1}")
            A(f"buffer_store_dwordx4 {v(dst,4)}, v{53+t}, s[{SWS}:{SWS+3}], s{sD} offen offset:{640*hf}")
    A.label("L_k1_qkv_done")

    A("s_barrier")
    srd(A, SX, P_AX, 2048 * 1280)
    srd(A, SW, P_WG, 640 * 3072)
    srd(A, SWU, P_WU, 640 * 3072)
    A("s_cmp_lt_u32 s3, 4")
    for k in range(4):
        A(f"s_cselect_b32 s{SW1+k}, s{SW+k}, s{SWU+k}")
    WSLOT = 24640
    UPOFF = 12288 + 32
    for j in range(4):
        A(f"v_subrev_u32 v{vXa+j}, 16384, v{vXa+j}")
    A("s_add_u32 s26, s3, 8")
    A("s_sub_u32 s77, s3, 4")
    A("s_cmp_lt_u32 s3, 4")
    A("s_cselect_b32 s78, s26, s77")
    A(f"s_cselect_b32 s79, 0, {UPOFF}")
    A("s_add_u32 s80, s3, 4")
    for (vd, sj) in ((vWo0, 3), (vWo1, 78), (vWo2, 80)):
        A(f"s_lshl_b32 s26, s{sj}, 6")
        A("v_add_u32 v48, s26, v1")
        magic_div(A, 49, 48, 12, 768, 77)
        A("v_mul_u32_u24 v50, 12, v49")
        A("v_sub_u32 v50, v48, v50")
        A("v_lshlrev_b32 v50, 4, v50")
        A("v_mul_u32_u24 v49, 3072, v49")
        A(f"v_add_u32 v{vd}, v49, v50")
    sM0w1, sM0w2 = 81, 82
    A(f"s_lshl_b32 s{sM0w}, s3, 10")
    A(f"s_add_u32 s{sM0w}, s{sM0w}, {WRING}")
    A(f"s_lshl_b32 s{sM0w1}, s78, 10")
    A(f"s_add_u32 s{sM0w1}, s{sM0w1}, s79")
    A(f"s_add_u32 s{sM0w1}, s{sM0w1}, {WRING}")
    A(f"s_lshl_b32 s{sM0w2}, s80, 10")
    A(f"s_add_u32 s{sM0w2}, s{sM0w2}, {WRING + UPOFF}")

    def gu_dma():
        A(f"s_add_u32 m0, s{sM0x}, s{sXslot}")
        A(f"s_add_u32 s{sXs2}, s{sXs}, 81920")
        A(f"buffer_load_dwordx4 v{vXo}, s[{SX}:{SX+3}], s{sXs} offen lds")
        A("s_add_u32 m0, m0, 8192")
        A(f"s_add_u32 s{sXs}, s{sXs}, 128")
        A(f"buffer_load_dwordx4 v{vXo}, s[{SX}:{SX+3}], s{sXs2} offen lds")
        A(f"s_add_u32 m0, s{sM0w}, s{sWslot}")
        A("s_nop 0")
        A(f"buffer_load_dwordx4 v{vWo0}, s[{SW}:{SW+3}], s{sWs} offen lds")
        A(f"s_add_u32 m0, s{sM0w1}, s{sWslot}")
        A("s_nop 0")
        A(f"buffer_load_dwordx4 v{vWo1}, s[{SW1}:{SW1+3}], s{sWs} offen lds")
        A(f"s_add_u32 m0, s{sM0w2}, s{sWslot}")
        A("s_nop 0")
        A(f"buffer_load_dwordx4 v{vWo2}, s[{SWU}:{SWU+3}], s{sWs} offen lds")
        A(f"s_add_u32 s{sWs}, s{sWs}, {64*3072}")

    A(f"s_mul_i32 s{sXs}, s{sTB}, {128*1280}")
    A(f"s_mul_i32 s{sWs}, s{sCG}, 192")
    for st in range(3):
        A(f"s_mov_b32 s{sXslot}, {st*16384}")
        A(f"s_mov_b32 s{sWslot}, {st*WSLOT}")
        gu_dma()
    A(f"v_lshrrev_b32 v21, 1, v{vG}")
    A(f"v_lshl_add_u32 v21, v21, 3, v{vI2}")
    A("v_mul_u32_u24 v21, 192, v21")
    A(f"v_and_b32 v22, 1, v{vG}")
    A(f"v_mul_u32_u24 v22, {UPOFF}, v22")
    A("v_and_b32 v23, 3, v1")
    A("v_lshlrev_b32 v23, 3, v23")
    A("v_add3_u32 v21, v21, v22, v23")
    A(f"s_mul_i32 s26, s{sWC}, 96")
    A(f"s_add_u32 s26, s26, {WRING}")
    A(f"v_add_u32 v{vWa}, s26, v21")

    def gu_reads(setX, setW, half):
        r = []
        for jj in range(2):
            j = 2 * half + jj
            r.append(f"ds_read_b128 {v(setX+4*jj,4)}, v{vXa+j}")
            for t in range(3):
                d = setW + 12 * jj + 4 * t
                r.append(f"ds_read_b64_tr_b16 {v(d,2)}, v{vWa} offset:{j*3072+32*t}")
                r.append(f"ds_read_b64_tr_b16 {v(d+2,2)}, v{vWa} offset:{j*3072+32*t+768}")
        return r

    def gu_mfmas(setX, setW):
        m = []
        for jj in range(2):
            for t in range(3):
                m.append(mfma32(ACC + 16 * t, setW + 12 * jj + 4 * t, setX + 4 * jj))
        return m

    for r in range(ACC, ACC + 48):
        A(f"v_mov_b32 v{r}, 0")
    A("s_waitcnt vmcnt(10)")
    A("s_barrier")
    gemm_loop("L_k1_gu", gu_reads, gu_mfmas, gu_dma, 5, 16384, WSLOT, 1, 14)
    A("s_waitcnt lgkmcnt(0)")
    A("s_nop 7\ns_nop 7")
    ca = -2.0 * LOG2E * (2.0 / 3.141592653589793) ** 0.5
    cb = ca * 0.044715
    A(f"s_mov_b32 s75, {hx(f2u(ca))}")
    A(f"s_mov_b32 s76, {hx(f2u(cb))}")
    A(f"s_lshl_b32 s{sTile}, s{sTB}, 2")
    A(f"s_add_u32 s{sTile}, s{sTile}, s{sTT}")
    A(f"s_mul_i32 s{sD}, s{sTile}, 96")
    A(f"s_mul_i32 s26, s{sCG}, 6")
    A(f"s_add_u32 s{sD}, s{sD}, s26")
    A(f"s_mul_i32 s26, s{sWC}, 3")
    A(f"s_add_u32 s{sD}, s{sD}, s26")
    A(f"s_lshl_b32 s{sD}, s{sD}, 10")
    A(f"s_add_u32 s{sD}, s{sD}, {H_OFF}")
    A("v_lshlrev_b32 v60, 4, v1")
    A("v_mov_b32 v61, s75")
    for t in range(3):
        g0 = ACC + 16 * t
        u0 = g0 + 8
        T = 32
        for j in range(8):
            A(f"v_mul_f32 v{T+j}, v{g0+j}, v{g0+j}")
        for j in range(8):
            A(f"v_fma_f32 v{T+j}, v{T+j}, s76, v61")
        for j in range(8):
            A(f"v_mul_f32 v{T+j}, v{T+j}, v{g0+j}")
        for j in range(8):
            A(f"v_exp_f32 v{T+j}, v{T+j}")
        for j in range(8):
            A(f"v_mul_f32 v{u0+j}, v{g0+j}, v{u0+j}")
        for j in range(8):
            A(f"v_add_f32 v{T+j}, 1.0, v{T+j}")
        for j in range(8):
            A(f"v_rcp_f32 v{T+j}, v{T+j}")
        A("s_nop 0")
        for j in range(8):
            A(f"v_mul_f32 v{u0+j}, v{u0+j}, v{T+j}")
        dst = 40 + 4 * t
        for p in range(4):
            A(f"v_cvt_pk_bf16_f32 v{dst+p}, v{u0+2*p}, v{u0+2*p+1}")
        A(f"buffer_store_dwordx4 {v(dst,4)}, v60, s[{SWS}:{SWS+3}], s{sD} offen offset:{1024*t}")
    A("s_endpgm")
    return name, A.text(), 160, 123072


def gen_k2():
    A = Asm("k2_")
    name = "k2_kernel"
    A(f".p2align 8\n.type {name},@function")
    A.label(name)
    prologue(A, 256)
    SWS = 16
    srd(A, SWS, P_WS, WS_USED)
    sHead, sQB, sTile = 20, 21, 22
    A("s_and_b32 s24, s2, 7")
    A("s_lshr_b32 s25, s2, 3")
    A("s_lshl_b32 s24, s24, 2")
    A(f"s_lshr_b32 s{sHead}, s25, 3")
    A(f"s_add_u32 s{sHead}, s{sHead}, s24")
    A(f"s_and_b32 s{sQB}, s25, 7")
    A(f"s_lshl_b32 s{sTile}, s{sQB}, 3")
    A(f"s_add_u32 s{sTile}, s{sTile}, s3")

    Q0, Q1 = 4, 8
    K0, K1, V0, V1 = 12, 16, 20, 24
    S = [32, 48]
    E = 64
    P = 80
    O = 88
    vK0, vK1, vV = 104, 105, 106
    vDm = 107
    A(f"s_lshl_b32 s24, s{sHead}, 6")
    A(f"s_add_u32 s24, s24, s{sTile}")
    A(f"s_mul_i32 s24, s24, 1280")
    A(f"s_add_u32 s24, s24, {QF_OFF}")
    A(f"v_lshlrev_b32 v{vDm}, 4, v1")
    A("v_and_b32 v2, 31, v1")
    A("v_lshlrev_b32 v3, 3, v2")
    A(f"buffer_load_dwordx4 {v(Q0,4)}, v{vDm}, s[{SWS}:{SWS+3}], s24 offen")
    A(f"buffer_load_dwordx2 {v(Q1,2)}, v3, s[{SWS}:{SWS+3}], s24 offen offset:1024")
    vGt = 108
    A(f"s_lshl_b32 s25, s{sTile}, 7")
    A(f"s_add_u32 s25, s25, {G_OFF}")
    A("v_lshlrev_b32 v28, 2, v2")
    A(f"buffer_load_dword v{vGt}, v28, s[{SWS}:{SWS+3}], s25 offen")
    sKV, sM0 = 26, 27
    A(f"s_mul_i32 s{sKV}, s{sHead}, 163840")
    A(f"s_lshl_b32 s{sM0}, s3, 10")
    A(f"s_add_u32 s{sKV}, s{sKV}, s{sM0}")
    A(f"s_add_u32 s{sKV}, s{sKV}, {KV_OFF}")
    sDoDma = 28
    A("s_cmp_lt_u32 s3, 5")
    A(f"s_cselect_b32 s{sDoDma}, 1, 0")
    SLOT = 5120
    R = 4

    def dma(slot):
        l = A.newlabel("L_nd")
        A(f"s_cmp_eq_u32 s{sDoDma}, 0")
        A(f"s_cbranch_scc1 {l}")
        A(f"s_add_u32 m0, s{sM0}, {slot*SLOT}")
        A("s_nop 0")
        A(f"buffer_load_dwordx4 v{vDm}, s[{SWS}:{SWS+3}], s{sKV} offen lds")
        A.label(l)
        A(f"s_add_u32 s{sKV}, s{sKV}, {SLOT}")

    for p in range(3):
        dma(p)
    A(f"v_mov_b32 v{vK0}, v{vDm}")
    A(f"v_add_u32 v{vK1}, 1024, v3")
    A("v_lshrrev_b32 v28, 5, v1")
    A("v_mul_u32_u24 v28, 320, v28")
    A("v_lshlrev_b32 v29, 4, v2")
    A(f"v_add3_u32 v{vV}, v28, v29, 0")
    A(f"v_add_u32 v{vV}, 1280, v{vV}")
    ONE2 = 0x3f803f80
    A(f"v_mov_b32 v{K1+2}, {hx(ONE2)}")
    A(f"v_mov_b32 v{K1+3}, 0x3f80")
    A("v_cmp_eq_u32 vcc, 20, v2")
    A(f"v_mov_b32 v28, {hx(ONE2)}")
    A("s_nop 1")
    A("v_cndmask_b32 v29, 0, v28, vcc")
    for r in range(8):
        A(f"v_mov_b32 v{V0+r}, v29")
    for r in range(16):
        A(f"v_mov_b32 v{O+r}, 0")
    for r in range(8):
        A(f"v_mov_b32 v{P+r}, 0")
    for r in range(16):
        A(f"v_mov_b32 v{E+r}, 0")
    A("s_mov_b32 s30, 0xfffff")
    A("s_mov_b32 s31, 0xfffff")
    A("s_waitcnt vmcnt(0)")
    A("v_cmp_gt_u32 vcc, 32, v1")
    A("s_nop 1")
    A(f"v_cndmask_b32 v{Q1}, 0, v{Q1}, vcc")
    A(f"v_cndmask_b32 v{Q1+1}, 0, v{Q1+1}, vcc")
    A(f"v_mov_b32 v{Q1+2}, 0")
    A(f"v_mov_b32 v{Q1+3}, 0")
    A("s_barrier")

    def off(tile):
        return ((tile // 2) % R) * SLOT + (tile % 2) * 2560

    def rdK0(t): return f"ds_read_b128 {v(K0,4)}, v{vK0} offset:{off(t)}"
    def rdK1(t): return f"ds_read_b64 {v(K1,2)}, v{vK1} offset:{off(t)}"
    def rdV(t, hf):
        reg = V0 if hf == 0 else V1
        return ["s_mov_b64 exec, s[30:31]",
                f"ds_read_b128 {v(reg,4)}, v{vV} offset:{off(t)+640*hf}",
                "s_mov_b64 exec, -1"]

    A(rdK0(0)); A(rdK1(0))
    A("s_waitcnt lgkmcnt(0)")
    A(mfma32(S[0], K0, Q0, "0"))
    A(mfma32(S[0], K1, Q1))
    A(rdK0(1))
    for x in rdV(0, 1): A(x)
    A(rdK1(1))
    for x in rdV(0, 0): A(x)
    A("s_mov_b32 s29, 0")
    A("s_nop 7\ns_nop 7")
    A.label("L_k2_loop")
    for tt in range(8):
        cur, nxt = S[tt % 2], S[(tt + 1) % 2]
        vl = []
        for i in range(8):
            vl.append(f"v_exp_f32 v{E+2*i}, v{cur+2*i}")
            vl.append(f"v_exp_f32 v{E+2*i+1}, v{cur+2*i+1}")
            j = (i - 1) % 8
            vl.append(f"v_cvt_pk_bf16_f32 v{P+j}, v{E+2*j}, v{E+2*j+1}")
        g = [vl[0:6], vl[6:12], vl[12:18], vl[18:24]]
        A("s_waitcnt lgkmcnt(3)")
        A(mfma32(nxt, K0, Q0, "0"))
        A(rdK0(tt + 2))
        for x in g[0]: A(x)
        A("s_waitcnt lgkmcnt(3)")
        A(mfma32(O, V1, P + 4))
        for x in rdV(tt, 1): A(x)
        for x in g[1]: A(x)
        A("s_waitcnt lgkmcnt(3)")
        A(mfma32(nxt, K1, Q1))
        A(rdK1(tt + 2))
        for x in g[2]: A(x)
        A("s_waitcnt lgkmcnt(3)")
        A(mfma32(O, V0, P))
        for x in rdV(tt + 1, 0): A(x)
        for x in g[3]: A(x)
        if tt % 2 == 0:
            dma(((tt // 2) + 3) % R)
        else:
            A("s_waitcnt vmcnt(1) lgkmcnt(2)")
            A("s_barrier")
    A("s_add_u32 s29, s29, 1")
    A("s_cmp_lt_u32 s29, 8")
    A("s_cbranch_scc1 L_k2_loop")
    A(f"v_cvt_pk_bf16_f32 v{P+7}, v{E+14}, v{E+15}")
    A("s_waitcnt lgkmcnt(0)")
    A("s_nop 1")
    A(mfma32(O, V1, P + 4))
    A("s_nop 7\ns_nop 7")
    A(f"v_mov_b32 v28, v{O+8}")
    A(f"v_mov_b32 v29, v{O+8}")
    A("s_nop 1")
    A("v_permlane32_swap_b32 v28, v29")
    A("s_nop 1")
    A("v_rcp_f32 v29, v29")
    A("s_nop 0")
    A(f"v_mul_f32 v29, v29, v{vGt}")
    for r in range(12):
        A(f"v_mul_f32 v{O+r}, v29, v{O+r}")
    for p in range(6):
        A(f"v_cvt_pk_bf16_f32 v{32+p}, v{O+2*p}, v{O+2*p+1}")
    A("v_mov_b32 v38, 0\nv_mov_b32 v39, 0")
    A(f"s_mul_i32 s24, s{sTile}, 48")
    A(f"s_add_u32 s25, s24, s{sHead}")
    A("s_lshl_b32 s25, s25, 10")
    A(f"s_add_u32 s25, s25, {O_OFF}")
    A(f"buffer_store_dwordx4 {v(32,4)}, v{vDm}, s[{SWS}:{SWS+3}], s25 offen")
    A(f"s_lshr_b32 s25, s{sHead}, 1")
    A("s_add_u32 s25, s25, 32")
    A("s_add_u32 s25, s25, s24")
    A("s_lshl_b32 s25, s25, 10")
    A(f"s_and_b32 s24, s{sHead}, 1")
    A("s_lshl_b32 s24, s24, 9")
    A("s_add_u32 s25, s25, s24")
    A(f"s_add_u32 s25, s25, {O_OFF}")
    A("s_mov_b32 exec_hi, 0")
    A(f"buffer_store_dwordx4 {v(36,4)}, v{vDm}, s[{SWS}:{SWS+3}], s25 offen")
    A("s_endpgm")
    return name, A.text(), 112, R * SLOT


def gen_k3():
    A = Asm("k3_")
    name = "k3_kernel"
    A(f".p2align 8\n.type {name},@function")
    A.label(name)
    prologue(A, 256)
    SWS, SWD, SWO, SOUT = 16, 4, 8, 12
    srd(A, SWS, P_WS, WS_USED)
    srd(A, SWD, P_WD, 1536 * 1280)
    srd(A, SWO, P_WO, 640 * 1280)
    srd(A, SOUT, P_OUT, 2048 * 1280)
    sTB, sCB, sT16, sPar = 20, 21, 22, 23
    A("s_and_b32 s24, s2, 7")
    A("s_lshr_b32 s25, s2, 3")
    A(f"s_lshr_b32 s{sTB}, s24, 1")
    A(f"s_lshl_b32 s{sTB}, s{sTB}, 3")
    A("s_and_b32 s26, s25, 7")
    A(f"s_add_u32 s{sTB}, s{sTB}, s26")
    A(f"s_and_b32 s{sCB}, s24, 1")
    A(f"s_lshl_b32 s{sCB}, s{sCB}, 2")
    A("s_lshr_b32 s26, s25, 3")
    A(f"s_add_u32 s{sCB}, s{sCB}, s26")
    A(f"s_and_b32 s{sT16}, s3, 3")
    A(f"s_lshr_b32 s{sPar}, s3, 2")

    ACC = 8
    ACT = 32
    WF = 48
    vAct, vWr = 4, 5
    vH, vOm, vOr = 88, 89, 90
    vG = 91
    A("v_lshrrev_b32 v2, 4, v1")
    A("v_lshrrev_b32 v3, 1, v2")
    A("v_lshlrev_b32 v3, 10, v3")
    A("v_and_b32 v6, 1, v2")
    A("v_lshlrev_b32 v6, 9, v6")
    A("v_and_b32 v7, 15, v1")
    A(f"s_and_b32 s24, s{sT16}, 1")
    A("s_lshl_b32 s24, s24, 4")
    A("v_add_u32 v7, s24, v7")
    A("v_lshlrev_b32 v28, 4, v7")
    A(f"v_add3_u32 v{vAct}, v3, v6, v28")
    sTile = 27
    A(f"s_lshl_b32 s{sTile}, s{sTB}, 1")
    A(f"s_lshr_b32 s24, s{sT16}, 1")
    A(f"s_add_u32 s{sTile}, s{sTile}, s24")
    A(f"s_lshl_b32 s24, s{sTile}, 7")
    A(f"s_add_u32 s24, s24, {G_OFF}")
    A("v_lshlrev_b32 v28, 2, v7")
    A(f"buffer_load_dword v{vG}, v28, s[{SWS}:{SWS+3}], s24 offen")
    def qdec(sq, sj, sp):
        A(f"s_cmp_ge_u32 s{sq}, 5")
        A(f"s_cselect_b32 s{sp}, 1, 0")
        A(f"s_mul_i32 s{sj}, s{sp}, 5")
        A(f"s_sub_u32 s{sj}, s{sq}, s{sj}")
    sJA, sPA, sJB, sPB = 28, 29, 30, 31
    A("s_mov_b32 s24, s3"); qdec(24, sJA, sPA)
    A("s_add_u32 s24, s3, 8"); qdec(24, sJB, sPB)
    VO = {}
    base = 92
    for nm, sj in (("A", sJA), ("B", sJB)):
        A(f"s_lshl_b32 s24, s{sj}, 6")
        A("v_add_u32 v28, s24, v1")
        magic_div(A, 29, 28, 10, 384, 25)
        A("v_mul_u32_u24 v30, 10, v29")
        A("v_sub_u32 v30, v28, v30")
        A("v_lshlrev_b32 v30, 4, v30")
        A("v_mul_u32_u24 v31, 1280, v29")
        A(f"v_add_u32 v{base}, v31, v30"); VO[nm + "H"] = base; base += 1
        A("v_lshrrev_b32 v31, 4, v29")
        A("v_mul_u32_u24 v31, 20, v31")
        A("v_and_b32 v6, 15, v29")
        A("v_add_u32 v31, v31, v6")
        A("v_mul_u32_u24 v31, 1280, v31")
        A(f"v_add_u32 v{base}, v31, v30"); VO[nm + "M"] = base; base += 1
        A("v_lshrrev_b32 v31, 4, v29")
        A("v_lshlrev_b32 v31, 1, v31")
        A("v_bfe_u32 v6, v29, 2, 1")
        A("v_add_u32 v31, v31, v6")
        A("v_mul_u32_u24 v31, 20, v31")
        A("v_and_b32 v6, 3, v29")
        A("v_add3_u32 v31, v31, v6, 16")
        A("v_mul_u32_u24 v31, 1280, v31")
        A(f"v_add_u32 v{base}, v31, v30"); VO[nm + "R"] = base; base += 1
    R = 4
    PER = 10240
    sM0A, sM0B = 32, 33
    A(f"s_mul_i32 s{sM0A}, s{sPA}, 5120")
    A(f"s_lshl_b32 s24, s{sJA}, 10")
    A(f"s_add_u32 s{sM0A}, s{sM0A}, s24")
    A(f"s_mul_i32 s{sM0B}, s{sPB}, 5120")
    A(f"s_lshl_b32 s24, s{sJB}, 10")
    A(f"s_add_u32 s{sM0B}, s{sM0B}, s24")
    A("v_lshrrev_b32 v28, 1, v2")
    A("v_lshlrev_b32 v28, 4, v28")
    A("v_and_b32 v29, 1, v2")
    A("v_lshl_add_u32 v28, v29, 2, v28")
    A("v_and_b32 v29, 15, v1")
    A("v_lshrrev_b32 v29, 2, v29")
    A("v_add_u32 v28, v28, v29")
    A("v_mul_u32_u24 v28, 160, v28")
    A("v_and_b32 v29, 3, v1")
    A("v_lshl_add_u32 v28, v29, 3, v28")
    A(f"s_mul_i32 s24, s{sPar}, 5120")
    A(f"v_add_u32 v{vWr}, s24, v28")

    NPER = 36
    sP, sWsA, sWsB, sAct = 34, 35, 56, 57
    colb = 58
    A(f"s_mul_i32 s{colb}, s{sCB}, 160")

    def wdma(slot_imm=None, slot_reg=None):
        lM, lR, lJ, lE = (A.newlabel("L_wM"), A.newlabel("L_wR"), A.newlabel("L_wJ"), A.newlabel("L_wE"))
        A(f"s_cmp_ge_u32 s{sP}, {NPER}")
        A(f"s_cbranch_scc1 {lE}")
        A(f"s_and_b32 s24, s{sP}, {R-1}")
        A(f"s_mul_i32 s24, s24, {PER}")
        A(f"s_cmp_ge_u32 s{sP}, 32")
        A(f"s_cbranch_scc1 {lR}")
        A(f"s_cmp_ge_u32 s{sP}, 24")
        A(f"s_cbranch_scc1 {lM}")

        def body(srdn, kind, rows_per_step, pbase):
            for nm, sp, sm0 in (("A", sPA, sM0A), ("B", sPB, sM0B)):
                skip = None
                if nm == "B":
                    skip = A.newlabel("L_sk")
                    A("s_cmp_ge_u32 s3, 2")
                    A(f"s_cbranch_scc1 {skip}")
                A(f"s_sub_u32 s25, s{sP}, {pbase}")
                A("s_lshl_b32 s25, s25, 1")
                A(f"s_add_u32 s25, s25, s{sp}")
                A(f"s_mul_i32 s25, s25, {rows_per_step*1280}")
                A(f"s_add_u32 s25, s25, s{colb}")
                A(f"s_add_u32 m0, s24, s{sm0}")
                A("s_nop 0")
                A(f"buffer_load_dwordx4 v{VO[nm+kind]}, s[{srdn}:{srdn+3}], s25 offen lds")
                if skip:
                    A.label(skip)
        body(SWD, "H", 32, 0)
        A(f"s_branch {lE}")
        A.label(lM)
        body(SWO, "M", 40, 24)
        A(f"s_branch {lE}")
        A.label(lR)
        body(SWO, "R", 80, 32)
        A.label(lE)
        A(f"s_add_u32 s{sP}, s{sP}, 1")

    sPa = 59

    def actload(buf):
        lO, lJ, lE = A.newlabel("L_aO"), A.newlabel("L_aJ"), A.newlabel("L_aE")
        A(f"s_cmp_ge_u32 s{sPa}, {NPER}")
        A(f"s_cbranch_scc1 {lE}")
        A(f"s_lshl_b32 s24, s{sPa}, 1")
        A(f"s_add_u32 s24, s24, s{sPar}")
        A(f"s_cmp_ge_u32 s{sPa}, 24")
        A(f"s_cbranch_scc1 {lO}")
        A("s_lshl_b32 s24, s24, 11")
        A(f"s_mul_i32 s25, s{sTile}, {96*1024}")
        A(f"s_add_u32 s24, s24, s25")
        A(f"s_add_u32 s24, s24, {H_OFF}")
        A(f"s_branch {lJ}")
        A.label(lO)
        A("s_sub_u32 s24, s24, 48")
        A("s_lshl_b32 s24, s24, 11")
        A(f"s_mul_i32 s25, s{sTile}, {48*1024}")
        A(f"s_add_u32 s24, s24, s25")
        A(f"s_add_u32 s24, s24, {O_OFF}")
        A.label(lJ)
        A(f"buffer_load_dwordx4 {v(ACT+4*buf,4)}, v{vAct}, s[{SWS}:{SWS+3}], s24 offen")
        A.label(lE)
        A(f"s_add_u32 s{sPa}, s{sPa}, 1")

    A(f"s_mov_b32 s{sP}, 0")
    A(f"s_mov_b32 s{sPa}, 0")
    for r in range(ACC, ACC + 20):
        A(f"v_mov_b32 v{r}, 0")
    for p in range(3):
        wdma()
        actload(p)
    A("s_mov_b32 s60, 0")
    A.label("L_k3_loop")
    for u in range(4):
        l2, l3 = A.newlabel("L_w2"), A.newlabel("L_w3")
        A("s_cmp_ge_u32 s60, 34")
        lt = A.newlabel("L_wt")
        A(f"s_cbranch_scc1 {lt}")
        A("s_cmp_lt_u32 s3, 2")
        A(f"s_cbranch_scc1 {l3}")
        A("s_waitcnt vmcnt(4)")
        A(f"s_branch {l2}")
        A.label(l3)
        A("s_waitcnt vmcnt(6)")
        A(f"s_branch {l2}")
        A.label(lt)
        A("s_waitcnt vmcnt(0)")
        A.label(l2)
        A("s_barrier")
        wdma()
        for t in range(5):
            A(f"ds_read_b64_tr_b16 {v(WF+4*t,2)}, v{vWr} offset:{u*PER+32*t}")
            A(f"ds_read_b64_tr_b16 {v(WF+4*t+2,2)}, v{vWr} offset:{u*PER+32*t+8*160}")
        ls = A.newlabel("L_ns")
        A("s_cmp_eq_u32 s60, 24")
        A(f"s_cbranch_scc0 {ls}")
        A("s_nop 7")
        A(f"v_sub_f32 v28, 1.0, v{vG}")
        for r in range(20):
            A(f"v_mul_f32 v{ACC+r}, v28, v{ACC+r}")
        A("s_nop 1")
        A.label(ls)
        for t in range(5):
            A(f"s_waitcnt lgkmcnt({8-2*t})")
            A(mfma16(ACC + 4 * t, WF + 4 * t, ACT + 4 * u))
        actload((u + 3) % 4)
        A("s_add_u32 s60, s60, 1")
    A(f"s_cmp_lt_u32 s60, {NPER}")
    A("s_cbranch_scc1 L_k3_loop")
    A("s_nop 7\ns_nop 7")
    A("s_barrier")
    A(f"s_lshl_b32 s24, s{sT16}, 10")
    A("s_mul_i32 s24, s24, 5")
    A("v_lshlrev_b32 v28, 4, v1")
    A("v_add_u32 v28, s24, v28")
    A(f"s_cmp_eq_u32 s{sPar}, 0")
    A("s_cbranch_scc1 L_k3_red")
    for t in range(5):
        A(f"ds_write_b128 v28, {v(ACC+4*t,4)} offset:{1024*t}")
    A("s_waitcnt lgkmcnt(0)")
    A("s_barrier")
    A("s_endpgm")
    A.label("L_k3_red")
    A("s_barrier")
    for t in range(5):
        A(f"ds_read_b128 {v(WF+4*t,4)}, v28 offset:{1024*t}")
    A("s_waitcnt lgkmcnt(0)")
    for r in range(20):
        A(f"v_add_f32 v{ACC+r}, v{ACC+r}, v{WF+r}")
    A("v_and_b32 v29, 15, v1")
    A("v_mul_u32_u24 v29, 1280, v29")
    A("v_lshl_add_u32 v29, v2, 3, v29")
    A(f"s_lshl_b32 s24, s{sTB}, 6")
    A(f"s_lshl_b32 s25, s{sT16}, 4")
    A("s_add_u32 s24, s24, s25")
    A("s_mul_i32 s24, s24, 1280")
    A(f"s_add_u32 s24, s24, s{colb}")
    for t in range(5):
        A(f"v_cvt_pk_bf16_f32 v{WF+2*t}, v{ACC+4*t}, v{ACC+4*t+1}")
        A(f"v_cvt_pk_bf16_f32 v{WF+2*t+1}, v{ACC+4*t+2}, v{ACC+4*t+3}")
        A(f"buffer_store_dwordx2 {v(WF+2*t,2)}, v29, s[{SOUT}:{SOUT+3}], s24 offen offset:{32*t}")
    A("s_endpgm")
    return name, A.text(), 104, R * PER


HEADER = """; Kernarg layout (88 bytes, ptrs only): A_x@0 A_wqkv@8 A_wo@16 B_x@24 B_w_gate@32 B_w_up@40 B_w_down@48 gate_w@56 out@64 debug@72 ws@80
"""


def build():
    ks = [gen_k1(), gen_k2(), gen_k3()]
    out = HEADER
    for name, _, vg, lds in ks:
        out += f"; @launch kernel={name} grid=(256,1,1) block=(512,1,1) lds={lds}\n"
    out += '.amdgcn_target "amdgcn-amd-amdhsa--gfx950"\n.text\n'
    for name, text, vg, lds in ks:
        out += f".globl {name}\n" + text
    for name, text, vg, lds in ks:
        out += kernel_desc(name, vg)
    return out


if __name__ == "__main__":
    dst = sys.argv[1] if len(sys.argv) > 1 else f"cdna_kernels/{NAME}.s"
    open(dst, "w").write(build())
    print("wrote", dst)
```

```python
class Asm:
    def __init__(self, prefix=""):
        self.lines = []
        self._lab = 0
        self.prefix = prefix

    def __call__(self, s=""):
        for ln in s.split("\n"):
            ln = ln.strip()
            if ln:
                if ln.endswith(":"):
                    self.lines.append(ln)
                else:
                    self.lines.append("    " + ln)

    def c(self, s):
        self.lines.append("    ; " + s)

    def label(self, name):
        self.lines.append(name + ":")

    def newlabel(self, base="L"):
        self._lab += 1
        return f"{base}_{self.prefix}{self._lab}"

    def defer(self, fn):
        if not hasattr(self, "_deferred"):
            self._deferred = []
        self._deferred.append(fn)

    def flush_deferred(self):
        while getattr(self, "_deferred", None):
            fn = self._deferred.pop(0)
            fn()

    def rare(self, cmp_lines, body, branch="s_cbranch_scc1"):
        ls, lb = self.newlabel("L_rare"), self.newlabel("L_back")
        for c in cmp_lines:
            self(c)
        self(f"{branch} {ls}")
        self.label(lb)

        def emit():
            self.label(ls)
            body(lb)
            self(f"s_branch {lb}")
        self.defer(emit)

    def text(self):
        self.flush_deferred()
        return "\n".join(self.lines) + "\n"


def v(a, n=1):
    return f"v{a}" if n == 1 else f"v[{a}:{a+n-1}]"


def s(a, n=1):
    return f"s{a}" if n == 1 else f"s[{a}:{a+n-1}]"


def mfma32(d, a, b, c=None):
    cs = v(d, 16) if c is None else (c if isinstance(c, str) else v(c, 16))
    return f"v_mfma_f32_32x32x16_bf16 {v(d,16)}, {v(a,4)}, {v(b,4)}, {cs}"


def mfma16(d, a, b, c=None):
    cs = v(d, 4) if c is None else (c if isinstance(c, str) else v(c, 4))
    return f"v_mfma_f32_16x16x32_bf16 {v(d,4)}, {v(a,4)}, {v(b,4)}, {cs}"


def srd(A, sd, sptr, nbytes, add=0):
    if add:
        A(f"s_add_u32 s{sd}, s{sptr}, {add}")
        A(f"s_addc_u32 s{sd+1}, s{sptr+1}, 0")
    else:
        A(f"s_mov_b32 s{sd}, s{sptr}")
        A(f"s_mov_b32 s{sd+1}, s{sptr+1}")
    A(f"s_and_b32 s{sd+1}, s{sd+1}, 0xffff")
    A(f"s_mov_b32 s{sd+2}, {nbytes}")
    A(f"s_mov_b32 s{sd+3}, 0x20000")


def kernel_desc(name, vgpr, sgpr=102, accum=None):
    if accum is None:
        accum = (vgpr + 3) // 4 * 4
    return f""".section .rodata,"a"
.p2align 6
.amdhsa_kernel {name}
  .amdhsa_next_free_vgpr {vgpr}
  .amdhsa_next_free_sgpr {sgpr}
  .amdhsa_accum_offset {accum}
  .amdhsa_group_segment_fixed_size 0
  .amdhsa_kernarg_size 88
  .amdhsa_user_sgpr_count 2
  .amdhsa_user_sgpr_kernarg_segment_ptr 1
  .amdhsa_system_sgpr_workgroup_id_x 1
  .amdhsa_float_denorm_mode_32 3
.end_amdhsa_kernel
"""


def magic_div(A, vd, vs, d, maxval, stmp):
    for sh in range(8, 32):
        m = -(-(1 << sh) // d)
        if m * maxval >= (1 << 32):
            continue
        if all(((x * m) >> sh) == x // d for x in range(maxval)):
            A(f"s_mov_b32 s{stmp}, {m}")
            A(f"v_mul_lo_u32 v{vd}, v{vs}, s{stmp}")
            A(f"v_lshrrev_b32 v{vd}, {sh}, v{vd}")
            return
    raise ValueError("no magic")


def smagic_div(A, sd, ss, d, maxval):
    for sh in range(8, 32):
        m = -(-(1 << sh) // d)
        if m * maxval >= (1 << 32):
            continue
        if all(((x * m) >> sh) == x // d for x in range(maxval)):
            A(f"s_mul_i32 s{sd}, s{ss}, {m}")
            A(f"s_lshr_b32 s{sd}, s{sd}, {sh}")
            return
    raise ValueError("no magic")
```

```python
import sys, os, struct
from asmlib import *

NAME = "gated_mix__mha_block__glu_gated_geglu__prompt"
KNAME = NAME + "_kernel"

QF_OFF = 0
QF_SZ = 32 * 64 * 1280
KV_OFF = QF_OFF + QF_SZ
KV_SZ = 32 * 64 * 2560
H_OFF = KV_OFF + KV_SZ
H_SZ = 64 * 96 * 1024
O_OFF = H_OFF + H_SZ
O_SZ = 64 * 48 * 1024
G_OFF = O_OFF + O_SZ
G_SZ = 8192
F1_OFF = G_OFF + G_SZ
F2_OFF = F1_OFF + 1024
F3_OFF = F2_OFF + 1024
F_END = F3_OFF + 8192
PROF_OFF = F_END
PROF_SZ = 256 * 8 * 64
WS_USED = PROF_OFF + PROF_SZ
PROF = False
DBG = set(os.environ.get("DBG", "").split(","))
SC1 = " sc1"

LOG2E = 1.4426950408889634
QSCALE = LOG2E * (20 ** -0.5)
SPIN_MAX = 1 << 14


def f2u(x):
    return struct.unpack("<I", struct.pack("<f", x))[0]


def hx(x):
    return hex(x & 0xffffffff)


P_AX, P_WQKV, P_WO, P_BX, P_WG, P_WU, P_WD, P_GW = 36, 38, 40, 42, 44, 46, 48, 50
P_OUT, P_WS, P_DBG = 52, 54, 34
SX, SWQ, SWG, SWU, SW1, SWS, SDB = 4, 8, 12, 16, 20, 24, 28
SWD, SWO, SOUT, SPA, SPB = 4, 8, 12, 16, 20
SK = 40
sTB, sCG, sTT, sWC, sNonce = 56, 57, 58, 59, 60
T0, T1, T2, T3 = 61, 62, 63, 64
sSpin = 75
NSTAMP = 12
STAMP0 = 76

XRING = 0
WRING = 49152
WSLOT = 24640
UPOFF = 12288 + 32
KVB = 122880
KVSLOT = 5120
XCH = KVB
LDS_SZ = 163840
WPER = 10240
PB, NB = 12, 20

vLane = 1
vXo, vWoQ, vWo0, vWo1, vWo2 = 4, 5, 6, 7, 14
vXa, vWaQ, vWaG = 8, 12, 15
XA, XB = 32, 40
ACC = 64
WA, WB = 112, 136
vN = 62
K0, K1, V0, V1 = 16, 20, 24, 28
P = 48
S = [64, 80]
E = 96
DACC = 112
WF = 132
Q0 = [160, 168]
Q1 = [164, 172]
vGt, vL16p, vT8p, vK0, vK1, vV = 176, 177, 178, 179, 180, 181
vActReal, vAct, vWr, vWA, vPB, vG2 = 182, 183, 184, 185, 186, 187
vWAm, vWBm, vWAr, vWBr, vKVo, vW0, vW1 = 188, 189, 190, 191, 192, 193, 194
vWB = 195
ACT = 200
O = [216, 232]
ACTX = 64
WF2 = [132, 16]


CLK = "s_memtime" if "clk" in DBG else "s_memrealtime"


def stamp(A, idx):
    if PROF:
        A(f"{CLK} s[{STAMP0+2*idx}:{STAMP0+2*idx+1}]")


def prof_end(A):
    if not PROF:
        return
    A(f"{CLK} s[{STAMP0+2*(NSTAMP-1)}:{STAMP0+2*(NSTAMP-1)+1}]")
    A("s_waitcnt lgkmcnt(0)")
    A("s_lshl_b32 s61, s2, 3")
    A("s_add_u32 s61, s61, s3")
    A("s_lshl_b32 s61, s61, 6")
    A(f"s_add_u32 s61, s61, {PROF_OFF}")
    for i in range(NSTAMP):
        A(f"v_mov_b32 v{4+i}, s{STAMP0+2*i}")
    A("v_mov_b32 v0, 0")
    A("s_mov_b64 exec, 1")
    for i in range(3):
        A(f"buffer_store_dwordx4 v[{4+4*i}:{7+4*i}], v0, s[{SWS}:{SWS+3}], s61 offen offset:{16*i}")


def spin(A, name, issue, check):
    l0, l1 = A.newlabel("L_sp" + name), A.newlabel("L_spd" + name)
    A(f"s_mov_b32 s{sSpin}, 0")
    A.label(l0)
    issue()
    A("s_waitcnt vmcnt(0)")
    check()
    A(f"s_cbranch_scc1 {l1}")
    A(f"s_add_u32 s{sSpin}, s{sSpin}, 1")
    A(f"s_cmp_ge_u32 s{sSpin}, {SPIN_MAX}")
    A(f"s_cbranch_scc1 {l1}")
    A("s_sleep 2")
    A(f"s_branch {l0}")
    A.label(l1)


def poll_pre(A, name, issue, check):
    l = A.newlabel("L_pp" + name)
    check()
    A(f"s_cbranch_scc1 {l}")
    spin(A, name, issue, check)
    A.label(l)


W = f"s[{SWS}:{SWS+3}]"


def gen():
    A = Asm("k_")
    A(f".p2align 8\n.type {KNAME},@function")
    A.label(KNAME)
    stamp(A, 0)
    A("s_cmp_ge_u32 s2, 256")
    A("s_cbranch_scc0 L_go")
    A("s_endpgm")
    A.label("L_go")
    A("s_load_dwordx16 s[36:51], s[0:1], 0")
    A("s_load_dwordx2 s[52:53], s[0:1], 64")
    A("s_load_dwordx2 s[34:35], s[0:1], 72")
    A("s_load_dwordx2 s[54:55], s[0:1], 80")
    A("v_lshrrev_b32 v2, 6, v0")
    A("v_and_b32 v1, 63, v0")
    A("s_nop 0")
    A("v_readfirstlane_b32 s3, v2")
    A("s_and_b32 s61, s2, 7")
    A("s_lshr_b32 s62, s2, 3")
    A(f"s_lshr_b32 s{sTB}, s61, 1")
    A(f"s_lshl_b32 s{sTB}, s{sTB}, 2")
    A("s_and_b32 s63, s62, 3")
    A(f"s_add_u32 s{sTB}, s{sTB}, s63")
    A(f"s_and_b32 s{sCG}, s61, 1")
    A(f"s_lshl_b32 s{sCG}, s{sCG}, 3")
    A("s_lshr_b32 s63, s62, 2")
    A(f"s_add_u32 s{sCG}, s{sCG}, s63")
    A(f"s_and_b32 s{sTT}, s3, 3")
    A(f"s_lshr_b32 s{sWC}, s3, 2")
    A("v_lshrrev_b32 v16, 3, v1")
    A("s_lshl_b32 s61, s3, 3")
    A("v_add_u32 v16, s61, v16")
    A("v_lshrrev_b32 v17, 1, v16")
    A("v_and_b32 v17, 7, v17")
    A("v_and_b32 v18, 7, v1")
    A("v_xor_b32 v17, v17, v18")
    A("v_lshlrev_b32 v17, 4, v17")
    A("v_mul_u32_u24 v16, 1280, v16")
    A(f"v_add_u32 v{vXo}, v16, v17")
    A("v_lshrrev_b32 v16, 4, v1")
    A("v_lshlrev_b32 v17, 2, v16")
    A("v_and_b32 v18, 15, v1")
    A("v_xor_b32 v17, v17, v18")
    A("v_lshlrev_b32 v17, 4, v17")
    A("s_lshl_b32 s61, s3, 2")
    A("v_add_u32 v16, s61, v16")
    A("v_mul_u32_u24 v16, 3840, v16")
    A(f"v_add_u32 v{vWoQ}, v16, v17")
    sXs, sXs2, sWs, sWs2, sGs, sGx = 32, 33, 66, 67, 72, 73
    sM0x, sM0q, sM0g0, sM0g1, sM0g2 = 74, 65, 100, 101, 71
    sStage, sSlot = 69, 70
    sXslot, sWslot, sDX, sDW = 44, 45, 46, 47
    A(f"s_mul_i32 s{sXs}, s{sTB}, {128*1280}")
    A(f"s_mov_b32 s{sGx}, s{sXs}")
    A(f"s_mul_i32 s61, s{sCG}, 240")
    A(f"s_sub_u32 s62, s{sCG}, 11")
    A("s_lshl_b32 s62, s62, 8")
    A("s_add_u32 s62, s62, 2560")
    A(f"s_cmp_lt_u32 s{sCG}, 11")
    A(f"s_cselect_b32 s{sWs}, s61, s62")
    A(f"s_lshl_b32 s{sM0x}, s3, 10")
    A(f"s_add_u32 s{sM0q}, s{sM0x}, {WRING}")
    A("v_lshlrev_b32 v2, 2, v1")
    A("s_waitcnt lgkmcnt(0)")
    srd(A, SX, P_AX, 2048 * 1280)
    srd(A, SWQ, P_WQKV, 640 * 3840)

    def x_dma(sx):
        A(f"s_add_u32 m0, s{sM0x}, s{sXslot}")
        A(f"s_add_u32 s{sXs2}, s{sx}, 81920")
        A(f"buffer_load_dwordx4 v{vXo}, s[{SX}:{SX+3}], s{sx} offen lds")
        A("s_add_u32 m0, m0, 8192")
        A(f"s_add_u32 s{sx}, s{sx}, 128")
        A(f"buffer_load_dwordx4 v{vXo}, s[{SX}:{SX+3}], s{sXs2} offen lds")

    def qkv_dma(force=False):
        if "p1nodma" in DBG and not force:
            return
        x_dma(sXs)
        A(f"s_add_u32 m0, s{sM0q}, s{sWslot}")
        A(f"s_add_u32 s{sWs2}, s{sWs}, {32*3840}")
        A(f"buffer_load_dwordx4 v{vWoQ}, s[{SWQ}:{SWQ+3}], s{sWs} offen lds")
        A("s_add_u32 m0, m0, 8192")
        A(f"s_add_u32 s{sWs}, s{sWs}, {64*3840}")
        A(f"buffer_load_dwordx4 v{vWoQ}, s[{SWQ}:{SWQ+3}], s{sWs2} offen lds")

    def gu_dma():
        if "p1nodma" in DBG:
            return
        x_dma(sGx)
        A(f"s_add_u32 m0, s{sM0g0}, s{sWslot}")
        A("s_nop 0")
        A(f"buffer_load_dwordx4 v{vWo0}, s[{SWG}:{SWG+3}], s{sGs} offen lds")
        A(f"s_add_u32 m0, s{sM0g1}, s{sWslot}")
        A("s_nop 0")
        A(f"buffer_load_dwordx4 v{vWo1}, s[{SW1}:{SW1+3}], s{sGs} offen lds")
        A(f"s_add_u32 m0, s{sM0g2}, s{sWslot}")
        A("s_nop 0")
        A(f"buffer_load_dwordx4 v{vWo2}, s[{SWU}:{SWU+3}], s{sGs} offen lds")
        A(f"s_add_u32 s{sGs}, s{sGs}, {64*3072}")

    SGW = 68
    srd(A, SGW, P_GW, 1280)
    vGX, vGW = 100, 106
    sTOK = 33
    sGoff = 0
    A(f"s_lshl_b32 s{sTOK}, s{sTB}, 7")
    A(f"s_lshl_b32 s61, s{sCG}, 3")
    A(f"s_add_u32 s{sTOK}, s{sTOK}, s61")
    A(f"s_add_u32 s{sTOK}, s{sTOK}, s3")
    A(f"s_lshl_b32 s{sGoff}, s{sTOK}, 2")
    A(f"s_add_u32 s{sGoff}, s{sGoff}, {G_OFF}")
    A(f"s_mul_i32 s61, s{sTOK}, 1280")
    for m in range(5):
        A(f"buffer_load_dword v{vGX+m}, v2, s[{SX}:{SX+3}], s61 offen offset:{256*m}")
    for m in range(5):
        A(f"buffer_load_dword v{vGW+m}, v2, s[{SGW}:{SGW+3}], 0 offen offset:{256*m}")
    srd(A, SWG, P_WG, 640 * 3072)
    srd(A, SWU, P_WU, 640 * 3072)
    for st in range(3):
        A(f"s_mov_b32 s{sXslot}, {st*16384}")
        A(f"s_mov_b32 s{sWslot}, {st*WSLOT}")
        qkv_dma(True)
    NPF = 0 if "nopf" in DBG else 1
    srd(A, SWS, P_WS, WS_USED)
    srd(A, SDB, P_DBG, 256)
    A("s_cmp_lt_u32 s3, 4")
    for k in range(4):
        A(f"s_cselect_b32 s{SW1+k}, s{SWG+k}, s{SWU+k}")
    A("s_or_b32 s61, s2, s3")
    A("s_cmp_eq_u32 s61, 0")
    A("s_cbranch_scc0 L_nononce")
    A("s_memrealtime s[62:63]")
    A("s_waitcnt lgkmcnt(0)")
    A("s_or_b32 s62, s62, 1")
    A("v_mov_b32 v16, s62")
    A("v_mov_b32 v17, 0")
    A("s_mov_b64 exec, 1")
    A(f"buffer_store_dword v16, v17, s[{SDB}:{SDB+3}], 0 offen sc1")
    A("s_mov_b64 exec, -1")
    A("s_waitcnt vmcnt(0)")
    A.label("L_nononce")

    A("v_and_b32 v16, 31, v1")
    A("v_lshrrev_b32 v17, 5, v1")
    A("v_lshrrev_b32 v18, 1, v16")
    A("v_and_b32 v18, 7, v18")
    A(f"s_lshl_b32 s61, s{sTT}, 5")
    A("v_add_u32 v19, s61, v16")
    A("v_lshlrev_b32 v19, 7, v19")
    for j in range(4):
        A(f"v_add_u32 v20, {2*j}, v17")
        A("v_xor_b32 v20, v20, v18")
        A("v_lshlrev_b32 v20, 4, v20")
        A(f"v_add_u32 v{vXa+j}, v19, v20")
    A("v_and_b32 v18, 15, v1")
    A("v_lshrrev_b32 v19, 2, v18")
    A("v_lshrrev_b32 v20, 4, v1")
    A(f"s_cmp_lt_u32 s{sCG}, 11")
    A("s_cselect_b32 s61, 8, 0")
    A("s_sub_u32 s61, 128, s61")
    A(f"s_mul_i32 s61, s61, s{sWC}")
    A("v_lshrrev_b32 v21, 1, v20")
    A("v_lshl_add_u32 v21, v21, 3, v19")
    A("v_lshlrev_b32 v27, 8, v21")
    A(f"v_add_u32 v27, {WRING}, v27")
    A("v_and_b32 v22, 1, v20")
    A("v_lshlrev_b32 v22, 5, v22")
    A("v_and_b32 v23, 3, v1")
    A("v_lshl_add_u32 v22, v23, 3, v22")
    A("v_add_u32 v22, s61, v22")
    A("v_and_b32 v24, 3, v19")
    A("v_lshlrev_b32 v24, 2, v24")
    for t in range(2):
        A(f"v_add_u32 v25, {64*t}, v22")
        A("v_lshrrev_b32 v26, 4, v25")
        A("v_xor_b32 v26, v26, v24")
        A("v_lshlrev_b32 v26, 4, v26")
        A("v_and_b32 v25, 15, v25")
        A(f"v_add3_u32 v{vWaQ+t}, v27, v26, v25")
    A("v_mul_u32_u24 v21, 192, v21")
    A("v_and_b32 v22, 1, v20")
    A(f"v_mul_u32_u24 v22, {UPOFF}, v22")
    A("v_lshlrev_b32 v23, 3, v23")
    A("v_add3_u32 v21, v21, v22, v23")
    A(f"s_mul_i32 s61, s{sWC}, 96")
    A(f"s_add_u32 s61, s61, {WRING}")
    A(f"v_add_u32 v{vWaG}, s61, v21")
    A("s_add_u32 s61, s3, 8")
    A("s_sub_u32 s62, s3, 4")
    A("s_cmp_lt_u32 s3, 4")
    A("s_cselect_b32 s63, s61, s62")
    A(f"s_cselect_b32 s64, 0, {UPOFF}")
    A(f"s_lshl_b32 s{sM0g1}, s63, 10")
    A(f"s_add_u32 s{sM0g1}, s{sM0g1}, s64")
    A(f"s_add_u32 s{sM0g1}, s{sM0g1}, {WRING}")
    A("s_add_u32 s64, s3, 4")
    A(f"s_lshl_b32 s{sM0g2}, s64, 10")
    A(f"s_add_u32 s{sM0g2}, s{sM0g2}, {WRING + UPOFF}")
    A(f"s_lshl_b32 s{sM0g0}, s3, 10")
    A(f"s_add_u32 s{sM0g0}, s{sM0g0}, {WRING}")
    for (vd, sj) in ((vWo0, 3), (vWo1, 63), (vWo2, 64)):
        A(f"s_lshl_b32 s61, s{sj}, 6")
        A("v_add_u32 v21, s61, v1")
        magic_div(A, 22, 21, 12, 768, 62)
        A("v_mul_u32_u24 v23, 12, v22")
        A("v_sub_u32 v23, v21, v23")
        A("v_lshlrev_b32 v23, 4, v23")
        A("v_mul_u32_u24 v22, 3072, v22")
        A(f"v_add_u32 v{vd}, v22, v23")
    A(f"s_mul_i32 s{sGs}, s{sCG}, 192")

    A(f"v_lshlrev_b32 v{vL16p}, 4, v1")
    A(f"v_and_b32 v16, 31, v1")
    A(f"v_lshlrev_b32 v{vT8p}, 3, v16")
    A(f"v_lshlrev_b32 v{vGt}, 2, v16")
    A(f"s_mul_i32 s61, s{sWC}, 2560")
    A(f"s_add_u32 s61, s61, {KVB + 4*KVSLOT}")
    A(f"v_add_u32 v{vK0}, s61, v{vL16p}")
    A(f"v_add_u32 v{vK1}, s61, v{vT8p}")
    A(f"v_add_u32 v{vK1}, 1024, v{vK1}")
    A("v_lshrrev_b32 v17, 5, v1")
    A("v_mul_u32_u24 v17, 320, v17")
    A("v_lshlrev_b32 v18, 4, v16")
    A("v_add3_u32 v17, v17, v18, s61")
    A(f"v_add_u32 v{vV}, 1280, v17")
    A("s_sub_i32 s61, s3, 2")
    A("s_max_i32 s61, s61, 0")
    A("s_min_i32 s61, s61, 4")
    A("s_lshl_b32 s62, s61, 10")
    A(f"v_add_u32 v{vKVo}, s62, v{vL16p}")
    A(f"v_cmp_le_u32 vcc, 2560, v{vKVo}")
    A(f"v_add_u32 v17, {32*2560-2560}, v{vKVo}")
    A("s_nop 0")
    A(f"v_cndmask_b32 v{vKVo}, v{vKVo}, v17, vcc")
    A("v_lshrrev_b32 v17, 4, v1")
    A("v_lshrrev_b32 v18, 1, v17")
    A("v_lshlrev_b32 v18, 10, v18")
    A("v_and_b32 v19, 1, v17")
    A("v_lshlrev_b32 v19, 9, v19")
    A("v_and_b32 v20, 15, v1")
    A(f"s_and_b32 s61, s{sTT}, 1")
    A("s_lshl_b32 s61, s61, 4")
    A("v_add_u32 v20, s61, v20")
    A("v_lshlrev_b32 v21, 4, v20")
    A(f"v_add3_u32 v{vActReal}, v18, v19, v21")
    A(f"v_mov_b32 v{vAct}, v{vActReal}")
    A(f"v_lshlrev_b32 v{vG2}, 2, v20")
    A("v_lshrrev_b32 v18, 1, v17")
    A("v_lshlrev_b32 v18, 4, v18")
    A("v_and_b32 v19, 1, v17")
    A("v_lshl_add_u32 v18, v19, 2, v18")
    A("v_and_b32 v19, 15, v1")
    A("v_lshrrev_b32 v19, 2, v19")
    A("v_add_u32 v18, v18, v19")
    A("v_mul_u32_u24 v18, 160, v18")
    A("v_and_b32 v19, 3, v1")
    A("v_lshl_add_u32 v18, v19, 3, v18")
    A(f"s_mul_i32 s61, s{sWC}, 5120")
    A(f"v_add_u32 v{vWr}, s61, v18")
    A(f"v_mov_b32 v{vW0}, v{vWr}")
    A(f"v_add_u32 v{vW1}, 61440, v{vWr}")
    A("s_cmp_ge_u32 s3, 5")
    A("s_cselect_b32 s63, 5, 0")
    A("s_sub_u32 s63, s3, s63")
    A("s_add_u32 s64, s3, 3")
    A("s_min_u32 s64, s64, 4")
    for (sj, vh, vm, vr) in ((63, vWA, vWAm, vWAr), (64, vWB, vWBm, vWBr)):
        A(f"s_lshl_b32 s61, s{sj}, 6")
        A("v_add_u32 v22, s61, v1")
        magic_div(A, 23, 22, 10, 320, 62)
        A("v_mul_u32_u24 v24, 10, v23")
        A("v_sub_u32 v24, v22, v24")
        A("v_lshlrev_b32 v24, 4, v24")
        A("v_mul_u32_u24 v25, 1280, v23")
        A(f"v_add_u32 v{vh}, v25, v24")
        A("v_lshrrev_b32 v25, 4, v23")
        A("v_mul_u32_u24 v25, 20, v25")
        A("v_and_b32 v26, 15, v23")
        A("v_add_u32 v25, v25, v26")
        A("v_mul_u32_u24 v25, 1280, v25")
        A(f"v_add_u32 v{vm}, v25, v24")
        A("v_lshrrev_b32 v25, 4, v23")
        A("v_lshlrev_b32 v25, 1, v25")
        A("v_bfe_u32 v26, v23, 2, 1")
        A("v_add_u32 v25, v25, v26")
        A("v_mul_u32_u24 v25, 20, v25")
        A("v_and_b32 v26, 3, v23")
        A("v_add3_u32 v25, v25, v26, 16")
        A("v_mul_u32_u24 v25, 1280, v25")
        A(f"v_add_u32 v{vr}, v25, v24")
    A("s_cmp_lt_u32 s3, 2")
    A("s_cselect_b64 vcc, -1, 0")
    A("s_nop 1")
    A(f"v_cndmask_b32 v{vPB}, v{vKVo}, v{vWB}, vcc")
    ONE2 = 0x3f803f80
    A("v_and_b32 v17, 31, v1")
    A("v_cmp_eq_u32 vcc, 20, v17")
    A(f"v_mov_b32 v18, {hx(ONE2)}")
    A("s_nop 0")
    A("v_cndmask_b32 v19, 0, v18, vcc")
    for r in range(8):
        A(f"v_mov_b32 v{V0+r}, v19")
    A(f"v_mov_b32 v{K1+2}, {hx(ONE2)}")
    A(f"v_mov_b32 v{K1+3}, 0x3f80")
    for r in range(4):
        A(f"v_mov_b32 v{K0+r}, 0")
    A(f"v_mov_b32 v{K1}, 0")
    A(f"v_mov_b32 v{K1+1}, 0")
    for r in range(32):
        A(f"v_mov_b32 v{O[0]+r}, 0")
    for r in range(8):
        A(f"v_mov_b32 v{P+r}, 0")
    for a in range(2):
        for r in range(4):
            A(f"v_mov_b32 v{Q0[a]+r}, 0")
            A(f"v_mov_b32 v{Q1[a]+r}, 0")
    for r in range(ACC, ACC + 32):
        A(f"v_mov_b32 v{r}, 0")

    A(f"s_mov_b32 s{sSlot}, 0")
    A(f"s_mov_b32 s{sXslot}, 0")
    A(f"s_mov_b32 s{sWslot}, 0")

    def gate_compute():
        A("v_mov_b32 v56, 0")
        for m in range(5):
            A(f"v_dot2_f32_bf16 v56, v{vGX+m}, v{vGW+m}, v56")
        A("s_nop 3")
        for sh in (1, 2, 4, 8):
            A(f"v_add_f32_dpp v56, v56, v56 row_shr:{sh} row_mask:0xf bank_mask:0xf bound_ctrl:0")
            A("s_nop 1")
        A("v_add_f32_dpp v56, v56, v56 row_bcast:15 row_mask:0xa bank_mask:0xf")
        A("s_nop 1")
        A("v_add_f32_dpp v56, v56, v56 row_bcast:31 row_mask:0xc bank_mask:0xf")
        A("s_nop 1")
        A(f"v_mul_f32 v56, {hx(f2u(-LOG2E))}, v56")
        A("v_exp_f32 v56, v56")
        A("s_nop 0")
        A("v_add_f32 v56, 1.0, v56")
        A("v_rcp_f32 v63, v56")

    if NPF:
        A("s_mov_b32 s60, s4\ns_mov_b32 s61, s5")
        A(f"s_mov_b32 s62, {2048*1280}")
        A("s_mov_b32 s64, 10240")
        for (wmin, lo, hi, sz, ch) in ((2, 8, 9, 640*3840, 9600), (4, 12, 13, 640*3072, 7680), (5, 16, 17, 640*3072, 7680),
                                       (6, 48, 49, 1536*1280, 7680), (7, 40, 41, 640*1280, 3200)):
            A(f"s_cmp_ge_u32 s3, {wmin}")
            A(f"s_cselect_b32 s60, s{lo}, s60")
            A(f"s_cselect_b32 s61, s{hi}, s61")
            A(f"s_cselect_b32 s62, {sz}, s62")
            A(f"s_cselect_b32 s64, {ch}, s64")
        A("s_and_b32 s61, s61, 0xffff")
        A("s_mov_b32 s63, 0x20000")
        A("s_cmp_lt_u32 s3, 4")
        A("s_cselect_b32 s75, 1, 0")
        A("s_and_b32 s75, s75, s3")
        A("s_lshl_b32 s75, s75, 13")
        A("v_lshlrev_b32 v2, 7, v1")
        A("v_add_u32 v2, s75, v2")
        A("v_cmp_gt_u32 vcc, s64, v2")
        A("s_mul_i32 s64, s64, s2")
        A("s_and_saveexec_b64 s[0:1], vcc") if False else None
        A("s_mov_b64 exec, vcc")
        A("buffer_load_dword v200, v2, s[60:63], s64 offen")
        A("s_mov_b64 exec, -1")
    A(f"s_waitcnt vmcnt({8+NPF})")
    A("s_barrier")
    stamp(A, 1)

    def ring_advance(wregs):
        A(f"s_add_u32 s{sSlot}, s{sSlot}, 1")
        A(f"s_cmp_eq_u32 s{sSlot}, 3")
        A(f"s_cselect_b32 s{sDX}, {3*16384}, 0")
        A(f"s_cselect_b32 s{sDW}, {3*WSLOT}, 0")
        A(f"s_cselect_b32 s{sSlot}, 0, s{sSlot}")
        A(f"s_sub_u32 s{sDX}, 16384, s{sDX}")
        A(f"s_sub_u32 s{sDW}, {WSLOT}, s{sDW}")
        for j in range(4):
            A(f"v_add_u32 v{vXa+j}, s{sDX}, v{vXa+j}")
        for r in wregs:
            A(f"v_add_u32 v{r}, s{sDW}, v{r}")

    def interleave(mm, rr, ngaps=None):
        n = ngaps if ngaps else max(1, len(mm) // 2)
        per = (len(rr) + n - 1) // n
        ri = 0
        for m in mm:
            A(m)
            for r in rr[ri:ri + per]:
                A(r)
            ri += per
        for r in rr[ri:]:
            A(r)

    def qkv_reads(setX, setW, half):
        r = []
        for jj in range(2):
            j = 2 * half + jj
            r.append(f"ds_read_b128 {v(setX+4*jj,4)}, v{vXa+j}")
            for t in range(2):
                d = setW + 8 * jj + 4 * t
                r.append(f"ds_read_b64_tr_b16 {v(d,2)}, v{vWaQ+t} offset:{j*4096}")
                r.append(f"ds_read_b64_tr_b16 {v(d+2,2)}, v{vWaQ+t} offset:{j*4096+1024}")
        return r

    def qkv_mfmas(setX, setW, vtype):
        m = []
        for jj in range(2):
            for t in range(2):
                a, b = setW + 8 * jj + 4 * t, setX + 4 * jj
                if vtype:
                    a, b = b, a
                m.append(mfma32(ACC + 16 * t, a, b))
        return m

    def gu_reads(setX, setW, half):
        r = []
        for jj in range(2):
            j = 2 * half + jj
            r.append(f"ds_read_b128 {v(setX+4*jj,4)}, v{vXa+j}")
            for t in range(3):
                d = setW + 12 * jj + 4 * t
                r.append(f"ds_read_b64_tr_b16 {v(d,2)}, v{vWaG} offset:{j*3072+32*t}")
                r.append(f"ds_read_b64_tr_b16 {v(d+2,2)}, v{vWaG} offset:{j*3072+32*t+768}")
        return r

    def gu_mfmas(setX, setW):
        m = []
        for jj in range(2):
            for t in range(3):
                m.append(mfma32(ACC + 16 * t, setW + 12 * jj + 4 * t, setX + 4 * jj))
        return m

    def gemm_loop(lbl, reads_, mfmas_, wregs, pre_barrier, waits, post_barrier, dmas):
        reads = (lambda *a: []) if "p1noreads" in DBG else reads_
        mfmas = (lambda *a: ["s_nop 0"] * len(mfmas_(*a))) if "p1nomfma" in DBG else mfmas_
        A(f"s_mov_b32 s{sStage}, 0")
        for r in reads(XA, WA, 0):
            A(r)
        A.label(lbl)
        A("s_waitcnt lgkmcnt(0)")
        interleave(mfmas(XA, WA), reads(XB, WB, 1))
        ring_advance(wregs)
        pre_barrier()
        waits()
        A("s_barrier")
        mm = mfmas(XB, WB)
        interleave(mm[:-1], reads(XA, WA, 0), len(mm) // 2)
        dmas()
        post_barrier()
        A(mm[-1])
        A(f"s_add_u32 s{sXslot}, s{sXslot}, s{sDX}")
        A(f"s_add_u32 s{sWslot}, s{sWslot}, s{sDW}")
        A(f"s_add_u32 s{sStage}, s{sStage}, 1")
        A(f"s_cmp_lt_u32 s{sStage}, 10")
        A(f"s_cbranch_scc1 {lbl}")

    def qkv_waits():
        l2 = A.newlabel("L_qx")

        def body(lb):
            l3 = A.newlabel("L_qy")
            A(f"s_cmp_lt_u32 s{sStage}, 2")
            A(f"s_cbranch_scc1 {l3}")
            A("s_waitcnt vmcnt(5) lgkmcnt(0)")
            A(f"s_branch {l2}")
            A.label(l3)
            A(f"s_waitcnt vmcnt({4+NPF}) lgkmcnt(0)")
            A(f"s_branch {l2}")
        A.rare([f"s_sub_u32 s61, s{sStage}, 2", "s_cmp_ge_u32 s61, 6"], body)
        A("s_waitcnt vmcnt(4) lgkmcnt(0)")
        A.label(l2)

    def qkv_dmas():
        l2 = A.newlabel("L_qe")

        def body(lb):
            gu_dma()
            A(f"s_branch {l2}")
        A.rare([f"s_cmp_ge_u32 s{sStage}, 7"], body)
        qkv_dma()
        A.label(l2)

    sCls = 35
    A(f"s_cmp_ge_u32 s{sCG}, 11")
    A("s_cbranch_scc1 L_vtype")
    gemm_loop("L_qk", qkv_reads, lambda x, w: qkv_mfmas(x, w, False), [vWaQ, vWaQ + 1, vWaG], lambda: None, qkv_waits, lambda: None, qkv_dmas)
    stamp(A, 2)
    A("s_waitcnt lgkmcnt(0)")
    A("s_nop 7\ns_nop 7")
    PK = 32
    sU, sTile, sD = 65, 66, 67
    A(f"s_mul_i32 s{sU}, s{sCG}, 6")
    A(f"s_mul_i32 s61, s{sWC}, 3")
    A(f"s_add_u32 s{sU}, s{sU}, s61")
    A(f"s_lshl_b32 s{sTile}, s{sTB}, 2")
    A(f"s_add_u32 s{sTile}, s{sTile}, s{sTT}")
    A(f"s_add_u32 s61, s{sU}, 1")
    A("s_cmp_lt_u32 s61, 32")
    A(f"s_cselect_b32 s62, {hx(f2u(QSCALE))}, 1.0")
    A(f"s_add_u32 s61, s{sU}, 2")
    A("s_cmp_lt_u32 s61, 32")
    A(f"s_cselect_b32 s63, {hx(f2u(QSCALE))}, 1.0")
    for r in range(32):
        G = r // 4
        A(f"v_mul_f32 v{ACC+r}, s{62 if G < 5 else 63}, v{ACC+r}")
    for p in range(16):
        A(f"v_cvt_pk_bf16_f32 v{PK+p}, v{ACC+2*p}, v{ACC+2*p+1}")
    vL16x = 58
    A(f"v_xor_b32 v{vL16x}, 512, v{vL16p}")

    def dest(a):
        A(f"s_add_u32 s61, s{sU}, {a}")
        A("s_lshl_b32 s62, s61, 6")
        A(f"s_add_u32 s62, s62, s{sTile}")
        A("s_mul_i32 s63, s62, 1280")
        A(f"s_sub_u32 s62, s62, {32*64}")
        A("s_mul_i32 s62, s62, 2560")
        A(f"s_add_u32 s62, s62, {KV_OFF}")
        A("s_cmp_lt_u32 s61, 32")
        A(f"s_cselect_b32 s{sD}, s63, s62")
    dest(0)
    A(f"buffer_store_dwordx4 {v(PK,4)}, v{vL16p}, {W}, s{sD} offen{SC1}")
    A("s_mov_b32 exec_hi, 0")
    A(f"buffer_store_dwordx2 {v(PK+4,2)}, v{vT8p}, {W}, s{sD} offen offset:1024{SC1}")
    A("s_mov_b32 exec_hi, -1")
    A(f"s_mov_b32 s{sCls}, 2")
    A(f"s_cmp_ge_u32 s{sU}, 63")
    A("s_cbranch_scc1 L_qkv_done")
    A(f"s_mov_b32 s{sCls}, 0")
    dest(1)
    A("s_mov_b32 exec_hi, 0")
    A(f"buffer_store_dwordx4 {v(PK+6,4)}, v{vL16x}, {W}, s{sD} offen{SC1}")
    A("s_mov_b32 exec_lo, 0\ns_mov_b32 exec_hi, -1")
    A(f"buffer_store_dwordx4 {v(PK+4,4)}, v{vL16x}, {W}, s{sD} offen{SC1}")
    A(f"buffer_store_dwordx2 {v(PK+8,2)}, v{vT8p}, {W}, s{sD} offen offset:1024{SC1}")
    A("s_mov_b32 exec_lo, -1")
    dest(2)
    A(f"buffer_store_dwordx4 {v(PK+10,4)}, v{vL16p}, {W}, s{sD} offen{SC1}")
    A("s_mov_b32 exec_hi, 0")
    A(f"buffer_store_dwordx2 {v(PK+14,2)}, v{vT8p}, {W}, s{sD} offen offset:1024{SC1}")
    A("s_mov_b32 exec_hi, -1")
    A("s_branch L_qkv_done")

    A.label("L_vtype")
    gemm_loop("L_v", qkv_reads, lambda x, w: qkv_mfmas(x, w, True), [vWaQ, vWaQ + 1, vWaG], lambda: None, qkv_waits, lambda: None, qkv_dmas)
    stamp(A, 2)
    A("s_waitcnt lgkmcnt(0)")
    A("s_nop 7\ns_nop 7")
    A(f"s_mov_b32 s{sCls}, 1")
    A(f"s_lshl_b32 s{sTile}, s{sTB}, 2")
    A(f"s_add_u32 s{sTile}, s{sTile}, s{sTT}")
    A(f"s_mul_i32 s{sD}, s{sTile}, 2560")
    A(f"s_add_u32 s{sD}, s{sD}, {KV_OFF + 1280}")
    A(f"s_sub_u32 s61, s{sCG}, 11")
    A("s_lshl_b32 s61, s61, 7")
    A(f"s_lshl_b32 s62, s{sWC}, 6")
    A("s_add_u32 s61, s61, s62")
    A("v_and_b32 v56, 31, v1")
    A("v_lshrrev_b32 v57, 5, v1")
    A("v_mul_u32_u24 v57, 320, v57")
    for t in range(2):
        A("v_add_u32 v58, s61, v56")
        if t:
            A("v_add_u32 v58, 32, v58")
        magic_div(A, 59, 58, 20, 640, 62)
        A("v_mul_u32_u24 v60, 20, v59")
        A("v_sub_u32 v60, v58, v60")
        A("v_lshlrev_b32 v60, 4, v60")
        A("s_mov_b32 s62, 163840")
        A("v_mul_lo_u32 v59, v59, s62")
        A(f"v_add3_u32 v{2+t}, v59, v60, v57")
    for t in range(2):
        for hf in range(2):
            base = ACC + 16 * t + 8 * hf
            dst = 32 + 8 * t + 4 * hf
            for p in range(4):
                A(f"v_cvt_pk_bf16_f32 v{dst+p}, v{base+2*p}, v{base+2*p+1}")
            A(f"buffer_store_dwordx4 {v(dst,4)}, v{2+t}, {W}, s{sD} offen offset:{640*hf}{SC1}")
    A.label("L_qkv_done")
    gate_compute()
    A("v_mov_b32 v3, 0")
    A("s_mov_b32 exec_lo, 0")
    A("s_mov_b32 exec_hi, 0x80000000")
    A(f"buffer_store_dword v63, v3, {W}, s{sGoff} offen{SC1}")
    A("s_mov_b64 exec, -1")
    stamp(A, 3)

    sHead, sQT, sKVs, sM0kv = 48, 49, 51, 65
    A("s_mov_b32 s0, s48")
    A("s_mov_b32 s1, s49")
    A("v_mov_b32 v3, 0")
    A(f"buffer_load_dword v{vN}, v3, s[{SDB}:{SDB+3}], 0 offen sc1")
    A("s_and_b32 s61, s2, 7")
    A("s_lshr_b32 s62, s2, 3")
    A("s_lshl_b32 s61, s61, 2")
    A(f"s_lshr_b32 s{sHead}, s62, 3")
    A(f"s_add_u32 s{sHead}, s{sHead}, s61")
    A("s_and_b32 s62, s62, 7")
    A("s_lshl_b32 s62, s62, 3")
    A(f"s_lshl_b32 s61, s{sTT}, 1")
    A(f"s_add_u32 s{sQT}, s62, s61")
    A("s_mov_b32 s38, s40")
    A("s_mov_b32 s39, s41")
    srd(A, SK, P_WS, KV_SZ, add=KV_OFF)
    A("s_sub_i32 s61, s3, 2")
    A("s_max_i32 s61, s61, 0")
    A("s_min_i32 s61, s61, 4")
    A("s_lshl_b32 s62, s61, 10")
    A(f"s_add_u32 s{sM0kv}, s62, {KVB}")
    A(f"s_mul_i32 s{sKVs}, s{sHead}, 163840")

    def kv_dma(tile):
        A(f"s_add_u32 m0, s{sM0kv}, {((tile+4)%8)*KVSLOT}")
        A("s_nop 0")
        A(f"buffer_load_dwordx4 v{vKVo}, s[{SK}:{SK+3}], s{sKVs} offen{SC1} lds")
        A(f"s_add_u32 s{sKVs}, s{sKVs}, 2560")

    def p2_prologue():
        for a in range(2):
            A(f"s_lshl_b32 s61, s{sHead}, 6")
            A(f"s_add_u32 s61, s61, s{sQT}")
            A(f"s_add_u32 s61, s61, {a}")
            A("s_mul_i32 s61, s61, 1280")
            A(f"buffer_load_dwordx4 {v(Q0[a],4)}, v{vL16p}, {W}, s61 offen{SC1}")
            A(f"buffer_load_dwordx2 {v(Q1[a],2)}, v{vT8p}, {W}, s61 offen offset:1024{SC1}")
        A(f"s_add_u32 s61, s{sQT}, s{sWC}")
        A("s_lshl_b32 s61, s61, 7")
        A(f"s_add_u32 s61, s61, {G_OFF}")
        A(f"buffer_load_dword v{vGt}, v{vGt}, {W}, s61 offen{SC1}")
        for t in range(4):
            kv_dma(t)

    def nonce_get():
        lk = A.newlabel("L_nk")
        A(f"v_readfirstlane_b32 s{sNonce}, v{vN}")
        A("s_nop 3")
        A(f"s_cmp_lg_u32 s{sNonce}, 0")
        A(f"s_cbranch_scc1 {lk}")

        def issue():
            A(f"buffer_load_dword v{vN}, v3, s[{SDB}:{SDB+3}], 0 offen sc1")

        def check():
            A(f"v_readfirstlane_b32 s{sNonce}, v{vN}")
            A("s_nop 3")
            A(f"s_cmp_lg_u32 s{sNonce}, 0")
        spin(A, "n", issue, check)
        A.label(lk)

    def f1_issue():
        A(f"s_mov_b32 s62, {F1_OFF}")
        A(f"buffer_load_dwordx4 v[56:59], v{vL16p}, {W}, s62 offen sc1")

    def f1_check():
        A(f"v_cmp_ne_u32 vcc, s{sNonce}, v56")
        A(f"v_cmp_ne_u32 s[62:63], s{sNonce}, v57")
        A("s_or_b64 vcc, vcc, s[62:63]")
        A(f"v_cmp_ne_u32 s[62:63], s{sNonce}, v58")
        A("s_or_b64 vcc, vcc, s[62:63]")
        A(f"v_cmp_ne_u32 s[62:63], s{sNonce}, v59")
        A("s_or_b64 vcc, vcc, s[62:63]")
        A("s_cmp_eq_u64 vcc, 0")

    def gu_pre():
        pass

    def gu_waits():
        lE = A.newlabel("L_gwE")

        def body(lb):
            lA, lc1, lc2, l9 = [A.newlabel("L_gw") for _ in range(4)]
            A(f"s_cmp_lt_u32 s{sStage}, 2")
            A(f"s_cbranch_scc1 {lA}")
            A(f"s_cmp_eq_u32 s{sStage}, 9")
            A(f"s_cbranch_scc1 {lE}")
            A("s_waitcnt vmcnt(0)")
            A("s_cmp_eq_u32 s3, 0")
            A(f"s_cbranch_scc0 {lE}")
            poll_pre(A, "f1", f1_issue, f1_check)
            A(f"s_branch {lE}")
            A.label(lA)
            A(f"s_cmp_eq_u32 s{sCls}, 1")
            A(f"s_cbranch_scc1 {lc1}")
            A(f"s_cmp_eq_u32 s{sCls}, 2")
            A(f"s_cbranch_scc1 {lc2}")
            A("s_waitcnt vmcnt(14)")
            A(f"s_branch {lE}")
            A.label(lc1)
            A("s_waitcnt vmcnt(11)")
            A(f"s_branch {lE}")
            A.label(lc2)
            A("s_waitcnt vmcnt(9)")
            A(f"s_branch {lE}")
        A.rare([f"s_sub_u32 s61, s{sStage}, 2", "s_cmp_ge_u32 s61, 6"], body)
        A("s_waitcnt vmcnt(5)")
        A.label(lE)
        A("s_waitcnt lgkmcnt(0)")

    def gu_dmas():
        lE = A.newlabel("L_gdE")

        def body(lb):
            l7, l8 = A.newlabel("L_g7"), A.newlabel("L_g8")
            A(f"s_cmp_eq_u32 s{sStage}, 8")
            A(f"s_cbranch_scc1 {l8}")
            A(f"s_cmp_eq_u32 s{sStage}, 7")
            A(f"s_cbranch_scc0 {lE}")
            A("s_cmp_eq_u32 s3, 0")
            A(f"s_cbranch_scc0 {lE}")
            f1_issue()
            A(f"s_branch {lE}")
            A.label(l8)
            p2_prologue()
            A(f"s_branch {lE}")
        A.rare([f"s_cmp_ge_u32 s{sStage}, 7"], body)
        gu_dma()
        A.label(lE)

    def gu_post():
        def body(lb):
            A("s_cmp_eq_u32 s3, 0")
            A(f"s_cbranch_scc0 {lb}")
            A("v_mov_b32 v3, 0")
            nonce_get()
            A(f"s_lshl_b32 s61, s{sTB}, 4")
            A(f"s_add_u32 s61, s61, s{sCG}")
            A("s_lshl_b32 s61, s61, 2")
            A(f"s_add_u32 s61, s61, {F1_OFF}")
            A(f"v_mov_b32 v2, s{sNonce}")
            A("s_mov_b64 exec, 1")
            A(f"buffer_store_dword v2, v3, {W}, s61 offen sc1")
            A("s_mov_b64 exec, -1")
        A.rare([f"s_cmp_eq_u32 s{sStage}, 2"], body)

    for r in range(ACC, ACC + 48):
        A(f"v_mov_b32 v{r}, 0")
    gemm_loop("L_gu", gu_reads, gu_mfmas, [vWaG], gu_pre, gu_waits, gu_post, gu_dmas)
    stamp(A, 4)
    A("s_waitcnt lgkmcnt(0)")
    A("s_nop 7")
    A("s_nop 7")
    ca = -2.0 * LOG2E * (2.0 / 3.141592653589793) ** 0.5
    cb = ca * 0.044715
    A(f"s_mov_b32 s61, {hx(f2u(ca))}")
    A(f"s_mov_b32 s62, {hx(f2u(cb))}")
    A(f"s_lshl_b32 s{sTile}, s{sTB}, 2")
    A(f"s_add_u32 s{sTile}, s{sTile}, s{sTT}")
    A(f"s_mul_i32 s{sD}, s{sTile}, 96")
    A(f"s_mul_i32 s63, s{sCG}, 6")
    A(f"s_add_u32 s{sD}, s{sD}, s63")
    A(f"s_mul_i32 s63, s{sWC}, 3")
    A(f"s_add_u32 s{sD}, s{sD}, s63")
    A(f"s_lshl_b32 s{sD}, s{sD}, 10")
    A(f"s_add_u32 s{sD}, s{sD}, {H_OFF}")
    A("v_mov_b32 v61, s61")
    for t in range(3):
        g0 = ACC + 16 * t
        u0 = g0 + 8
        T = 32
        for j in range(8):
            A(f"v_mul_f32 v{T+j}, v{g0+j}, v{g0+j}")
        for j in range(8):
            A(f"v_fma_f32 v{T+j}, v{T+j}, s62, v61")
        for j in range(8):
            A(f"v_mul_f32 v{T+j}, v{T+j}, v{g0+j}")
        for j in range(8):
            A(f"v_exp_f32 v{T+j}, v{T+j}")
        for j in range(8):
            A(f"v_mul_f32 v{u0+j}, v{g0+j}, v{u0+j}")
        for j in range(8):
            A(f"v_add_f32 v{T+j}, 1.0, v{T+j}")
        for j in range(8):
            A(f"v_rcp_f32 v{T+j}, v{T+j}")
        A("s_nop 0")
        for j in range(8):
            A(f"v_mul_f32 v{u0+j}, v{u0+j}, v{T+j}")
        dst = 40 + 4 * t if t < 2 else 56
        for p in range(4):
            A(f"v_cvt_pk_bf16_f32 v{dst+p}, v{u0+2*p}, v{u0+2*p+1}")
        A(f"buffer_store_dwordx4 {v(dst,4)}, v{vL16p}, {W}, s{sD} offen offset:{1024*t}{SC1}")
    stamp(A, 5)

    sTB64, sCB, sT16, sPar, sTile3 = 44, 45, sTT, sWC, 32
    sKH = sWC
    A("v_mov_b32 v3, 0")
    nonce_get()
    A("s_and_b32 s61, s2, 7")
    A("s_lshr_b32 s62, s2, 3")
    A(f"s_lshr_b32 s{sTB64}, s61, 1")
    A(f"s_lshl_b32 s{sTB64}, s{sTB64}, 3")
    A("s_and_b32 s63, s62, 7")
    A(f"s_add_u32 s{sTB64}, s{sTB64}, s63")
    A(f"s_and_b32 s{sCB}, s61, 1")
    A(f"s_lshl_b32 s{sCB}, s{sCB}, 2")
    A("s_lshr_b32 s63, s62, 3")
    A(f"s_add_u32 s{sCB}, s{sCB}, s63")
    A(f"s_lshl_b32 s{sTile3}, s{sTB64}, 1")
    A(f"s_lshr_b32 s61, s{sT16}, 1")
    A(f"s_add_u32 s{sTile3}, s{sTile3}, s61")
    srd(A, SWD, 0, 1536 * 1280)
    srd(A, SWO, 38, 640 * 1280)
    srd(A, SOUT, P_OUT, 2048 * 1280)
    for k in range(4):
        A(f"s_mov_b32 s{SPA+k}, s{SWD+k}")
    A("s_cmp_lt_u32 s3, 2")
    for k in range(4):
        A(f"s_cselect_b32 s{SPB+k}, s{SWD+k}, s{SK+k}")
    sIsW = 38
    A(f"s_cselect_b32 s{sIsW}, 1, 0")
    A(f"s_lshl_b32 s61, s{sTile3}, 7")
    A(f"s_add_u32 s61, s61, {G_OFF}")
    A(f"buffer_load_dword v{vG2}, v{vG2}, {W}, s61 offen{SC1}")
    kv_dma(4)
    sM0A, sM0B, sWsA, sWsB, sStepA, sStepB = 33, 66, 67, 69, 74, 70
    sActS, sActStep, sColb, sParA = 71, 39, 72, 73
    sP, sG, sGp, sKd, sRrg, sHH = 64, 46, 47, 36, 37, 34
    sOffB = [52, 53, 54, 55]
    sVm = 30
    sVm = 0
    A(f"s_mul_i32 s{sColb}, s{sCB}, 160")
    A("s_cmp_ge_u32 s3, 5")
    A(f"s_cselect_b32 s{sParA}, 1, 0")
    A(f"s_mul_i32 s61, s{sParA}, 5")
    A("s_sub_u32 s61, s3, s61")
    A(f"s_mul_i32 s{sM0A}, s{sParA}, 5120")
    A("s_lshl_b32 s61, s61, 10")
    A(f"s_add_u32 s{sM0A}, s{sM0A}, s61")
    A("s_add_u32 s61, s3, 3")
    A("s_min_u32 s61, s61, 4")
    A("s_lshl_b32 s61, s61, 10")
    A("s_add_u32 s61, s61, 5120")
    A("s_cmp_lt_u32 s3, 2")
    A(f"s_cselect_b32 s{sM0B}, s61, s{sM0kv}")
    A(f"s_mul_i32 s{sWsA}, s{sParA}, {32*1280}")
    A(f"s_add_u32 s{sWsA}, s{sWsA}, s{sColb}")
    A(f"s_add_u32 s61, s{sColb}, {32*1280}")
    A("s_cmp_lt_u32 s3, 2")
    A(f"s_cselect_b32 s{sWsB}, s61, s{sKVs}")
    A(f"s_mov_b32 s61, {64*1280}")
    A(f"s_cselect_b32 s{sStepB}, s61, 2560")
    A(f"s_mov_b32 s{sStepA}, {64*1280}")
    A(f"s_mul_i32 s{sActS}, s{sTile3}, {96*1024}")
    A(f"s_lshl_b32 s61, s{sPar}, 11")
    A(f"s_add_u32 s{sActS}, s{sActS}, s61")
    A(f"s_add_u32 s{sActS}, s{sActS}, {H_OFF}")
    A(f"s_mov_b32 s{sVm}, 0xfffff")
    A(f"s_mov_b32 s{sVm+1}, 0xfffff")
    A(f"s_mov_b32 s{sP}, 0")
    A(f"s_mov_b32 s{sG}, 0")
    A(f"s_mov_b32 s{sGp}, 0")
    A(f"s_mov_b32 s{sRrg}, 0")
    A(f"s_mov_b32 s{sHH}, 0")
    A(f"s_mov_b32 s{sKd}, {hx(-4*KVSLOT)}")
    for r in range(20):
        A(f"v_mov_b32 v{DACC+r}, 0")
    A(f"v_mov_b32 v{E+14}, 0")
    A(f"v_mov_b32 v{E+15}, 0")
    A("s_waitcnt vmcnt(5)")
    A("v_cmp_gt_u32 vcc, 32, v1")
    A("s_nop 1")
    for a in range(2):
        A(f"v_cndmask_b32 v{Q1[a]}, 0, v{Q1[a]}, vcc")
        A(f"v_cndmask_b32 v{Q1[a]+1}, 0, v{Q1[a]+1}, vcc")
    A("s_barrier")
    stamp(A, 6)

    def rdK0(o): return f"ds_read_b128 {v(K0,4)}, v{vK0} offset:{o}"
    def rdK1(o): return f"ds_read_b64 {v(K1,2)}, v{vK1} offset:{o}"
    def rdV(o):
        if "p2noexec" in DBG:
            return [f"ds_read_b128 {v(V0,4)}, v{vV} offset:{o}", f"ds_read_b128 {v(V1,4)}, v{vV} offset:{o+640}"]
        return [f"s_mov_b64 exec, s[{sVm}:{sVm+1}]",
                f"ds_read_b128 {v(V0,4)}, v{vV} offset:{o}",
                f"ds_read_b128 {v(V1,4)}, v{vV} offset:{o+640}",
                "s_mov_b64 exec, -1"]

    A(rdK0(0)); A(rdK1(0))
    A("s_waitcnt lgkmcnt(0)")
    A(mfma32(S[0], K0, Q0[0], "0"))
    A(mfma32(S[0], K1, Q1[0]))

    def set_offB(beta):
        A(f"s_mul_i32 s61, s{sHH}, {4*KVSLOT}")
        for u in range(4):
            if u < 3:
                A(f"s_add_u32 s62, s61, {(u+1)*KVSLOT}")
            else:
                A(f"s_sub_u32 s62, {4*KVSLOT}, s61")
            if not beta:
                A(f"s_add_u32 s63, s{sG}, {u*WPER}")
            elif u == 0:
                A(f"s_add_u32 s63, s{sGp}, {3*WPER}")
            else:
                A(f"s_add_u32 s63, s{sG}, {(u-1)*WPER}")
            A(f"s_cmp_lg_u32 s{sIsW}, 0")
            A(f"s_cselect_b32 s62, s63, s62")
            A(f"s_add_u32 s{sOffB[u]}, s62, s{sM0B}")

    def valu_groups(cur):
        vl = []
        for i in range(8):
            vl.append(f"v_exp_f32 v{E+2*i}, v{cur+2*i}")
            vl.append(f"v_exp_f32 v{E+2*i+1}, v{cur+2*i+1}")
            j = (i - 1) % 8
            vl.append(f"v_cvt_pk_bf16_f32 v{P+j}, v{E+2*j}, v{E+2*j+1}")
        return [vl[0:6], vl[6:12], vl[12:18], vl[18:24]]

    sM0Ag, sM0Agp = 68, 50

    def period(u, beta):
        A0 = A
        if "p2nobeta" in DBG:
            beta = False if True else beta
        def A_(x):
            if "p2novm" in DBG and (x.startswith("buffer_load") or x.startswith("s_add_u32 m0") or x.startswith("s_mov_b32 m0") or x.startswith(f"s_add_u32 s{sWsA},") or x.startswith(f"s_add_u32 s{sWsB},") or x.startswith(f"s_add_u32 s{sActS},")):
                return
            A0(x)
        return period_(u, beta, A_)

    def period_(u, beta, A):
        kofs = (u + 1) * KVSLOT if u < 3 else 0
        g = valu_groups(S[0])
        tr = []
        if beta:
            for c in range(5):
                tr.append(f"ds_read_b64_tr_b16 {v(WF+4*c,2)}, v{vWr} offset:{u*WPER+32*c}")
                tr.append(f"ds_read_b64_tr_b16 {v(WF+4*c+2,2)}, v{vWr} offset:{u*WPER+32*c+8*160}")
        A(mfma32(S[1], K0, Q0[1], "0"))
        A(rdK0(kofs))
        if beta:
            A(f"buffer_load_dwordx4 {v(ACT+4*((u+3)%4),4)}, v{vAct}, {W}, s{sActS} offen{SC1}")
        for x in g[0][:3]: A(x)
        if beta:
            A(f"s_add_u32 s{sActS}, s{sActS}, 4096")
        for x in tr[:3]: A(x)
        for x in g[0][3:]: A(x)
        A(mfma32(O[1], V1, P + 4))
        for x in rdV(u * KVSLOT): A(x)
        for x in g[1][:3]: A(x)
        for x in tr[3:6]: A(x)
        for x in g[1][3:]: A(x)
        A(mfma32(S[1], K1, Q1[1]))
        A(rdK1(kofs))
        for x in g[2][:3]: A(x)
        for x in tr[6:10]: A(x)
        for x in g[2][3:]: A(x)
        A(f"s_waitcnt lgkmcnt({2 + (7 if beta else 0)})")
        A(mfma32(O[0], V0, P))
        if not beta:
            A(f"s_add_u32 m0, s{sM0Ag}, {u*WPER}")
        elif u == 0:
            A(f"s_add_u32 m0, s{sM0Agp}, {3*WPER}")
        else:
            A(f"s_add_u32 m0, s{sM0Ag}, {(u-1)*WPER}")
        for x in g[3][:3]: A(x)
        A(f"buffer_load_dwordx4 v{vWA}, s[{SPA}:{SPA+3}], s{sWsA} offen lds")
        for x in g[3][3:]: A(x)
        A(f"s_add_u32 s{sWsA}, s{sWsA}, s{sStepA}")
        g = valu_groups(S[1])
        m16 = [mfma16(DACC + 4 * c, WF + 4 * c, ACT + 4 * u) for c in range(5)] if beta else []
        A("s_waitcnt lgkmcnt(0)")
        A(mfma32(S[0], K0, Q0[0], "0"))
        for x in g[0][:3]: A(x)
        if beta: A(m16[0])
        for x in g[0][3:]: A(x)
        A(mfma32(O[0], V1, P + 4))
        for x in g[1][:3]: A(x)
        if beta: A(m16[1])
        for x in g[1][3:]: A(x)
        A(mfma32(S[0], K1, Q1[0]))
        for x in g[2][:3]: A(x)
        if beta: A(m16[2])
        for x in g[2][3:]: A(x)
        A(mfma32(O[1], V0, P))
        A(f"s_mov_b32 m0, s{sOffB[u]}")
        for x in g[3][:2]: A(x)
        if beta: A(m16[3])
        for x in g[3][2:3]: A(x)
        A(f"buffer_load_dwordx4 v{vPB}, s[{SPB}:{SPB+3}], s{sWsB} offen{SC1} lds")
        for x in g[3][3:]: A(x)
        A(f"s_add_u32 s{sWsB}, s{sWsB}, s{sStepB}")
        if beta: A(m16[4])
        if u == 2:
            A(f"v_add_u32 v{vK0}, s{sKd}, v{vK0}")
            A(f"v_add_u32 v{vK1}, s{sKd}, v{vK1}")

    def cond(val, body, wave0=False):
        def b(lb):
            if wave0:
                A("s_cmp_eq_u32 s3, 0")
                A(f"s_cbranch_scc0 {lb}")
            body()
        A.rare([f"s_cmp_eq_u32 s{sP}, {val}"], b)

    def f2_issue():
        A(f"s_lshr_b32 s62, s{sTB64}, 1")
        A("s_lshl_b32 s62, s62, 6")
        A(f"s_add_u32 s62, s62, {F2_OFF}")
        A("v_and_b32 v56, 15, v1")
        A("v_lshlrev_b32 v56, 2, v56")
        A(f"buffer_load_dword v57, v56, {W}, s62 offen sc1")

    def f2_check():
        A(f"v_cmp_ne_u32 vcc, s{sNonce}, v57")
        A("s_nop 0")
        A("s_cmp_eq_u64 vcc, 0")

    def poll_f2():
        poll_pre(A, "f2", f2_issue, f2_check)

    def first_acts():
        for i in range(3):
            A(f"buffer_load_dwordx4 {v(ACT+4*i,4)}, v{vAct}, {W}, s{sActS} offen{SC1}")
            A(f"s_add_u32 s{sActS}, s{sActS}, 4096")

    def signal_f2():
        A(f"s_lshl_b32 s61, s{sTB}, 4")
        A(f"s_add_u32 s61, s61, s{sCG}")
        A("s_lshl_b32 s61, s61, 2")
        A(f"s_add_u32 s61, s61, {F2_OFF}")
        A(f"v_mov_b32 v2, s{sNonce}")
        A("v_mov_b32 v3, 0")
        A("s_mov_b64 exec, 1")
        A(f"buffer_store_dword v2, v3, {W}, s61 offen sc1")
        A("s_mov_b64 exec, -1")

    def switch_kind():
        A(f"v_mov_b32 v{vWA}, v{vWAm}")
        for k in range(4):
            A(f"s_mov_b32 s{SPA+k}, s{SWO+k}")
        A(f"s_mul_i32 s{sWsA}, s{sParA}, {40*1280}")
        A(f"s_add_u32 s{sWsA}, s{sWsA}, s{sColb}")
        A(f"s_mov_b32 s{sStepA}, {80*1280}")
        l2 = A.newlabel("L_sw2")
        A(f"s_cmp_eq_u32 s{sIsW}, 0")
        A(f"s_cbranch_scc1 {l2}")
        A(f"v_mov_b32 v{vPB}, v{vWBm}")
        for k in range(4):
            A(f"s_mov_b32 s{SPB+k}, s{SWO+k}")
        A(f"s_add_u32 s{sWsB}, s{sColb}, {40*1280}")
        A(f"s_mov_b32 s{sStepB}, {80*1280}")
        A.label(l2)

    def iteration(lbl, beta):
        A.label(lbl)
        set_offB(beta)
        A(f"s_add_u32 s{sM0Ag}, s{sM0A}, s{sG}")
        A(f"s_add_u32 s{sM0Agp}, s{sM0A}, s{sGp}")
        if beta:
            def redirect():
                l = A.newlabel("L_rd")
                A(f"s_cmp_lg_u32 s{sIsW}, 0")
                A(f"s_cbranch_scc1 {l}")
                for u in range(4):
                    A(f"s_add_u32 s{sOffB[u]}, s{sM0B}, {7*KVSLOT}")
                A.label(l)
            cond(28, redirect)
        for u in range(4):
            if beta and u == 1:
                cond(24, switch_kind)
            period(u, beta)
            if "p2novm" not in DBG:
                A(f"s_waitcnt vmcnt({7 if beta else 6})")
            if not beta and u == 0:
                cond(PB - 4, poll_f2, wave0=True)
            if "p2nobar" not in DBG:
                A("s_barrier")
            if not beta:
                if u == 0:
                    cond(PB - 4, first_acts)
                if u == 1:
                    cond(PB - 8, f2_issue, wave0=True)
                if u == 2:
                    cond(0, signal_f2, wave0=True)
            else:
                if u == 0:
                    def disable():
                        A(f"v_mov_b32 v{vAct}, 0x80000000")
                    cond(PB + NB - 4, disable)
        A(f"s_add_u32 s{sP}, s{sP}, 4")
        A(f"s_mov_b32 s{sGp}, s{sG}")
        A(f"s_add_u32 s{sG}, s{sG}, {4*WPER}")
        A(f"s_cmp_eq_u32 s{sG}, {12*WPER}")
        A(f"s_cselect_b32 s{sG}, 0, s{sG}")
        A(f"v_add_u32 v{vV}, s{sKd}, v{vV}")
        A(f"s_sub_u32 s{sKd}, 0, s{sKd}")
        A(f"s_xor_b32 s{sHH}, s{sHH}, 1")
        if beta:
            A(f"s_add_u32 s{sRrg}, s{sRrg}, {4*WPER}")
            A(f"s_cmp_eq_u32 s{sRrg}, {12*WPER}")
            A(f"s_cselect_b32 s61, {12*WPER}, 0")
            A(f"s_sub_u32 s{sRrg}, s{sRrg}, s61")
            A(f"s_sub_u32 s61, {4*WPER}, s61")
            A(f"v_add_u32 v{vWr}, s61, v{vWr}")

    A("s_nop 7\ns_nop 7")
    iteration("L_alpha", False)
    A(f"s_cmp_lt_u32 s{sP}, {PB}")
    A("s_cbranch_scc1 L_alpha")
    A(f"s_sub_u32 s{sWsA}, s{sWsA}, s{sStepA}")
    A(f"s_mul_i32 s61, s{sStepB}, s{sIsW}")
    A(f"s_sub_u32 s{sWsB}, s{sWsB}, s61")
    iteration("L_beta", True)
    A(f"s_cmp_lt_u32 s{sP}, 32")
    A("s_cbranch_scc1 L_beta")
    stamp(A, 7)
    A(f"v_cvt_pk_bf16_f32 v{P+7}, v{E+14}, v{E+15}")
    A(f"s_add_u32 m0, s{sM0A}, {7*WPER}")
    A(f"s_mul_i32 s61, s{sTile3}, {96*1024}")
    A(f"buffer_load_dwordx4 v{vWA}, s[{SPA}:{SPA+3}], s{sWsA} offen lds")
    l = A.newlabel("L_w31")
    A(f"s_cmp_eq_u32 s{sIsW}, 0")
    A(f"s_cbranch_scc1 {l}")
    A(f"s_add_u32 m0, s{sM0B}, {7*WPER}")
    A("s_nop 0")
    A(f"buffer_load_dwordx4 v{vPB}, s[{SPB}:{SPB+3}], s{sWsB} offen lds")
    A.label(l)
    A(f"s_lshl_b32 s62, s{sPar}, 11")
    A("s_add_u32 s61, s61, s62")
    A(f"s_add_u32 s61, s61, {H_OFF + NB*4096}")
    A(mfma32(O[1], V1, P + 4))
    for i in range(24 - NB):
        A(f"buffer_load_dwordx4 {v(ACT+4*i,4)}, v{vActReal}, {W}, s61 offen{SC1}")
        A("s_add_u32 s61, s61, 4096")
    A("s_nop 7\ns_nop 7")
    A("s_mul_i32 s61, s3, 3072")
    A(f"s_add_u32 s61, s61, {XCH}")
    A(f"v_add_u32 v2, s61, v{vL16p}")
    A(f"s_cmp_eq_u32 s{sKH}, 0")
    A("s_cbranch_scc1 L_x0")
    for i in range(3):
        A(f"ds_write_b128 v2, {v(O[0]+4*i,4)} offset:{1024*i}")
    A("s_waitcnt lgkmcnt(0)")
    for r in range(12):
        A(f"v_mov_b32 v{O[0]+r}, v{O[1]+r}")
    A("s_branch L_x1")
    A.label("L_x0")
    for i in range(3):
        A(f"ds_write_b128 v2, {v(O[1]+4*i,4)} offset:{1024*i}")
    A("s_waitcnt lgkmcnt(0)")
    A.label("L_x1")
    A("s_barrier")
    A("s_xor_b32 s61, s3, 4")
    A("s_mul_i32 s61, s61, 3072")
    A(f"s_add_u32 s61, s61, {XCH}")
    A(f"v_add_u32 v2, s61, v{vL16p}")
    for i in range(3):
        A(f"ds_read_b128 {v(64+4*i,4)}, v2 offset:{1024*i}")
    A("s_waitcnt lgkmcnt(0)")
    OO = O[0]
    for r in range(12):
        A(f"v_add_f32 v{OO+r}, v{OO+r}, v{64+r}")
    A(f"v_mov_b32 v80, v{OO+8}")
    A(f"v_mov_b32 v81, v{OO+8}")
    A("s_nop 1")
    A("v_permlane32_swap_b32 v80, v81")
    A("s_nop 1")
    A("v_rcp_f32 v81, v81")
    A("s_nop 0")
    A(f"v_mul_f32 v81, v81, v{vGt}")
    for r in range(12):
        A(f"v_mul_f32 v{OO+r}, v81, v{OO+r}")
    for p in range(6):
        A(f"v_cvt_pk_bf16_f32 v{84+p}, v{OO+2*p}, v{OO+2*p+1}")
    A("v_mov_b32 v90, 0\nv_mov_b32 v91, 0")
    sTq = 61
    A(f"s_add_u32 s{sTq}, s{sQT}, s{sKH}")
    A(f"s_mul_i32 s62, s{sTq}, 48")
    A(f"s_add_u32 s63, s62, s{sHead}")
    A("s_lshl_b32 s63, s63, 10")
    A(f"s_add_u32 s63, s63, {O_OFF}")
    A(f"buffer_store_dwordx4 {v(84,4)}, v{vL16p}, {W}, s63 offen{SC1}")
    A(f"s_lshr_b32 s63, s{sHead}, 1")
    A("s_add_u32 s63, s63, 32")
    A("s_add_u32 s63, s63, s62")
    A("s_lshl_b32 s63, s63, 10")
    A(f"s_and_b32 s62, s{sHead}, 1")
    A("s_lshl_b32 s62, s62, 9")
    A("s_add_u32 s63, s63, s62")
    A(f"s_add_u32 s63, s63, {O_OFF}")
    A("s_mov_b32 exec_hi, 0")
    A(f"buffer_store_dwordx4 {v(88,4)}, v{vL16p}, {W}, s63 offen{SC1}")
    A("s_mov_b32 exec_hi, -1")
    sF3 = 35
    A(f"s_lshl_b32 s{sF3}, s{sTq}, 5")
    A(f"s_add_u32 s{sF3}, s{sF3}, s{sHead}")
    A(f"s_lshl_b32 s{sF3}, s{sF3}, 2")
    A(f"s_add_u32 s{sF3}, s{sF3}, {F3_OFF}")
    stamp(A, 8)

    def consume(qs, actreg):
        n = len(qs)

        def rd(i):
            base = WF2[i % 2]
            o = (qs[i] % 12) * WPER
            out = []
            for c in range(5):
                for hf in range(2):
                    oo = o + 32 * c + 1280 * hf
                    a, oo = (vW0, oo) if oo < 65536 else (vW1, oo - 61440)
                    out.append(f"ds_read_b64_tr_b16 {v(base+4*c+2*hf,2)}, v{a} offset:{oo}")
            return out
        for x in rd(0): A(x)
        for i in range(n):
            if i + 1 < n:
                for x in rd(i + 1): A(x)
                A("s_waitcnt lgkmcnt(10)")
            else:
                A("s_waitcnt lgkmcnt(0)")
            vm = actreg(i)
            if vm[1] is not None:
                A(f"s_waitcnt vmcnt({vm[1]})")
            for c in range(5):
                A(mfma16(DACC + 4 * c, WF2[i % 2] + 4 * c, vm[0]))

    consume(list(range(NB, 24)), lambda i: (ACT + 4 * i, 2 + (24 - NB - 1 - i)))
    A(f"v_mov_b32 v2, s{sNonce}")
    A("v_mov_b32 v3, 0")
    A("s_waitcnt vmcnt(0)")
    A("s_mov_b64 exec, 1")
    A(f"buffer_store_dword v2, v3, {W}, s{sF3} offen sc1")
    A("s_mov_b64 exec, -1")
    A(f"v_sub_f32 v56, 1.0, v{vG2}")
    A("s_nop 3")
    for r in range(20):
        A(f"v_mul_f32 v{DACC+r}, v56, v{DACC+r}")
    A("s_barrier")
    for i in range(4):
        q = 32 + i
        A(f"s_mul_i32 s61, s{sParA}, {80*1280}")
        A(f"s_add_u32 s61, s61, {i*160*1280}")
        A(f"s_add_u32 s61, s61, s{sColb}")
        A(f"s_add_u32 m0, s{sM0A}, {(q%12)*WPER}")
        A("s_nop 0")
        A(f"buffer_load_dwordx4 v{vWAr}, s[{SWO}:{SWO+3}], s61 offen lds")
    l = A.newlabel("L_rb")
    A(f"s_cmp_eq_u32 s{sIsW}, 0")
    A(f"s_cbranch_scc1 {l}")
    for i in range(4):
        q = 32 + i
        A(f"s_add_u32 s61, s{sColb}, {(80 + i*160)*1280}")
        A(f"s_add_u32 m0, s{sM0B}, {(q%12)*WPER}")
        A("s_nop 0")
        A(f"buffer_load_dwordx4 v{vWBr}, s[{SWO}:{SWO+3}], s61 offen lds")
    A.label(l)
    l = A.newlabel("L_f3")
    A("s_cmp_eq_u32 s3, 0")
    A(f"s_cbranch_scc0 {l}")
    A("v_lshlrev_b32 v2, 2, v1")

    def issue():
        A(f"buffer_load_dword v3, v2, {W}, s62 offen sc1")

    def check():
        A(f"v_cmp_ne_u32 vcc, s{sNonce}, v3")
        A("s_nop 0")
        A("s_cmp_eq_u64 vcc, 0")
    A(f"s_lshl_b32 s62, s{sTB64}, 8")
    A(f"s_add_u32 s62, s62, {F3_OFF}")
    spin(A, "f3", issue, check)
    A.label(l)
    A("s_barrier")
    stamp(A, 9)
    A(f"s_mul_i32 s61, s{sTile3}, {48*1024}")
    A(f"s_lshl_b32 s62, s{sPar}, 11")
    A("s_add_u32 s61, s61, s62")
    A(f"s_add_u32 s61, s61, {O_OFF}")
    for i in range(12):
        A(f"buffer_load_dwordx4 {v(ACTX+4*i,4)}, v{vActReal}, {W}, s61 offen{SC1}")
        A("s_add_u32 s61, s61, 4096")
    consume(list(range(24, 32)), lambda i: (ACTX + 4 * i, 11 - i))
    A("s_waitcnt vmcnt(0)")
    A("s_barrier")
    consume(list(range(32, 36)), lambda i: (ACTX + 4 * (8 + i), None))
    stamp(A, 10)
    A("s_nop 7")
    A(f"s_mul_i32 s61, s{sT16}, 5120")
    A(f"s_add_u32 s61, s61, {XCH}")
    A(f"v_add_u32 v56, s61, v{vL16p}")
    A(f"s_cmp_eq_u32 s{sPar}, 0")
    A("s_cbranch_scc1 L_red")
    for t in range(5):
        A(f"ds_write_b128 v56, {v(DACC+4*t,4)} offset:{1024*t}")
    A("s_waitcnt lgkmcnt(0)")
    A("s_barrier")
    prof_end(A)
    A("s_endpgm")
    A.label("L_red")
    A("s_barrier")
    for t in range(5):
        A(f"ds_read_b128 {v(32+4*t,4)}, v56 offset:{1024*t}")
    A("s_waitcnt lgkmcnt(0)")
    for r in range(20):
        A(f"v_add_f32 v{DACC+r}, v{DACC+r}, v{32+r}")
    A("v_and_b32 v57, 15, v1")
    A("v_mul_u32_u24 v57, 1280, v57")
    A("v_lshrrev_b32 v2, 4, v1")
    A("v_lshl_add_u32 v57, v2, 3, v57")
    A(f"s_lshl_b32 s61, s{sTB64}, 6")
    A(f"s_lshl_b32 s62, s{sT16}, 4")
    A("s_add_u32 s61, s61, s62")
    A("s_mul_i32 s61, s61, 1280")
    A(f"s_add_u32 s61, s61, s{sColb}")
    for t in range(5):
        A(f"v_cvt_pk_bf16_f32 v{64+2*t}, v{DACC+4*t}, v{DACC+4*t+1}")
        A(f"v_cvt_pk_bf16_f32 v{64+2*t+1}, v{DACC+4*t+2}, v{DACC+4*t+3}")
        A(f"buffer_store_dwordx2 {v(64+2*t,2)}, v57, s[{SOUT}:{SOUT+3}], s61 offen offset:{32*t}")
    prof_end(A)
    A("s_endpgm")
    return A.text()


HEADER = """; gated mix of MHA block and GEGLU FFN -- single persistent kernel, 256 workgroups x 512 threads
"""


def build():
    out = HEADER
    out += f"; @launch grid=(256,1,1) block=(512,1,1) lds={LDS_SZ}\n"
    out += '.amdgcn_target "amdgcn-amd-amdhsa--gfx950"\n.text\n'
    out += f".globl {KNAME}\n" + gen()
    out += kernel_desc(KNAME, 256)
    return out


if __name__ == "__main__":
    if "--prof" in sys.argv:
        PROF = True
        sys.argv.remove("--prof")
    dst = sys.argv[1] if len(sys.argv) > 1 else f"cdna_kernels/{NAME}.s"
    open(dst, "w").write(build())
    print("wrote", dst)
```

```python
class Asm:
    def __init__(self, prefix=""):
        self.lines = []
        self._lab = 0
        self.prefix = prefix

    def __call__(self, s=""):
        for ln in s.split("\n"):
            ln = ln.strip()
            if ln:
                if ln.endswith(":"):
                    self.lines.append(ln)
                else:
                    self.lines.append("    " + ln)

    def c(self, s):
        self.lines.append("    ; " + s)

    def label(self, name):
        self.lines.append(name + ":")

    def newlabel(self, base="L"):
        self._lab += 1
        return f"{base}_{self.prefix}{self._lab}"

    def defer(self, fn):
        if not hasattr(self, "_deferred"):
            self._deferred = []
        self._deferred.append(fn)

    def flush_deferred(self):
        while getattr(self, "_deferred", None):
            fn = self._deferred.pop(0)
            fn()

    def rare(self, cmp_lines, body, branch="s_cbranch_scc1"):
        ls, lb = self.newlabel("L_rare"), self.newlabel("L_back")
        for c in cmp_lines:
            self(c)
        self(f"{branch} {ls}")
        self.label(lb)

        def emit():
            self.label(ls)
            body(lb)
            self(f"s_branch {lb}")
        self.defer(emit)

    def text(self):
        self.flush_deferred()
        return "\n".join(self.lines) + "\n"


def v(a, n=1):
    return f"v{a}" if n == 1 else f"v[{a}:{a+n-1}]"


def s(a, n=1):
    return f"s{a}" if n == 1 else f"s[{a}:{a+n-1}]"


def mfma32(d, a, b, c=None):
    cs = v(d, 16) if c is None else (c if isinstance(c, str) else v(c, 16))
    return f"v_mfma_f32_32x32x16_bf16 {v(d,16)}, {v(a,4)}, {v(b,4)}, {cs}"


def mfma16(d, a, b, c=None):
    cs = v(d, 4) if c is None else (c if isinstance(c, str) else v(c, 4))
    return f"v_mfma_f32_16x16x32_bf16 {v(d,4)}, {v(a,4)}, {v(b,4)}, {cs}"


def srd(A, sd, sptr, nbytes, add=0):
    if add:
        A(f"s_add_u32 s{sd}, s{sptr}, {add}")
        A(f"s_addc_u32 s{sd+1}, s{sptr+1}, 0")
    else:
        A(f"s_mov_b32 s{sd}, s{sptr}")
        A(f"s_mov_b32 s{sd+1}, s{sptr+1}")
    A(f"s_and_b32 s{sd+1}, s{sd+1}, 0xffff")
    A(f"s_mov_b32 s{sd+2}, {nbytes}")
    A(f"s_mov_b32 s{sd+3}, 0x20000")


def kernel_desc(name, vgpr, sgpr=102, accum=None):
    if accum is None:
        accum = (vgpr + 3) // 4 * 4
    return f""".section .rodata,"a"
.p2align 6
.amdhsa_kernel {name}
  .amdhsa_next_free_vgpr {vgpr}
  .amdhsa_next_free_sgpr {sgpr}
  .amdhsa_accum_offset {accum}
  .amdhsa_group_segment_fixed_size 0
  .amdhsa_kernarg_size 88
  .amdhsa_user_sgpr_count 2
  .amdhsa_user_sgpr_kernarg_segment_ptr 1
  .amdhsa_system_sgpr_workgroup_id_x 1
  .amdhsa_float_denorm_mode_32 3
.end_amdhsa_kernel
"""


def magic_div(A, vd, vs, d, maxval, stmp):
    for sh in range(8, 32):
        m = -(-(1 << sh) // d)
        if m * maxval >= (1 << 32):
            continue
        if all(((x * m) >> sh) == x // d for x in range(maxval)):
            A(f"s_mov_b32 s{stmp}, {m}")
            A(f"v_mul_lo_u32 v{vd}, v{vs}, s{stmp}")
            A(f"v_lshrrev_b32 v{vd}, {sh}, v{vd}")
            return
    raise ValueError("no magic")


def smagic_div(A, sd, ss, d, maxval):
    for sh in range(8, 32):
        m = -(-(1 << sh) // d)
        if m * maxval >= (1 << 32):
            continue
        if all(((x * m) >> sh) == x // d for x in range(maxval)):
            A(f"s_mul_i32 s{sd}, s{ss}, {m}")
            A(f"s_lshr_b32 s{sd}, s{sd}, {sh}")
            return
    raise ValueError("no magic")


SCC_WRITERS = ("s_cmp", "s_add", "s_sub", "s_and", "s_or", "s_xor", "s_lshl", "s_lshr", "s_min", "s_max", "s_ashr", "s_bitcmp", "s_not", "s_andn2", "s_abs")
SCC_READERS = ("s_cselect", "s_addc", "s_subb", "s_cbranch_scc")


def capture(A, fn):
    n = len(A.lines)
    fn()
    out = A.lines[n:]
    del A.lines[n:]
    return [x.strip() for x in out]


def atomic_groups(lines):
    n = len(lines)
    glue = [False] * n
    last_scc = None
    m0_open = None
    exec_open = None
    for i, ln in enumerate(lines):
        op = ln.split()[0]
        assert not ln.endswith(":"), "labels not allowed in filler code: " + ln
        if op.startswith(SCC_READERS):
            assert last_scc is not None
            for j in range(last_scc + 1, i + 1):
                glue[j] = True
        if op.startswith(SCC_WRITERS) and not op.startswith("s_cselect"):
            last_scc = i
        if " m0," in ln or ln.endswith(" m0"):
            if m0_open is None and (op.startswith("s_add") or op.startswith("s_mov")) and ln.split()[1].startswith("m0"):
                m0_open = i
        if m0_open is not None and "lds" in ln.split():
            for j in range(m0_open + 1, i + 1):
                glue[j] = True
            m0_open = None
        if op.startswith("s_mov") and ln.split()[1].startswith("exec"):
            if exec_open is None and not ln.endswith("-1"):
                exec_open = i
            elif exec_open is not None and ln.replace(" ", "").endswith("exec,-1"):
                for j in range(exec_open + 1, i + 1):
                    glue[j] = True
                exec_open = None
    groups = []
    for i, ln in enumerate(lines):
        if glue[i] and groups:
            groups[-1].append(ln)
        else:
            groups.append([ln])
    return groups
```

```python
import sys, os, struct
from asmlib import *

NAME = "gated_mix__mha_block__glu_gated_geglu__prompt"
KNAME = NAME + "_kernel"

QF_OFF = 0
QF_SZ = 32 * 64 * 1280
KV_OFF = QF_OFF + QF_SZ
KV_SZ = 32 * 64 * 2560
H_OFF = KV_OFF + KV_SZ
H_SZ = 64 * 96 * 1024
O_OFF = H_OFF + H_SZ
O_SZ = 64 * 48 * 1024
G_OFF = O_OFF + O_SZ
G_SZ = 8192
F1_OFF = G_OFF + G_SZ
F2_OFF = F1_OFF + 1024
F3_OFF = F2_OFF + 1024
F_END = F3_OFF + 8192
PROF_OFF = F_END
PROF_SZ = 256 * 8 * 64
WS_USED = PROF_OFF + PROF_SZ
PROF = False
DBG = set(os.environ.get("DBG", "").split(","))
SC1 = " sc1"

LOG2E = 1.4426950408889634
QSCALE = LOG2E * (20 ** -0.5)
SPIN_MAX = 1 << 14


def f2u(x):
    return struct.unpack("<I", struct.pack("<f", x))[0]


def hx(x):
    return hex(x & 0xffffffff)


P_AX, P_WQKV, P_WO, P_BX, P_WG, P_WU, P_WD, P_GW = 36, 38, 40, 42, 44, 46, 48, 50
P_OUT, P_WS, P_DBG = 52, 54, 34
SX, SWQ, SWG, SWU, SW1, SWS, SDB = 4, 8, 12, 16, 20, 24, 28
SWD, SWO, SOUT, SPA, SPB = 4, 8, 12, 16, 20
SK = 40
sTB, sCG, sTT, sWC, sNonce = 56, 57, 58, 59, 60
T0, T1, T2, T3 = 61, 62, 63, 64
sSpin = 75
NSTAMP = 12
STAMP0 = 76

XRING = 0
WRING = 49152
WSLOT = 24640
UPOFF = 12288 + 32
KVB = 122880
KVSLOT = 5120
XCH = KVB + 2 * KVSLOT
LDS_SZ = 163840
WPER = 10240
PB, NB = 12, 20

vLane = 1
vXo, vWoQ, vWo0, vWo1, vWo2 = 4, 5, 6, 7, 14
vXa, vWaQ, vWaG = 8, 12, 15
XA, XB = 32, 40
ACC = 64
WA, WB = 112, 136
vN = 62
K0, K1, V0, V1 = 16, 20, 24, 28
P = 48
S = [64, 80]
E = 96
DACC = 112
WF = 132
Q0 = [160, 168]
Q1 = [164, 172]
vGt, vL16p, vT8p, vK0, vK1, vV = 176, 177, 178, 179, 180, 181
vActReal, vAct, vWr, vWA, vPB, vG2 = 182, 183, 184, 185, 186, 187
vWAm, vWBm, vWAr, vWBr, vKVo, vW0, vW1 = 188, 189, 190, 191, 192, 193, 194
vWB = 195
ACT = 200
O = [216, 232]
ACTX = 64
WF2 = [132, 16]
XCL = [16, 20, 24, 28, 48, 52, 160, 164, 168, 172] + list(range(200, 256, 4))
NXC = 0 if 'noxc' in DBG else 6


def XC(k, j):
    return XCL[4 * k + j]


CLK = "s_memtime" if "clk" in DBG else "s_memrealtime"


def stamp(A, idx, alt=False):
    if "gust" in DBG and idx in (8, 9, 10) and not alt:
        return
    if "gust" not in DBG and alt:
        return
    if PROF:
        A(f"{CLK} s[{STAMP0+2*idx}:{STAMP0+2*idx+1}]")


def prof_end(A):
    if not PROF:
        return
    A(f"{CLK} s[{STAMP0+2*(NSTAMP-1)}:{STAMP0+2*(NSTAMP-1)+1}]")
    A("s_waitcnt lgkmcnt(0)")
    A("s_lshl_b32 s61, s2, 3")
    A("s_add_u32 s61, s61, s3")
    A("s_lshl_b32 s61, s61, 6")
    A(f"s_add_u32 s61, s61, {PROF_OFF}")
    for i in range(NSTAMP):
        A(f"v_mov_b32 v{4+i}, s{STAMP0+2*i}")
    A("v_mov_b32 v0, 0")
    A("s_mov_b64 exec, 1")
    for i in range(3):
        A(f"buffer_store_dwordx4 v[{4+4*i}:{7+4*i}], v0, s[{SWS}:{SWS+3}], s61 offen offset:{16*i}")


def spin(A, name, issue, check):
    l0, l1 = A.newlabel("L_sp" + name), A.newlabel("L_spd" + name)
    A(f"s_mov_b32 s{sSpin}, 0")
    A.label(l0)
    issue()
    A("s_waitcnt vmcnt(0)")
    check()
    A(f"s_cbranch_scc1 {l1}")
    A(f"s_add_u32 s{sSpin}, s{sSpin}, 1")
    A(f"s_cmp_ge_u32 s{sSpin}, {SPIN_MAX}")
    A(f"s_cbranch_scc1 {l1}")
    A("s_sleep 2")
    A(f"s_branch {l0}")
    A.label(l1)


def poll_pre(A, name, issue, check):
    l = A.newlabel("L_pp" + name)
    check()
    A(f"s_cbranch_scc1 {l}")
    spin(A, name, issue, check)
    A.label(l)


W = f"s[{SWS}:{SWS+3}]"


def gen():
    A = Asm("k_")
    A(f".p2align 8\n.type {KNAME},@function")
    A.label(KNAME)
    stamp(A, 0)
    A("s_cmp_ge_u32 s2, 256")
    A("s_cbranch_scc0 L_go")
    A("s_endpgm")
    A.label("L_go")
    A("s_load_dwordx16 s[36:51], s[0:1], 0")
    A("s_load_dwordx2 s[52:53], s[0:1], 64")
    A("s_load_dwordx2 s[34:35], s[0:1], 72")
    A("s_load_dwordx2 s[54:55], s[0:1], 80")
    A("v_lshrrev_b32 v2, 6, v0")
    A("v_and_b32 v1, 63, v0")
    A("s_nop 0")
    A("v_readfirstlane_b32 s3, v2")
    A("s_and_b32 s61, s2, 7")
    A("s_lshr_b32 s62, s2, 3")
    A(f"s_lshr_b32 s{sTB}, s61, 1")
    A(f"s_lshl_b32 s{sTB}, s{sTB}, 2")
    A("s_and_b32 s63, s62, 3")
    A(f"s_add_u32 s{sTB}, s{sTB}, s63")
    A(f"s_and_b32 s{sCG}, s61, 1")
    A(f"s_lshl_b32 s{sCG}, s{sCG}, 3")
    A("s_lshr_b32 s63, s62, 2")
    A(f"s_add_u32 s{sCG}, s{sCG}, s63")
    A(f"s_and_b32 s{sTT}, s3, 3")
    A(f"s_lshr_b32 s{sWC}, s3, 2")
    A("v_lshrrev_b32 v16, 3, v1")
    A("s_lshl_b32 s61, s3, 3")
    A("v_add_u32 v16, s61, v16")
    A("v_lshrrev_b32 v17, 1, v16")
    A("v_and_b32 v17, 7, v17")
    A("v_and_b32 v18, 7, v1")
    A("v_xor_b32 v17, v17, v18")
    A("v_lshlrev_b32 v17, 4, v17")
    A("v_mul_u32_u24 v16, 1280, v16")
    A(f"v_add_u32 v{vXo}, v16, v17")
    A("v_lshrrev_b32 v16, 4, v1")
    A("v_lshlrev_b32 v17, 2, v16")
    A("v_and_b32 v18, 15, v1")
    A("v_xor_b32 v17, v17, v18")
    A("v_lshlrev_b32 v17, 4, v17")
    A("s_lshl_b32 s61, s3, 2")
    A("v_add_u32 v16, s61, v16")
    A("v_mul_u32_u24 v16, 3840, v16")
    A(f"v_add_u32 v{vWoQ}, v16, v17")
    sXs, sXs2, sWs, sWs2, sGs, sGx = 32, 33, 66, 67, 72, 73
    sM0x, sM0q, sM0g0, sM0g1, sM0g2 = 74, 65, 100, 101, 71
    sStage, sSlot = 69, 70
    sXslot, sWslot, sDX, sDW = 44, 45, 46, 47
    A(f"s_mul_i32 s{sXs}, s{sTB}, {128*1280}")
    A(f"s_mul_i32 s61, s{sCG}, 240")
    A(f"s_sub_u32 s62, s{sCG}, 11")
    A("s_lshl_b32 s62, s62, 8")
    A("s_add_u32 s62, s62, 2560")
    A(f"s_cmp_lt_u32 s{sCG}, 11")
    A(f"s_cselect_b32 s{sWs}, s61, s62")
    A(f"s_lshl_b32 s{sM0x}, s3, 10")
    A(f"s_add_u32 s{sM0q}, s{sM0x}, {WRING}")
    A("v_lshlrev_b32 v2, 2, v1")
    A("s_waitcnt lgkmcnt(0)")
    srd(A, SX, P_AX, 2048 * 1280)
    srd(A, SWQ, P_WQKV, 640 * 3840)

    def dma_groups(g):
        slot = g % 3
        k = g if g < 10 else g - 10
        out = []
        xs = slot * 16384
        ws_ = slot * WSLOT
        for half in range(2):
            if g >= 10 and k < NXC:
                continue
            out.append([f"s_add_u32 m0, s{sM0x}, {xs + 8192*half}",
                        f"s_add_u32 s{sXs2}, s{sXs}, {k*128 + 81920*half}",
                        f"buffer_load_dwordx4 v{vXo}, s[{SX}:{SX+3}], s{sXs2} offen lds"])
        if g < 10:
            for half in range(2):
                out.append([f"s_add_u32 m0, s{sM0q}, {ws_ + 8192*half}",
                            f"s_add_u32 s{sWs2}, s{sWs}, {(k*64 + 32*half)*3840}",
                            f"buffer_load_dwordx4 v{vWoQ}, s[{SWQ}:{SWQ+3}], s{sWs2} offen lds"])
        else:
            for (sm, vo, sr) in ((sM0g0, vWo0, SWG), (sM0g1, vWo1, SW1), (sM0g2, vWo2, SWU)):
                out.append([f"s_add_u32 m0, s{sm}, {ws_}",
                            f"s_add_u32 s{sWs2}, s{sGs}, {k*64*3072}",
                            f"buffer_load_dwordx4 v{vo}, s[{sr}:{sr+3}], s{sWs2} offen lds"])
        if "p1nodma" in DBG and g >= 3:
            return [[] for _ in out]
        return out

    SGW = 68
    srd(A, SGW, P_GW, 1280)
    vGX, vGW = 100, 106
    sTOK = 33
    sGoff = 0
    A(f"s_lshl_b32 s{sTOK}, s{sTB}, 7")
    A(f"s_lshl_b32 s61, s{sCG}, 3")
    A(f"s_add_u32 s{sTOK}, s{sTOK}, s61")
    A(f"s_add_u32 s{sTOK}, s{sTOK}, s3")
    A(f"s_lshl_b32 s{sGoff}, s{sTOK}, 2")
    A(f"s_add_u32 s{sGoff}, s{sGoff}, {G_OFF}")
    A(f"s_mul_i32 s61, s{sTOK}, 1280")
    for m in range(5):
        A(f"buffer_load_dword v{vGX+m}, v2, s[{SX}:{SX+3}], s61 offen offset:{256*m}")
    for m in range(5):
        A(f"buffer_load_dword v{vGW+m}, v2, s[{SGW}:{SGW+3}], 0 offen offset:{256*m}")
    srd(A, SWG, P_WG, 640 * 3072)
    srd(A, SWU, P_WU, 640 * 3072)
    for st in range(3):
        for grp in dma_groups(st):
            for x in grp:
                A(x)
    NPF = 0 if "nopf" in DBG else 1
    srd(A, SWS, P_WS, WS_USED)
    srd(A, SDB, P_DBG, 256)
    A("s_cmp_lt_u32 s3, 4")
    for k in range(4):
        A(f"s_cselect_b32 s{SW1+k}, s{SWG+k}, s{SWU+k}")
    A("s_or_b32 s61, s2, s3")
    A("s_cmp_eq_u32 s61, 0")
    A("s_cbranch_scc0 L_nononce")
    A("s_memrealtime s[62:63]")
    A("s_waitcnt lgkmcnt(0)")
    A("s_or_b32 s62, s62, 1")
    A("v_mov_b32 v16, s62")
    A("v_mov_b32 v17, 0")
    A("s_mov_b64 exec, 1")
    A(f"buffer_store_dword v16, v17, s[{SDB}:{SDB+3}], 0 offen sc1")
    A("s_mov_b64 exec, -1")
    A("s_waitcnt vmcnt(0)")
    A.label("L_nononce")

    A("v_and_b32 v16, 31, v1")
    A("v_lshrrev_b32 v17, 5, v1")
    A("v_lshrrev_b32 v18, 1, v16")
    A("v_and_b32 v18, 7, v18")
    A(f"s_lshl_b32 s61, s{sTT}, 5")
    A("v_add_u32 v19, s61, v16")
    A("v_lshlrev_b32 v19, 7, v19")
    for j in range(4):
        A(f"v_add_u32 v20, {2*j}, v17")
        A("v_xor_b32 v20, v20, v18")
        A("v_lshlrev_b32 v20, 4, v20")
        A(f"v_add_u32 v{vXa+j}, v19, v20")
    A("v_and_b32 v18, 15, v1")
    A("v_lshrrev_b32 v19, 2, v18")
    A("v_lshrrev_b32 v20, 4, v1")
    A(f"s_cmp_lt_u32 s{sCG}, 11")
    A("s_cselect_b32 s61, 8, 0")
    A("s_sub_u32 s61, 128, s61")
    A(f"s_mul_i32 s61, s61, s{sWC}")
    A("v_lshrrev_b32 v21, 1, v20")
    A("v_lshl_add_u32 v21, v21, 3, v19")
    A("v_lshlrev_b32 v27, 8, v21")
    A(f"v_add_u32 v27, {WRING}, v27")
    A("v_and_b32 v22, 1, v20")
    A("v_lshlrev_b32 v22, 5, v22")
    A("v_and_b32 v23, 3, v1")
    A("v_lshl_add_u32 v22, v23, 3, v22")
    A("v_add_u32 v22, s61, v22")
    A("v_and_b32 v24, 3, v19")
    A("v_lshlrev_b32 v24, 2, v24")
    for t in range(2):
        A(f"v_add_u32 v25, {64*t}, v22")
        A("v_lshrrev_b32 v26, 4, v25")
        A("v_xor_b32 v26, v26, v24")
        A("v_lshlrev_b32 v26, 4, v26")
        A("v_and_b32 v25, 15, v25")
        A(f"v_add3_u32 v{vWaQ+t}, v27, v26, v25")
    A("v_mul_u32_u24 v21, 192, v21")
    A("v_and_b32 v22, 1, v20")
    A(f"v_mul_u32_u24 v22, {UPOFF}, v22")
    A("v_lshlrev_b32 v23, 3, v23")
    A("v_add3_u32 v21, v21, v22, v23")
    A(f"s_mul_i32 s61, s{sWC}, 96")
    A(f"s_add_u32 s61, s61, {WRING}")
    A(f"v_add_u32 v{vWaG}, s61, v21")
    A("s_add_u32 s61, s3, 8")
    A("s_sub_u32 s62, s3, 4")
    A("s_cmp_lt_u32 s3, 4")
    A("s_cselect_b32 s63, s61, s62")
    A(f"s_cselect_b32 s64, 0, {UPOFF}")
    A(f"s_lshl_b32 s{sM0g1}, s63, 10")
    A(f"s_add_u32 s{sM0g1}, s{sM0g1}, s64")
    A(f"s_add_u32 s{sM0g1}, s{sM0g1}, {WRING}")
    A("s_add_u32 s64, s3, 4")
    A(f"s_lshl_b32 s{sM0g2}, s64, 10")
    A(f"s_add_u32 s{sM0g2}, s{sM0g2}, {WRING + UPOFF}")
    A(f"s_lshl_b32 s{sM0g0}, s3, 10")
    A(f"s_add_u32 s{sM0g0}, s{sM0g0}, {WRING}")
    for (vd, sj) in ((vWo0, 3), (vWo1, 63), (vWo2, 64)):
        A(f"s_lshl_b32 s61, s{sj}, 6")
        A("v_add_u32 v21, s61, v1")
        magic_div(A, 22, 21, 12, 768, 62)
        A("v_mul_u32_u24 v23, 12, v22")
        A("v_sub_u32 v23, v21, v23")
        A("v_lshlrev_b32 v23, 4, v23")
        A("v_mul_u32_u24 v22, 3072, v22")
        A(f"v_add_u32 v{vd}, v22, v23")
    A(f"s_mul_i32 s{sGs}, s{sCG}, 192")

    A(f"v_lshlrev_b32 v{vL16p}, 4, v1")
    A(f"v_and_b32 v16, 31, v1")
    A(f"v_lshlrev_b32 v{vT8p}, 3, v16")
    A(f"v_lshlrev_b32 v{vGt}, 2, v16")
    A(f"s_mul_i32 s61, s{sWC}, 2560")
    A(f"s_add_u32 s61, s61, {KVB + 4*KVSLOT}")
    A(f"v_add_u32 v{vK0}, s61, v{vL16p}")
    A(f"v_add_u32 v{vK1}, s61, v{vT8p}")
    A(f"v_add_u32 v{vK1}, 1024, v{vK1}")
    A("v_lshrrev_b32 v17, 5, v1")
    A("v_mul_u32_u24 v17, 320, v17")
    A("v_lshlrev_b32 v18, 4, v16")
    A("v_add3_u32 v17, v17, v18, s61")
    A(f"v_add_u32 v{vV}, 1280, v17")
    A("s_sub_i32 s61, s3, 2")
    A("s_max_i32 s61, s61, 0")
    A("s_min_i32 s61, s61, 4")
    A("s_lshl_b32 s62, s61, 10")
    A(f"v_add_u32 v{vKVo}, s62, v{vL16p}")
    A(f"v_cmp_le_u32 vcc, 2560, v{vKVo}")
    A(f"v_add_u32 v17, {32*2560-2560}, v{vKVo}")
    A("s_nop 0")
    A(f"v_cndmask_b32 v{vKVo}, v{vKVo}, v17, vcc")
    A("v_lshrrev_b32 v17, 4, v1")
    A("v_lshrrev_b32 v18, 1, v17")
    A("v_lshlrev_b32 v18, 10, v18")
    A("v_and_b32 v19, 1, v17")
    A("v_lshlrev_b32 v19, 9, v19")
    A("v_and_b32 v20, 15, v1")
    A(f"s_and_b32 s61, s{sTT}, 1")
    A("s_lshl_b32 s61, s61, 4")
    A("v_add_u32 v20, s61, v20")
    A("v_lshlrev_b32 v21, 4, v20")
    A(f"v_add3_u32 v{vActReal}, v18, v19, v21")
    A(f"v_mov_b32 v{vAct}, v{vActReal}")
    A(f"v_lshlrev_b32 v{vG2}, 2, v20")
    A("v_lshrrev_b32 v18, 1, v17")
    A("v_lshlrev_b32 v18, 4, v18")
    A("v_and_b32 v19, 1, v17")
    A("v_lshl_add_u32 v18, v19, 2, v18")
    A("v_and_b32 v19, 15, v1")
    A("v_lshrrev_b32 v19, 2, v19")
    A("v_add_u32 v18, v18, v19")
    A("v_mul_u32_u24 v18, 160, v18")
    A("v_and_b32 v19, 3, v1")
    A("v_lshl_add_u32 v18, v19, 3, v18")
    A(f"s_mul_i32 s61, s{sWC}, 5120")
    A(f"v_add_u32 v{vWr}, s61, v18")
    A(f"v_mov_b32 v{vW0}, v{vWr}")
    A(f"v_add_u32 v{vW1}, 61440, v{vWr}")
    A("s_cmp_ge_u32 s3, 5")
    A("s_cselect_b32 s63, 5, 0")
    A("s_sub_u32 s63, s3, s63")
    A("s_add_u32 s64, s3, 3")
    A("s_min_u32 s64, s64, 4")
    for (sj, vh, vm, vr) in ((63, vWA, vWAm, vWAr), (64, vWB, vWBm, vWBr)):
        A(f"s_lshl_b32 s61, s{sj}, 6")
        A("v_add_u32 v22, s61, v1")
        magic_div(A, 23, 22, 10, 320, 62)
        A("v_mul_u32_u24 v24, 10, v23")
        A("v_sub_u32 v24, v22, v24")
        A("v_lshlrev_b32 v24, 4, v24")
        A("v_mul_u32_u24 v25, 1280, v23")
        A(f"v_add_u32 v{vh}, v25, v24")
        A("v_lshrrev_b32 v25, 4, v23")
        A("v_mul_u32_u24 v25, 20, v25")
        A("v_and_b32 v26, 15, v23")
        A("v_add_u32 v25, v25, v26")
        A("v_mul_u32_u24 v25, 1280, v25")
        A(f"v_add_u32 v{vm}, v25, v24")
        A("v_lshrrev_b32 v25, 4, v23")
        A("v_lshlrev_b32 v25, 1, v25")
        A("v_bfe_u32 v26, v23, 2, 1")
        A("v_add_u32 v25, v25, v26")
        A("v_mul_u32_u24 v25, 20, v25")
        A("v_and_b32 v26, 3, v23")
        A("v_add3_u32 v25, v25, v26, 16")
        A("v_mul_u32_u24 v25, 1280, v25")
        A(f"v_add_u32 v{vr}, v25, v24")
    A("s_cmp_lt_u32 s3, 2")
    A("s_cselect_b64 vcc, -1, 0")
    A("s_nop 1")
    A(f"v_cndmask_b32 v{vPB}, v{vKVo}, v{vWB}, vcc")
    ONE2 = 0x3f803f80

    def p2_inits(part):
        if part == 0:
            A("v_and_b32 v56, 31, v1")
            A("v_cmp_eq_u32 vcc, 20, v56")
            A(f"v_mov_b32 v57, {hx(ONE2)}")
            A("s_nop 0")
            A("v_cndmask_b32 v58, 0, v57, vcc")
            for r in range(8):
                A(f"v_mov_b32 v{V0+r}, v58")
            A(f"v_mov_b32 v{K1+2}, {hx(ONE2)}")
            A(f"v_mov_b32 v{K1+3}, 0x3f80")
            for r in range(8):
                A(f"v_mov_b32 v{P+r}, 0")
        else:
            for r in range(32):
                A(f"v_mov_b32 v{O[0]+r}, 0")


    def gate_compute():
        A("v_mov_b32 v56, 0")
        for m in range(5):
            A(f"v_dot2_f32_bf16 v56, v{vGX+m}, v{vGW+m}, v56")
        A("s_nop 3")
        for sh in (1, 2, 4, 8):
            A(f"v_add_f32_dpp v56, v56, v56 row_shr:{sh} row_mask:0xf bank_mask:0xf bound_ctrl:0")
            A("s_nop 1")
        A("v_add_f32_dpp v56, v56, v56 row_bcast:15 row_mask:0xa bank_mask:0xf")
        A("s_nop 1")
        A("v_add_f32_dpp v56, v56, v56 row_bcast:31 row_mask:0xc bank_mask:0xf")
        A("s_nop 1")
        A(f"v_mul_f32 v56, {hx(f2u(-LOG2E))}, v56")
        A("v_exp_f32 v56, v56")
        A("s_nop 0")
        A("v_add_f32 v56, 1.0, v56")
        A("v_rcp_f32 v63, v56")

    if NPF:
        A("s_mov_b32 s60, s4\ns_mov_b32 s61, s5")
        A(f"s_mov_b32 s62, {2048*1280}")
        A("s_mov_b32 s64, 10240")
        for (wmin, lo, hi, sz, ch) in ((2, 8, 9, 640*3840, 9600), (4, 12, 13, 640*3072, 7680), (5, 16, 17, 640*3072, 7680),
                                       (6, 48, 49, 1536*1280, 7680), (7, 40, 41, 640*1280, 3200)):
            A(f"s_cmp_ge_u32 s3, {wmin}")
            A(f"s_cselect_b32 s60, s{lo}, s60")
            A(f"s_cselect_b32 s61, s{hi}, s61")
            A(f"s_cselect_b32 s62, {sz}, s62")
            A(f"s_cselect_b32 s64, {ch}, s64")
        A("s_and_b32 s61, s61, 0xffff")
        A("s_mov_b32 s63, 0x20000")
        A("s_cmp_lt_u32 s3, 4")
        A("s_cselect_b32 s75, 1, 0")
        A("s_and_b32 s75, s75, s3")
        A("s_lshl_b32 s75, s75, 13")
        A("v_lshlrev_b32 v2, 7, v1")
        A("v_add_u32 v2, s75, v2")
        A("v_cmp_gt_u32 vcc, s64, v2")
        A("s_mul_i32 s64, s64, s2")
        A("s_and_saveexec_b64 s[0:1], vcc") if False else None
        A("s_mov_b64 exec, vcc")
        A("buffer_load_dword v59, v2, s[60:63], s64 offen")
        A("s_mov_b64 exec, -1")
    A(f"s_waitcnt vmcnt({8+NPF})")
    A("s_barrier")
    stamp(A, 1)

    def xoff(g):
        return (g % 3) * 16384

    def woff(g):
        return (g % 3) * WSLOT

    def xreg(setX, g, half, jj):
        k = g if g < 10 else g - 10
        return XC(k, 2 * half + jj) if k < NXC else setX + 4 * jj

    def qkv_reads(setX, setW, g, half):
        r = []
        for jj in range(2):
            j = 2 * half + jj
            r.append(f"ds_read_b128 {v(xreg(setX, g, half, jj),4)}, v{vXa+j} offset:{xoff(g)}")
            for t in range(2):
                d = setW + 8 * jj + 4 * t
                o = woff(g) + j * 4096
                r.append(f"ds_read_b64_tr_b16 {v(d,2)}, v{vWaQ+t} offset:{o}")
                r.append(f"ds_read_b64_tr_b16 {v(d+2,2)}, v{vWaQ+t} offset:{o+1024}")
        return r

    def qkv_mfmas(setX, setW, g, half, vtype):
        m = []
        for jj in range(2):
            for t in range(2):
                a, b = setW + 8 * jj + 4 * t, xreg(setX, g, half, jj)
                if vtype:
                    a, b = b, a
                m.append(mfma32(ACC + 16 * t, a, b, "0" if (g == 0 and half == 0 and jj == 0) else None))
        return m

    def gu_reads(setX, setW, g, half):
        r = []
        for jj in range(2):
            j = 2 * half + jj
            if g - 10 >= NXC:
                r.append(f"ds_read_b128 {v(setX+4*jj,4)}, v{vXa+j} offset:{xoff(g)}")
            for t in range(3):
                d = setW + 12 * jj + 4 * t
                o = woff(g) + j * 3072 + 32 * t
                a = vWaG
                assert o + 768 < 65536
                r.append(f"ds_read_b64_tr_b16 {v(d,2)}, v{a} offset:{o}")
                r.append(f"ds_read_b64_tr_b16 {v(d+2,2)}, v{a} offset:{o+768}")
        return r

    def gu_mfmas(setX, setW, g, half):
        m = []
        for jj in range(2):
            for t in range(3):
                m.append(mfma32(ACC + 16 * t, setW + 12 * jj + 4 * t, xreg(setX, g, half, jj), "0" if (g == 10 and half == 0 and jj == 0) else None))
        return m

    def emit_half(mm, rr, dd, fill=()):
        if "p1noreads" in DBG: rr = []
        if "p1nomfma" in DBG: mm = ["s_nop 0"] * len(mm)
        n = len(mm)
        ng = n - 1
        if 'nghalf' in DBG: ng = max(1, n // 2)
        if 'ngm2' in DBG: ng = max(1, n - 2)
        if 'ngall' in DBG: ng = n
        per = (len(rr) + ng - 1) // ng
        pos = {}
        for i, grp in enumerate(dd):
            p_ = min(n - 1, (i * n) // max(1, len(dd)) + (0 if len(dd) > 2 else 1))
            pos.setdefault(p_, []).append(grp)
        load = [0] * n
        ri = 0
        for i in range(n):
            load[i] += len(rr[ri:ri + per]); ri += per
            load[i] += sum(len(g_) for g_ in pos.get(i, []))
        total = sum(load) + sum(len(g_) for g_ in fill)
        target = total / n
        fpos = [[] for _ in range(n)]
        gi = 0
        for g_ in fill:
            while gi < n - 1 and load[gi] >= target:
                gi += 1
            fpos[gi].append(g_); load[gi] += len(g_)
        ri = 0
        for i, m in enumerate(mm):
            A(m)
            for r in rr[ri:ri + per]:
                A(r)
            ri += per
            for grp in pos.get(i, []):
                for x in grp:
                    A(x)
            for grp in fpos[i]:
                for x in grp:
                    A(x)
        for r in rr[ri:]:
            A(r)

    def stage(g, reads, mfmas, wait, pre=None, post=None, fill0=(), fill1=()):
        d2 = dma_groups(g + 2)[2:] if (3 <= g + 2 <= 19 and g + 2 != 12) else []
        d3 = dma_groups(g + 3)[:2] if g + 3 <= 19 else []
        if g + 3 == 12:
            d3 = dma_groups(12)
        A("s_waitcnt lgkmcnt(0)")
        emit_half(mfmas(XA, WA, g, 0), reads(XB, WB, g, 1), d2, fill0)
        if pre: pre()
        if g == 12: stamp(A, 8, True)
        if g == 18: stamp(A, 9, True)
        wait()
        A("s_barrier")
        if g == 18: stamp(A, 10, True)
        nr = reads(XA, WA, g + 1, 0) if g not in (9, 19) else []
        emit_half(mfmas(XB, WB, g, 1), nr, d3, fill1)
        if post: post()

    def qkv_phase(vtype):
        for r in qkv_reads(XA, WA, 0, 0):
            A(r)
        for g in range(10):
            n = len(dma_groups(g + 2)) + (NPF if g < 2 else 0)
            f0 = [capture(A, gate_compute)] if g == 3 else ()
            stage(g, qkv_reads, lambda x, w, g_, h_: qkv_mfmas(x, w, g_, h_, vtype), lambda n=n: A(f"s_waitcnt vmcnt({n}) lgkmcnt(0)"), fill0=atomic_groups(f0[0]) if f0 else ())

    sCls = 35
    A(f"s_cmp_ge_u32 s{sCG}, 11")
    A("s_cbranch_scc1 L_vtype")
    qkv_phase(False)
    stamp(A, 2)
    A("s_waitcnt lgkmcnt(0)")
    A("s_nop 7\ns_nop 7")
    PK = 32
    sU, sTile, sD = 65, 66, 67
    A(f"s_mul_i32 s{sU}, s{sCG}, 6")
    A(f"s_mul_i32 s61, s{sWC}, 3")
    A(f"s_add_u32 s{sU}, s{sU}, s61")
    A(f"s_lshl_b32 s{sTile}, s{sTB}, 2")
    A(f"s_add_u32 s{sTile}, s{sTile}, s{sTT}")
    A(f"s_add_u32 s61, s{sU}, 1")
    A("s_cmp_lt_u32 s61, 32")
    A(f"s_cselect_b32 s62, {hx(f2u(QSCALE))}, 1.0")
    A(f"s_add_u32 s61, s{sU}, 2")
    A("s_cmp_lt_u32 s61, 32")
    A(f"s_cselect_b32 s63, {hx(f2u(QSCALE))}, 1.0")
    for r in range(32):
        G = r // 4
        A(f"v_mul_f32 v{ACC+r}, s{62 if G < 5 else 63}, v{ACC+r}")
    for p in range(16):
        A(f"v_cvt_pk_bf16_f32 v{PK+p}, v{ACC+2*p}, v{ACC+2*p+1}")
    vL16x = 58
    A(f"v_xor_b32 v{vL16x}, 512, v{vL16p}")

    def dest(a):
        A(f"s_add_u32 s61, s{sU}, {a}")
        A("s_lshl_b32 s62, s61, 6")
        A(f"s_add_u32 s62, s62, s{sTile}")
        A("s_mul_i32 s63, s62, 1280")
        A(f"s_sub_u32 s62, s62, {32*64}")
        A("s_mul_i32 s62, s62, 2560")
        A(f"s_add_u32 s62, s62, {KV_OFF}")
        A("s_cmp_lt_u32 s61, 32")
        A(f"s_cselect_b32 s{sD}, s63, s62")
    dest(0)
    A(f"buffer_store_dwordx4 {v(PK,4)}, v{vL16p}, {W}, s{sD} offen{SC1}")
    A("s_mov_b32 exec_hi, 0")
    A(f"buffer_store_dwordx2 {v(PK+4,2)}, v{vT8p}, {W}, s{sD} offen offset:1024{SC1}")
    A("s_mov_b32 exec_hi, -1")
    A(f"s_mov_b32 s{sCls}, 2")
    A(f"s_cmp_ge_u32 s{sU}, 63")
    A("s_cbranch_scc1 L_qkv_done")
    A(f"s_mov_b32 s{sCls}, 0")
    dest(1)
    A("s_mov_b32 exec_hi, 0")
    A(f"buffer_store_dwordx4 {v(PK+6,4)}, v{vL16x}, {W}, s{sD} offen{SC1}")
    A("s_mov_b32 exec_lo, 0\ns_mov_b32 exec_hi, -1")
    A(f"buffer_store_dwordx4 {v(PK+4,4)}, v{vL16x}, {W}, s{sD} offen{SC1}")
    A(f"buffer_store_dwordx2 {v(PK+8,2)}, v{vT8p}, {W}, s{sD} offen offset:1024{SC1}")
    A("s_mov_b32 exec_lo, -1")
    dest(2)
    A(f"buffer_store_dwordx4 {v(PK+10,4)}, v{vL16p}, {W}, s{sD} offen{SC1}")
    A("s_mov_b32 exec_hi, 0")
    A(f"buffer_store_dwordx2 {v(PK+14,2)}, v{vT8p}, {W}, s{sD} offen offset:1024{SC1}")
    A("s_mov_b32 exec_hi, -1")
    A("s_branch L_qkv_done")

    A.label("L_vtype")
    qkv_phase(True)
    stamp(A, 2)
    A("s_waitcnt lgkmcnt(0)")
    A("s_nop 7\ns_nop 7")
    A(f"s_mov_b32 s{sCls}, 1")
    A(f"s_lshl_b32 s{sTile}, s{sTB}, 2")
    A(f"s_add_u32 s{sTile}, s{sTile}, s{sTT}")
    A(f"s_mul_i32 s{sD}, s{sTile}, 2560")
    A(f"s_add_u32 s{sD}, s{sD}, {KV_OFF + 1280}")
    A(f"s_sub_u32 s61, s{sCG}, 11")
    A("s_lshl_b32 s61, s61, 7")
    A(f"s_lshl_b32 s62, s{sWC}, 6")
    A("s_add_u32 s61, s61, s62")
    A("v_and_b32 v56, 31, v1")
    A("v_lshrrev_b32 v57, 5, v1")
    A("v_mul_u32_u24 v57, 320, v57")
    for t in range(2):
        A("v_add_u32 v58, s61, v56")
        if t:
            A("v_add_u32 v58, 32, v58")
        magic_div(A, 59, 58, 20, 640, 62)
        A("v_mul_u32_u24 v60, 20, v59")
        A("v_sub_u32 v60, v58, v60")
        A("v_lshlrev_b32 v60, 4, v60")
        A("s_mov_b32 s62, 163840")
        A("v_mul_lo_u32 v59, v59, s62")
        A(f"v_add3_u32 v{2+t}, v59, v60, v57")
    for t in range(2):
        for hf in range(2):
            base = ACC + 16 * t + 8 * hf
            dst = 32 + 8 * t + 4 * hf
            for p in range(4):
                A(f"v_cvt_pk_bf16_f32 v{dst+p}, v{base+2*p}, v{base+2*p+1}")
            A(f"buffer_store_dwordx4 {v(dst,4)}, v{2+t}, {W}, s{sD} offen offset:{640*hf}{SC1}")
    A.label("L_qkv_done")
    A("v_mov_b32 v3, 0")
    A("s_mov_b32 exec_lo, 0")
    A("s_mov_b32 exec_hi, 0x80000000")
    A(f"buffer_store_dword v63, v3, {W}, s{sGoff} offen{SC1}")
    A("s_mov_b64 exec, -1")
    stamp(A, 3)

    sHead, sQT, sKVs, sM0kv = 48, 49, 51, 65
    A("v_mov_b32 v3, 0")
    A(f"buffer_load_dword v{vN}, v3, s[{SDB}:{SDB+3}], 0 offen sc1")

    def gu_setup():
        A("s_mov_b32 s0, s48")
        A("s_mov_b32 s1, s49")
        A("s_and_b32 s61, s2, 7")
        A("s_lshr_b32 s62, s2, 3")
        A("s_lshl_b32 s61, s61, 2")
        A(f"s_lshr_b32 s{sHead}, s62, 3")
        A(f"s_add_u32 s{sHead}, s{sHead}, s61")
        A("s_and_b32 s62, s62, 7")
        A("s_lshl_b32 s62, s62, 3")
        A(f"s_lshl_b32 s61, s{sTT}, 1")
        A(f"s_add_u32 s{sQT}, s62, s61")
        A("s_mov_b32 s38, s40")
        A("s_mov_b32 s39, s41")
        srd(A, SK, P_WS, KV_SZ, add=KV_OFF)
        A("s_sub_i32 s61, s3, 2")
        A("s_max_i32 s61, s61, 0")
        A("s_min_i32 s61, s61, 4")
        A("s_lshl_b32 s62, s61, 10")
        A(f"s_add_u32 s{sM0kv}, s62, {KVB}")
        A(f"s_mul_i32 s{sKVs}, s{sHead}, 163840")

    def kv_dma(tile):
        A(f"s_add_u32 m0, s{sM0kv}, {((tile+4)%8)*KVSLOT}")
        A("s_nop 0")
        A(f"buffer_load_dwordx4 v{vKVo}, s[{SK}:{SK+3}], s{sKVs} offen{SC1} lds")
        A(f"s_add_u32 s{sKVs}, s{sKVs}, 2560")

    def p2_prologue():
        for a in range(2):
            A(f"s_lshl_b32 s61, s{sHead}, 6")
            A(f"s_add_u32 s61, s61, s{sQT}")
            A(f"s_add_u32 s61, s61, {a}")
            A("s_mul_i32 s61, s61, 1280")
            A(f"buffer_load_dwordx4 {v(Q0[a],4)}, v{vL16p}, {W}, s61 offen{SC1}")
            A(f"buffer_load_dwordx2 {v(Q1[a],2)}, v{vT8p}, {W}, s61 offen offset:1024{SC1}")
        A(f"s_add_u32 s61, s{sQT}, s{sWC}")
        A("s_lshl_b32 s61, s61, 7")
        A(f"s_add_u32 s61, s61, {G_OFF}")
        A(f"buffer_load_dword v{vGt}, v{vGt}, {W}, s61 offen{SC1}")
        for t in range(6):
            kv_dma(t)
        A(f"s_lshl_b32 s61, s{sTile3}, 7")
        A(f"s_add_u32 s61, s61, {G_OFF}")
        A(f"buffer_load_dword v{vG2}, v{vG2}, {W}, s61 offen{SC1}")

    def nonce_get():
        lk = A.newlabel("L_nk")
        A(f"v_readfirstlane_b32 s{sNonce}, v{vN}")
        A("s_nop 3")
        A(f"s_cmp_lg_u32 s{sNonce}, 0")
        A(f"s_cbranch_scc1 {lk}")

        def issue():
            A(f"buffer_load_dword v{vN}, v3, s[{SDB}:{SDB+3}], 0 offen sc1")

        def check():
            A(f"v_readfirstlane_b32 s{sNonce}, v{vN}")
            A("s_nop 3")
            A(f"s_cmp_lg_u32 s{sNonce}, 0")
        spin(A, "n", issue, check)
        A.label(lk)

    def f1_issue():
        A(f"s_mov_b32 s62, {F1_OFF}")
        A(f"buffer_load_dwordx4 v[56:59], v{vL16p}, {W}, s62 offen sc1")

    def f1_check():
        A(f"v_cmp_ne_u32 vcc, s{sNonce}, v56")
        A(f"v_cmp_ne_u32 s[62:63], s{sNonce}, v57")
        A("s_or_b64 vcc, vcc, s[62:63]")
        A(f"v_cmp_ne_u32 s[62:63], s{sNonce}, v58")
        A("s_or_b64 vcc, vcc, s[62:63]")
        A(f"v_cmp_ne_u32 s[62:63], s{sNonce}, v59")
        A("s_or_b64 vcc, vcc, s[62:63]")
        A("s_cmp_eq_u64 vcc, 0")

    sTB64, sCB, sT16, sPar, sTile3 = 44, 45, sTT, sWC, 32
    sKH = sWC
    sIsW = 38
    sM0A, sM0B, sWsA, sWsB, sStepA, sStepB = 33, 66, 67, 69, 74, 70
    sActS, sColb, sParA = 71, 72, 73
    sP, sG, sGp, sKd, sRrg, sHH = 64, 46, 47, 36, 37, 34
    sOffB = [52, 53, 54, 55]
    sVm = 0

    def p2_scal1():
        A("s_and_b32 s61, s2, 7")
        A("s_lshr_b32 s62, s2, 3")
        A(f"s_lshr_b32 s{sTB64}, s61, 1")
        A(f"s_lshl_b32 s{sTB64}, s{sTB64}, 3")
        A("s_and_b32 s63, s62, 7")
        A(f"s_add_u32 s{sTB64}, s{sTB64}, s63")
        A(f"s_and_b32 s{sCB}, s61, 1")
        A(f"s_lshl_b32 s{sCB}, s{sCB}, 2")
        A("s_lshr_b32 s63, s62, 3")
        A(f"s_add_u32 s{sCB}, s{sCB}, s63")
        A(f"s_lshl_b32 s{sTile3}, s{sTB64}, 1")
        A(f"s_lshr_b32 s61, s{sT16}, 1")
        A(f"s_add_u32 s{sTile3}, s{sTile3}, s61")
        srd(A, SWD, 0, 1536 * 1280)
        srd(A, SWO, 38, 640 * 1280)
        srd(A, SOUT, P_OUT, 2048 * 1280)
        for k in range(4):
            A(f"s_mov_b32 s{SPA+k}, s{SWD+k}")
        A("s_cmp_lt_u32 s3, 2")
        for k in range(4):
            A(f"s_cselect_b32 s{SPB+k}, s{SWD+k}, s{SK+k}")
        A(f"s_cselect_b32 s{sIsW}, 1, 0")

    def p2_scal2():
        A(f"s_mul_i32 s{sColb}, s{sCB}, 160")
        A("s_cmp_ge_u32 s3, 5")
        A(f"s_cselect_b32 s{sParA}, 1, 0")
        A(f"s_mul_i32 s61, s{sParA}, 5")
        A("s_sub_u32 s61, s3, s61")
        A(f"s_mul_i32 s{sM0A}, s{sParA}, 5120")
        A("s_lshl_b32 s61, s61, 10")
        A(f"s_add_u32 s{sM0A}, s{sM0A}, s61")
        A(f"s_mul_i32 s{sWsA}, s{sParA}, {32*1280}")
        A(f"s_add_u32 s{sWsA}, s{sWsA}, s{sColb}")
        A(f"s_mov_b32 s{sStepA}, {64*1280}")
        A(f"s_mul_i32 s{sActS}, s{sTile3}, {96*1024}")
        A(f"s_lshl_b32 s61, s{sPar}, 11")
        A(f"s_add_u32 s{sActS}, s{sActS}, s61")
        A(f"s_add_u32 s{sActS}, s{sActS}, {H_OFF}")
        A(f"s_mov_b32 s{sVm}, 0xfffff")
        A(f"s_mov_b32 s{sVm+1}, 0xfffff")
        A(f"s_mov_b32 s{sG}, 0")
        A(f"s_mov_b32 s{sGp}, 0")
        A(f"s_mov_b32 s{sRrg}, 0")
        A(f"s_mov_b32 s{sHH}, 0")
        A(f"s_mov_b32 s{sKd}, {hx(-4*KVSLOT)}")

    def p2_scal3():
        A("s_add_u32 s61, s3, 3")
        A("s_min_u32 s61, s61, 4")
        A("s_lshl_b32 s61, s61, 10")
        A("s_add_u32 s61, s61, 5120")
        A("s_cmp_lt_u32 s3, 2")
        A(f"s_cselect_b32 s{sM0B}, s61, s{sM0kv}")
        A(f"s_add_u32 s61, s{sColb}, {32*1280}")
        A("s_cmp_lt_u32 s3, 2")
        A(f"s_cselect_b32 s{sWsB}, s61, s{sKVs}")
        A(f"s_mov_b32 s61, {64*1280}")
        A("s_cmp_lt_u32 s3, 2")
        A(f"s_cselect_b32 s{sStepB}, s61, 2560")
        A(f"s_mov_b32 s{sP}, 0")

    def gu_wait(g):
        def w():
            if g in (10, 11):
                nb = len(dma_groups(g + 2))
                lE, lc1, lc2 = [A.newlabel("L_gw") for _ in range(3)]
                A(f"s_cmp_eq_u32 s{sCls}, 0")

                def body(lb):
                    A(f"s_cmp_eq_u32 s{sCls}, 1")
                    A(f"s_cbranch_scc0 {lc2}")
                    A(f"s_waitcnt vmcnt({nb+6})")
                    A(f"s_branch {lE}")
                    A.label(lc2)
                    A(f"s_waitcnt vmcnt({nb+4})")
                    A(f"s_branch {lE}")
                A.rare([], body, branch="s_cbranch_scc0")
                A(f"s_waitcnt vmcnt({nb+9})")
                A.label(lE)
                A("s_waitcnt lgkmcnt(0)")
            elif g <= 17:
                A(f"s_waitcnt vmcnt({len(dma_groups(g + 2))}) lgkmcnt(0)")
            elif g == 18:
                A("s_waitcnt vmcnt(0) lgkmcnt(0)")

                def body(lb):
                    poll_pre(A, "f1", f1_issue, f1_check)
                A.rare(["s_cmp_eq_u32 s3, 0"], body)
            else:
                A("s_waitcnt lgkmcnt(0)")
        return w

    def sig_f1():
        def body(lb):
            A("v_mov_b32 v3, 0")
            nonce_get()
            A(f"s_lshl_b32 s61, s{sTB}, 4")
            A(f"s_add_u32 s61, s61, s{sCG}")
            A("s_lshl_b32 s61, s61, 2")
            A(f"s_add_u32 s61, s61, {F1_OFF}")
            A(f"v_mov_b32 v2, s{sNonce}")
            A("s_mov_b64 exec, 1")
            A(f"buffer_store_dword v2, v3, {W}, s61 offen sc1")
            A("s_mov_b64 exec, -1")
        A.rare(["s_cmp_eq_u32 s3, 0"], body)

    def f1_pre():
        A.rare(["s_cmp_eq_u32 s3, 0"], lambda lb: f1_issue())

    for r in gu_reads(XA, WA, 10, 0):
        A(r)
    def F(*fns):
        out = []
        for fn in fns:
            out += atomic_groups(capture(A, fn))
        return out
    fills = {
        (13, 0): F(gu_setup),
        (16, 0): F(lambda: p2_inits(0)),
        (16, 1): F(lambda: p2_inits(1)),
        (17, 1): F(p2_scal1),
        (18, 0): F(p2_scal2),
        (18, 1): F(p2_prologue),
        (19, 0): F(p2_scal3),
    }
    for g in range(10, 20):
        post = {12: sig_f1, 17: f1_pre}.get(g)
        stage(g, gu_reads, gu_mfmas, gu_wait(g), post=post, fill0=fills.get((g, 0), ()), fill1=fills.get((g, 1), ()))
    stamp(A, 4)
    A("s_waitcnt lgkmcnt(0)")
    A("s_nop 7")
    A("s_nop 7")
    ca = -2.0 * LOG2E * (2.0 / 3.141592653589793) ** 0.5
    cb = ca * 0.044715
    sTile, sD = 100, 101
    A(f"s_mov_b32 s61, {hx(f2u(ca))}")
    A(f"s_mov_b32 s62, {hx(f2u(cb))}")
    A(f"s_lshl_b32 s{sTile}, s{sTB}, 2")
    A(f"s_add_u32 s{sTile}, s{sTile}, s{sTT}")
    A(f"s_mul_i32 s{sD}, s{sTile}, 96")
    A(f"s_mul_i32 s63, s{sCG}, 6")
    A(f"s_add_u32 s{sD}, s{sD}, s63")
    A(f"s_mul_i32 s63, s{sWC}, 3")
    A(f"s_add_u32 s{sD}, s{sD}, s63")
    A(f"s_lshl_b32 s{sD}, s{sD}, 10")
    A(f"s_add_u32 s{sD}, s{sD}, {H_OFF}")
    A("v_mov_b32 v61, s61")
    for t in range(3):
        g0 = ACC + 16 * t
        u0 = g0 + 8
        T = 32
        for j in range(8):
            A(f"v_mul_f32 v{T+j}, v{g0+j}, v{g0+j}")
        for j in range(8):
            A(f"v_fma_f32 v{T+j}, v{T+j}, s62, v61")
        for j in range(8):
            A(f"v_mul_f32 v{T+j}, v{T+j}, v{g0+j}")
        for j in range(8):
            A(f"v_exp_f32 v{T+j}, v{T+j}")
        for j in range(8):
            A(f"v_mul_f32 v{u0+j}, v{g0+j}, v{u0+j}")
        for j in range(8):
            A(f"v_add_f32 v{T+j}, 1.0, v{T+j}")
        for j in range(8):
            A(f"v_rcp_f32 v{T+j}, v{T+j}")
        A("s_nop 0")
        for j in range(8):
            A(f"v_mul_f32 v{u0+j}, v{u0+j}, v{T+j}")
        dst = 40 + 4 * t if t < 2 else 56
        for p in range(4):
            A(f"v_cvt_pk_bf16_f32 v{dst+p}, v{u0+2*p}, v{u0+2*p+1}")
        A(f"buffer_store_dwordx4 {v(dst,4)}, v{vL16p}, {W}, s{sD} offen offset:{1024*t}{SC1}")
    stamp(A, 5)

    A("v_mov_b32 v3, 0")
    nonce_get()
    for r in range(20):
        A(f"v_mov_b32 v{DACC+r}, 0")
    A(f"v_mov_b32 v{E+14}, 0")
    A(f"v_mov_b32 v{E+15}, 0")
    A("s_waitcnt vmcnt(3)")
    A("v_cmp_gt_u32 vcc, 32, v1")
    A("s_nop 1")
    for a in range(2):
        A(f"v_cndmask_b32 v{Q1[a]}, 0, v{Q1[a]}, vcc")
        A(f"v_cndmask_b32 v{Q1[a]+1}, 0, v{Q1[a]+1}, vcc")
        A(f"v_mov_b32 v{Q1[a]+2}, 0")
        A(f"v_mov_b32 v{Q1[a]+3}, 0")
    A("s_barrier")
    stamp(A, 6)

    def rdK0(o): return f"ds_read_b128 {v(K0,4)}, v{vK0} offset:{o}"
    def rdK1(o): return f"ds_read_b64 {v(K1,2)}, v{vK1} offset:{o}"
    def rdV(o):
        if "p2noexec" in DBG:
            return [f"ds_read_b128 {v(V0,4)}, v{vV} offset:{o}", f"ds_read_b128 {v(V1,4)}, v{vV} offset:{o+640}"]
        return [f"s_mov_b64 exec, s[{sVm}:{sVm+1}]",
                f"ds_read_b128 {v(V0,4)}, v{vV} offset:{o}",
                f"ds_read_b128 {v(V1,4)}, v{vV} offset:{o+640}",
                "s_mov_b64 exec, -1"]

    A(rdK0(0)); A(rdK1(0))
    A("s_waitcnt lgkmcnt(0)")
    A(mfma32(S[0], K0, Q0[0], "0"))
    A(mfma32(S[0], K1, Q1[0]))

    def valu_groups(cur):
        vl = []
        for i in range(8):
            vl.append(f"v_exp_f32 v{E+2*i}, v{cur+2*i}")
            vl.append(f"v_exp_f32 v{E+2*i+1}, v{cur+2*i+1}")
            j = (i - 1) % 8
            vl.append(f"v_cvt_pk_bf16_f32 v{P+j}, v{E+2*j}, v{E+2*j+1}")
        return [vl[0:6], vl[6:12], vl[12:18], vl[18:24]]

    sM0Ag, sM0Agp = 68, 50
    sM0Bg, sM0Bgp = 52, 53
    sKB0, sKB1 = 52, 53
    sDG = 54

    def period(u, beta, cls):
        A0 = A
        if "p2nobeta" in DBG:
            beta = False if True else beta
        def A_(x):
            if "p2novm" in DBG and (x.startswith("buffer_load") or x.startswith("s_add_u32 m0") or x.startswith("s_mov_b32 m0") or x.startswith(f"s_add_u32 s{sWsA},") or x.startswith(f"s_add_u32 s{sWsB},") or x.startswith(f"s_add_u32 s{sActS},")):
                return
            A0(x)
        return period_(u, beta, cls, A_)

    def period_(u, beta, cls, A):
        kofs = (u + 1) * KVSLOT if u < 3 else 0
        g = valu_groups(S[0])
        tr = []
        if beta:
            for c in range(5):
                tr.append(f"ds_read_b64_tr_b16 {v(WF+4*c,2)}, v{vWr} offset:{u*WPER+32*c}")
                tr.append(f"ds_read_b64_tr_b16 {v(WF+4*c+2,2)}, v{vWr} offset:{u*WPER+32*c+8*160}")
        if "noprio" not in DBG: A("s_setprio 1")
        if "prioC" in DBG: A("s_setprio 3")
        A(mfma32(S[1], K0, Q0[1], "0"))
        A(rdK0(kofs))
        if beta:
            A(f"buffer_load_dwordx4 {v(ACT+4*((u+3)%4),4)}, v{vAct}, {W}, s{sActS} offen{SC1}")
        for x in g[0][:3]: A(x)
        if beta:
            A(f"s_add_u32 s{sActS}, s{sActS}, 4096")
        for x in tr[:3]: A(x)
        for x in g[0][3:]: A(x)
        A(mfma32(O[1], V1, P + 4))
        for x in rdV(u * KVSLOT): A(x)
        for x in g[1][:3]: A(x)
        for x in tr[3:6]: A(x)
        for x in g[1][3:]: A(x)
        if "prioC" in DBG: A("s_setprio 2")
        A(mfma32(S[1], K1, Q1[1]))
        A(rdK1(kofs))
        for x in g[2][:3]: A(x)
        for x in tr[6:10]: A(x)
        for x in g[2][3:]: A(x)
        A(f"s_waitcnt lgkmcnt({2 + (7 if beta else 0)})")
        A(mfma32(O[0], V0, P))
        def wm0(bg, bgp):
            if not beta:
                return f"s_add_u32 m0, s{bg}, {u*WPER}"
            if u < 2:
                return f"s_add_u32 m0, s{bgp}, {(u+2)*WPER}"
            return f"s_add_u32 m0, s{bg}, {(u-2)*WPER}"
        A(wm0(sM0Ag, sM0Agp))
        for x in g[3][:3]: A(x)
        A(f"buffer_load_dwordx4 v{vWA}, s[{SPA}:{SPA+3}], s{sWsA} offen lds")
        for x in g[3][3:]: A(x)
        A(f"s_add_u32 s{sWsA}, s{sWsA}, s{sStepA}")
        g = valu_groups(S[1])
        m16 = [mfma16(DACC + 4 * c, WF + 4 * c, ACT + 4 * u) for c in range(5)] if beta else []
        A("s_waitcnt lgkmcnt(0)")
        if "noprio" not in DBG: A("s_setprio 0")
        if "prioC" in DBG: A("s_setprio 1")
        A(mfma32(S[0], K0, Q0[0], "0"))
        for x in g[0][:3]: A(x)
        if beta: A(m16[0])
        for x in g[0][3:]: A(x)
        A(mfma32(O[0], V1, P + 4))
        for x in g[1][:3]: A(x)
        if beta: A(m16[1])
        for x in g[1][3:]: A(x)
        if "prioC" in DBG: A("s_setprio 0")
        A(mfma32(S[0], K1, Q1[0]))
        for x in g[2][:3]: A(x)
        if beta: A(m16[2])
        for x in g[2][3:]: A(x)
        A(mfma32(O[1], V0, P))
        if cls == "W":
            A(wm0(sM0Bg, sM0Bgp))
        elif u < 2:
            A(f"s_add_u32 m0, s{sKB0}, {(u+2)*KVSLOT}")
        else:
            A(f"s_add_u32 m0, s{sKB1}, {(u-2)*KVSLOT}")
        for x in g[3][:2]: A(x)
        if beta: A(m16[3])
        for x in g[3][2:3]: A(x)
        A(f"buffer_load_dwordx4 v{vPB}, s[{SPB}:{SPB+3}], s{sWsB} offen{SC1} lds")
        for x in g[3][3:]: A(x)
        A(f"s_add_u32 s{sWsB}, s{sWsB}, s{sStepB}")
        if beta: A(m16[4])
        if u == 2:
            A(f"v_add_u32 v{vK0}, s{sKd}, v{vK0}")
            A(f"v_add_u32 v{vK1}, s{sKd}, v{vK1}")

    def cond(val, body, wave0=False):
        def b(lb):
            if wave0:
                A("s_cmp_eq_u32 s3, 0")
                A(f"s_cbranch_scc0 {lb}")
            body()
        A.rare([f"s_cmp_eq_u32 s{sP}, {val}"], b)

    def f2_issue():
        A(f"s_lshr_b32 s62, s{sTB64}, 1")
        A("s_lshl_b32 s62, s62, 6")
        A(f"s_add_u32 s62, s62, {F2_OFF}")
        A("v_and_b32 v56, 15, v1")
        A("v_lshlrev_b32 v56, 2, v56")
        A(f"buffer_load_dword v57, v56, {W}, s62 offen sc1")

    def f2_check():
        A(f"v_cmp_ne_u32 vcc, s{sNonce}, v57")
        A("s_nop 0")
        A("s_cmp_eq_u64 vcc, 0")

    def poll_f2():
        poll_pre(A, "f2", f2_issue, f2_check)

    def first_acts():
        for i in range(3):
            A(f"buffer_load_dwordx4 {v(ACT+4*i,4)}, v{vAct}, {W}, s{sActS} offen{SC1}")
            A(f"s_add_u32 s{sActS}, s{sActS}, 4096")

    def signal_f2():
        A(f"s_lshl_b32 s61, s{sTB}, 4")
        A(f"s_add_u32 s61, s61, s{sCG}")
        A("s_lshl_b32 s61, s61, 2")
        A(f"s_add_u32 s61, s61, {F2_OFF}")
        A(f"v_mov_b32 v2, s{sNonce}")
        A("v_mov_b32 v3, 0")
        A("s_mov_b64 exec, 1")
        A(f"buffer_store_dword v2, v3, {W}, s61 offen sc1")
        A("s_mov_b64 exec, -1")

    def switch_kind(cls):
        A(f"v_mov_b32 v{vWA}, v{vWAm}")
        for k in range(4):
            A(f"s_mov_b32 s{SPA+k}, s{SWO+k}")
        A(f"s_mul_i32 s{sWsA}, s{sParA}, {40*1280}")
        A(f"s_add_u32 s{sWsA}, s{sWsA}, s{sColb}")
        A(f"s_mov_b32 s{sStepA}, {80*1280}")
        if cls == "W":
            A(f"v_mov_b32 v{vPB}, v{vWBm}")
            for k in range(4):
                A(f"s_mov_b32 s{SPB+k}, s{SWO+k}")
            A(f"s_add_u32 s{sWsB}, s{sColb}, {40*1280}")
            A(f"s_mov_b32 s{sStepB}, {80*1280}")

    def iteration(lbl, beta, cls):
        A.label(lbl)
        for u in range(4):
            if beta and u == 2:
                cond(24, lambda: switch_kind(cls))
            period(u, beta, cls)
            bar = (u % 2 == 1)
            if "p2novm" not in DBG and (beta or bar):
                A(f"s_waitcnt vmcnt({7 if beta else 6})")
            if not beta and u == 1 and cls == "W":
                cond(PB - 4, poll_f2, wave0=True)
            if bar and "p2nobar" not in DBG:
                A("s_barrier")
            if not beta:
                if u == 1:
                    cond(PB - 4, first_acts)
                    if cls == "W":
                        cond(PB - 8, f2_issue, wave0=True)
                if u == 3 and cls == "W":
                    cond(0, signal_f2, wave0=True)
            else:
                if u == 0:
                    def disable():
                        A(f"v_mov_b32 v{vAct}, 0x80000000")
                    cond(PB + NB - 4, disable)
        A(f"s_add_u32 s{sP}, s{sP}, 4")
        A(f"s_mov_b32 s{sGp}, s{sG}")
        A(f"s_add_u32 s{sG}, s{sG}, {4*WPER}")
        A(f"s_cmp_eq_u32 s{sG}, {12*WPER}")
        A(f"s_cselect_b32 s{sG}, 0, s{sG}")
        A(f"s_add_u32 s{sM0Ag}, s{sM0A}, s{sG}")
        A(f"s_add_u32 s{sM0Agp}, s{sM0A}, s{sGp}")
        if cls == "W":
            A(f"s_add_u32 s{sM0Bg}, s{sM0B}, s{sG}")
            A(f"s_add_u32 s{sM0Bgp}, s{sM0B}, s{sGp}")
        else:
            A(f"s_sub_u32 s{sKB0}, s{sKB0}, s{sKd}")
            A(f"s_add_u32 s{sKB1}, s{sKB1}, s{sKd}")
        A(f"v_add_u32 v{vV}, s{sKd}, v{vV}")
        A(f"s_sub_u32 s{sKd}, 0, s{sKd}")
        if beta:
            A(f"s_sub_u32 s{sDG}, s{sG}, s{sGp}")
            A(f"v_add_u32 v{vWr}, s{sDG}, v{vWr}")

    def p2_loops(cls):
        A(f"s_mov_b32 s{sM0Ag}, s{sM0A}")
        A(f"s_mov_b32 s{sM0Agp}, s{sM0A}")
        if cls == "W":
            A(f"s_mov_b32 s{sM0Bg}, s{sM0B}")
            A(f"s_mov_b32 s{sM0Bgp}, s{sM0B}")
        else:
            A(f"s_mov_b32 s{sKB0}, s{sM0B}")
            A(f"s_add_u32 s{sKB1}, s{sM0B}, {4*KVSLOT}")
        iteration(f"L_alpha{cls}", False, cls)
        A(f"s_cmp_lt_u32 s{sP}, {PB}")
        A(f"s_cbranch_scc1 L_alpha{cls}")
        A(f"s_lshl_b32 s61, s{sStepA}, 1")
        A(f"s_sub_u32 s{sWsA}, s{sWsA}, s61")
        if cls == "W":
            A(f"s_lshl_b32 s61, s{sStepB}, 1")
            A(f"s_sub_u32 s{sWsB}, s{sWsB}, s61")
        iteration(f"L_beta{cls}", True, cls)
        A(f"s_cmp_lt_u32 s{sP}, 32")
        A(f"s_cbranch_scc1 L_beta{cls}")

    A("s_nop 7\ns_nop 7")
    A("s_cmp_lt_u32 s3, 2")
    A("s_cbranch_scc1 L_p2W")
    p2_loops("K")
    A("s_branch L_p2end")
    A.label("L_p2W")
    p2_loops("W")
    A.label("L_p2end")
    A("s_setprio 0")
    stamp(A, 7)
    A(f"v_cvt_pk_bf16_f32 v{P+7}, v{E+14}, v{E+15}")
    for q in (30, 31):
        A(f"s_add_u32 m0, s{sM0A}, {(q%12)*WPER}")
        A("s_nop 0")
        A(f"buffer_load_dwordx4 v{vWA}, s[{SPA}:{SPA+3}], s{sWsA} offen lds")
        A(f"s_add_u32 s{sWsA}, s{sWsA}, s{sStepA}")
    l = A.newlabel("L_w31")
    A(f"s_cmp_eq_u32 s{sIsW}, 0")
    A(f"s_cbranch_scc1 {l}")
    for q in (30, 31):
        A(f"s_add_u32 m0, s{sM0B}, {(q%12)*WPER}")
        A("s_nop 0")
        A(f"buffer_load_dwordx4 v{vPB}, s[{SPB}:{SPB+3}], s{sWsB} offen lds")
        A(f"s_add_u32 s{sWsB}, s{sWsB}, s{sStepB}")
    A.label(l)
    A(f"s_mul_i32 s61, s{sTile3}, {96*1024}")
    A(f"s_lshl_b32 s62, s{sPar}, 11")
    A("s_add_u32 s61, s61, s62")
    A(f"s_add_u32 s61, s61, {H_OFF + NB*4096}")
    A(mfma32(O[1], V1, P + 4))
    for i in range(24 - NB):
        A(f"buffer_load_dwordx4 {v(ACT+4*i,4)}, v{vActReal}, {W}, s61 offen{SC1}")
        A("s_add_u32 s61, s61, 4096")
    A("s_nop 7\ns_nop 7")
    A("s_mul_i32 s61, s3, 3072")
    A(f"s_add_u32 s61, s61, {XCH}")
    A(f"v_add_u32 v2, s61, v{vL16p}")
    A(f"s_cmp_eq_u32 s{sKH}, 0")
    A("s_cbranch_scc1 L_x0")
    for i in range(3):
        A(f"ds_write_b128 v2, {v(O[0]+4*i,4)} offset:{1024*i}")
    A("s_waitcnt lgkmcnt(0)")
    for r in range(12):
        A(f"v_mov_b32 v{O[0]+r}, v{O[1]+r}")
    A("s_branch L_x1")
    A.label("L_x0")
    for i in range(3):
        A(f"ds_write_b128 v2, {v(O[1]+4*i,4)} offset:{1024*i}")
    A("s_waitcnt lgkmcnt(0)")
    A.label("L_x1")
    A("s_barrier")
    A("s_xor_b32 s61, s3, 4")
    A("s_mul_i32 s61, s61, 3072")
    A(f"s_add_u32 s61, s61, {XCH}")
    A(f"v_add_u32 v2, s61, v{vL16p}")
    for i in range(3):
        A(f"ds_read_b128 {v(64+4*i,4)}, v2 offset:{1024*i}")
    A("s_waitcnt lgkmcnt(0)")
    OO = O[0]
    for r in range(12):
        A(f"v_add_f32 v{OO+r}, v{OO+r}, v{64+r}")
    A(f"v_mov_b32 v80, v{OO+8}")
    A(f"v_mov_b32 v81, v{OO+8}")
    A("s_nop 1")
    A("v_permlane32_swap_b32 v80, v81")
    A("s_nop 1")
    A("v_rcp_f32 v81, v81")
    A("s_nop 0")
    A(f"v_mul_f32 v81, v81, v{vGt}")
    for r in range(12):
        A(f"v_mul_f32 v{OO+r}, v81, v{OO+r}")
    for p in range(6):
        A(f"v_cvt_pk_bf16_f32 v{84+p}, v{OO+2*p}, v{OO+2*p+1}")
    A("v_mov_b32 v90, 0\nv_mov_b32 v91, 0")
    sTq = 61
    A(f"s_add_u32 s{sTq}, s{sQT}, s{sKH}")
    A(f"s_mul_i32 s62, s{sTq}, 48")
    A(f"s_add_u32 s63, s62, s{sHead}")
    A("s_lshl_b32 s63, s63, 10")
    A(f"s_add_u32 s63, s63, {O_OFF}")
    A(f"buffer_store_dwordx4 {v(84,4)}, v{vL16p}, {W}, s63 offen{SC1}")
    A(f"s_lshr_b32 s63, s{sHead}, 1")
    A("s_add_u32 s63, s63, 32")
    A("s_add_u32 s63, s63, s62")
    A("s_lshl_b32 s63, s63, 10")
    A(f"s_and_b32 s62, s{sHead}, 1")
    A("s_lshl_b32 s62, s62, 9")
    A("s_add_u32 s63, s63, s62")
    A(f"s_add_u32 s63, s63, {O_OFF}")
    A("s_mov_b32 exec_hi, 0")
    A(f"buffer_store_dwordx4 {v(88,4)}, v{vL16p}, {W}, s63 offen{SC1}")
    A("s_mov_b32 exec_hi, -1")
    sF3 = 35
    A(f"s_lshl_b32 s{sF3}, s{sTq}, 5")
    A(f"s_add_u32 s{sF3}, s{sF3}, s{sHead}")
    A(f"s_lshl_b32 s{sF3}, s{sF3}, 2")
    A(f"s_add_u32 s{sF3}, s{sF3}, {F3_OFF}")
    stamp(A, 8)

    def consume(qs, actreg):
        n = len(qs)

        def rd(i):
            base = WF2[i % 2]
            o = (qs[i] % 12) * WPER
            out = []
            for c in range(5):
                for hf in range(2):
                    oo = o + 32 * c + 1280 * hf
                    a, oo = (vW0, oo) if oo < 65536 else (vW1, oo - 61440)
                    out.append(f"ds_read_b64_tr_b16 {v(base+4*c+2*hf,2)}, v{a} offset:{oo}")
            return out
        for x in rd(0): A(x)
        for i in range(n):
            if i + 1 < n:
                for x in rd(i + 1): A(x)
                A("s_waitcnt lgkmcnt(10)")
            else:
                A("s_waitcnt lgkmcnt(0)")
            vm = actreg(i)
            if vm[1] is not None:
                A(f"s_waitcnt vmcnt({vm[1]})")
            for c in range(5):
                A(mfma16(DACC + 4 * c, WF2[i % 2] + 4 * c, vm[0]))

    consume(list(range(NB, 24)), lambda i: (ACT + 4 * i, 2 + (24 - NB - 1 - i)))
    A(f"v_mov_b32 v2, s{sNonce}")
    A("v_mov_b32 v3, 0")
    A("s_waitcnt vmcnt(0)")
    A("s_mov_b64 exec, 1")
    A(f"buffer_store_dword v2, v3, {W}, s{sF3} offen sc1")
    A("s_mov_b64 exec, -1")
    A(f"v_sub_f32 v56, 1.0, v{vG2}")
    A("s_nop 3")
    for r in range(20):
        A(f"v_mul_f32 v{DACC+r}, v56, v{DACC+r}")
    A("s_barrier")
    for i in range(4):
        q = 32 + i
        A(f"s_mul_i32 s61, s{sParA}, {80*1280}")
        A(f"s_add_u32 s61, s61, {i*160*1280}")
        A(f"s_add_u32 s61, s61, s{sColb}")
        A(f"s_add_u32 m0, s{sM0A}, {(q%12)*WPER}")
        A("s_nop 0")
        A(f"buffer_load_dwordx4 v{vWAr}, s[{SWO}:{SWO+3}], s61 offen lds")
    l = A.newlabel("L_rb")
    A(f"s_cmp_eq_u32 s{sIsW}, 0")
    A(f"s_cbranch_scc1 {l}")
    for i in range(4):
        q = 32 + i
        A(f"s_add_u32 s61, s{sColb}, {(80 + i*160)*1280}")
        A(f"s_add_u32 m0, s{sM0B}, {(q%12)*WPER}")
        A("s_nop 0")
        A(f"buffer_load_dwordx4 v{vWBr}, s[{SWO}:{SWO+3}], s61 offen lds")
    A.label(l)
    l = A.newlabel("L_f3")
    A("s_cmp_eq_u32 s3, 0")
    A(f"s_cbranch_scc0 {l}")
    A("v_lshlrev_b32 v2, 2, v1")

    def issue():
        A(f"buffer_load_dword v3, v2, {W}, s62 offen sc1")

    def check():
        A(f"v_cmp_ne_u32 vcc, s{sNonce}, v3")
        A("s_nop 0")
        A("s_cmp_eq_u64 vcc, 0")
    A(f"s_lshl_b32 s62, s{sTB64}, 8")
    A(f"s_add_u32 s62, s62, {F3_OFF}")
    spin(A, "f3", issue, check)
    A.label(l)
    A("s_barrier")
    stamp(A, 9)
    A(f"s_mul_i32 s61, s{sTile3}, {48*1024}")
    A(f"s_lshl_b32 s62, s{sPar}, 11")
    A("s_add_u32 s61, s61, s62")
    A(f"s_add_u32 s61, s61, {O_OFF}")
    for i in range(12):
        A(f"buffer_load_dwordx4 {v(ACTX+4*i,4)}, v{vActReal}, {W}, s61 offen{SC1}")
        A("s_add_u32 s61, s61, 4096")
    consume(list(range(24, 32)), lambda i: (ACTX + 4 * i, 11 - i))
    A("s_waitcnt vmcnt(0)")
    A("s_barrier")
    consume(list(range(32, 36)), lambda i: (ACTX + 4 * (8 + i), None))
    stamp(A, 10)
    A("s_nop 7")
    A(f"s_mul_i32 s61, s{sT16}, 5120")
    A(f"s_add_u32 s61, s61, {XCH}")
    A(f"v_add_u32 v56, s61, v{vL16p}")
    A(f"s_cmp_eq_u32 s{sPar}, 0")
    A("s_cbranch_scc1 L_red")
    for t in range(5):
        A(f"ds_write_b128 v56, {v(DACC+4*t,4)} offset:{1024*t}")
    A("s_waitcnt lgkmcnt(0)")
    A("s_barrier")
    prof_end(A)
    A("s_endpgm")
    A.label("L_red")
    A("s_barrier")
    for t in range(5):
        A(f"ds_read_b128 {v(32+4*t,4)}, v56 offset:{1024*t}")
    A("s_waitcnt lgkmcnt(0)")
    for r in range(20):
        A(f"v_add_f32 v{DACC+r}, v{DACC+r}, v{32+r}")
    A("v_and_b32 v57, 15, v1")
    A("v_mul_u32_u24 v57, 1280, v57")
    A("v_lshrrev_b32 v2, 4, v1")
    A("v_lshl_add_u32 v57, v2, 3, v57")
    A(f"s_lshl_b32 s61, s{sTB64}, 6")
    A(f"s_lshl_b32 s62, s{sT16}, 4")
    A("s_add_u32 s61, s61, s62")
    A("s_mul_i32 s61, s61, 1280")
    A(f"s_add_u32 s61, s61, s{sColb}")
    for t in range(5):
        A(f"v_cvt_pk_bf16_f32 v{64+2*t}, v{DACC+4*t}, v{DACC+4*t+1}")
        A(f"v_cvt_pk_bf16_f32 v{64+2*t+1}, v{DACC+4*t+2}, v{DACC+4*t+3}")
        A(f"buffer_store_dwordx2 {v(64+2*t,2)}, v57, s[{SOUT}:{SOUT+3}], s61 offen offset:{32*t}")
    prof_end(A)
    A("s_endpgm")
    return A.text()


HEADER = """; gated mix of MHA block and GEGLU FFN -- single persistent kernel, 256 workgroups x 512 threads
"""


def build():
    out = HEADER
    out += f"; @launch grid=(256,1,1) block=(512,1,1) lds={LDS_SZ}\n"
    out += '.amdgcn_target "amdgcn-amd-amdhsa--gfx950"\n.text\n'
    out += f".globl {KNAME}\n" + gen()
    out += kernel_desc(KNAME, 256)
    return out


if __name__ == "__main__":
    if "--prof" in sys.argv:
        PROF = True
        sys.argv.remove("--prof")
    dst = sys.argv[1] if len(sys.argv) > 1 else f"cdna_kernels/{NAME}.s"
    open(dst, "w").write(build())
    print("wrote", dst)
```

```python
import sys, os, struct
from asmlib import *

NAME = "gated_mix__mha_block__glu_gated_geglu__prompt"
KNAME = NAME + "_kernel"

QF_OFF = 0
QF_SZ = 32 * 64 * 1280
KV_OFF = QF_OFF + QF_SZ
KV_SZ = 32 * 64 * 2560
H_OFF = KV_OFF + KV_SZ
H_SZ = 64 * 96 * 1024
O_OFF = H_OFF + H_SZ
O_SZ = 64 * 48 * 1024
G_OFF = O_OFF + O_SZ
G_SZ = 8192
F1_OFF = G_OFF + G_SZ
F2_OFF = F1_OFF + 1024
F3_OFF = F2_OFF + 1024
F_END = F3_OFF + 8192
PROF_OFF = F_END
PROF_SZ = 256 * 8 * 64
WS_USED = PROF_OFF + PROF_SZ
PROF = False
DBG = set(os.environ.get("DBG", "").split(","))
SC1 = " sc1"
OUTF = " sc1" if "outsc1" in DBG else (" nt" if "outnt" in DBG else (" sc0 sc1" if "outsc01" in DBG else ""))

LOG2E = 1.4426950408889634
QSCALE = LOG2E * (20 ** -0.5)
SPIN_MAX = 1 << 14


def f2u(x):
    return struct.unpack("<I", struct.pack("<f", x))[0]


def hx(x):
    return hex(x & 0xffffffff)


P_AX, P_WQKV, P_WO, P_BX, P_WG, P_WU, P_WD, P_GW = 36, 38, 40, 42, 44, 46, 48, 50
P_OUT, P_WS, P_DBG = 52, 54, 34
SX, SWQ, SWG, SWU, SW1, SWS, SDB = 4, 8, 12, 16, 20, 24, 28
SWD, SWO, SOUT, SPA, SPB = 4, 8, 12, 16, 20
SK = 40
sTB, sCG, sTT, sWC, sNonce = 56, 57, 58, 59, 60
T0, T1, T2, T3 = 61, 62, 63, 64
sSpin = 75
NSTAMP = 12
STAMP0 = 76

XRING = 0
WRING = 49152
WSLOT = 24640
UPOFF = 12288 + 32
KVB = 122880
KVSLOT = 5120
XCH = KVB + 2 * KVSLOT
LDS_SZ = 163840
WPER = 10240
PB, NB = 12, 20

vLane = 1
vXo, vWoQ, vWo0, vWo1, vWo2 = 4, 5, 6, 7, 14
vXa, vWaQ, vWaG = 8, 12, 15
XA, XB = 32, 40
ACC = 64
WA, WB = 112, 136
vN = 62
K0, K1, V0, V1 = 16, 20, 24, 28
P = 48
S = [64, 80]
E = 96
DACC = 112
WF = 132
Q0 = [160, 168]
Q1 = [164, 172]
vGt, vL16p, vT8p, vK0, vK1, vV = 176, 177, 178, 179, 180, 181
vActReal, vAct, vWr, vWA, vPB, vG2 = 182, 183, 184, 185, 186, 187
vWAm, vWBm, vWAr, vWBr, vKVo, vW0, vW1 = 188, 189, 190, 191, 192, 193, 194
vWB = 195
ACT = 200
O = [216, 232]
ACTX = 64
WF2 = [132, 16]
XCL = [16, 20, 24, 28, 48, 52, 160, 164, 168, 172] + list(range(200, 256, 4))
NXC = 0 if 'noxc' in DBG else 6


def XC(k, j):
    return XCL[4 * k + j]


CLK = "s_memtime" if "clk" in DBG else "s_memrealtime"


def stamp(A, idx, alt=False):
    if "gust" in DBG and idx in (8, 9, 10) and not alt:
        return
    if "gust" not in DBG and alt:
        return
    if PROF:
        A(f"{CLK} s[{STAMP0+2*idx}:{STAMP0+2*idx+1}]")


def prof_end(A):
    if not PROF:
        return
    A(f"{CLK} s[{STAMP0+2*(NSTAMP-1)}:{STAMP0+2*(NSTAMP-1)+1}]")
    A("s_waitcnt lgkmcnt(0)")
    A("s_lshl_b32 s61, s2, 3")
    A("s_add_u32 s61, s61, s3")
    A("s_lshl_b32 s61, s61, 6")
    A(f"s_add_u32 s61, s61, {PROF_OFF}")
    for i in range(NSTAMP):
        A(f"v_mov_b32 v{4+i}, s{STAMP0+2*i}")
    A("v_mov_b32 v0, 0")
    A("s_mov_b64 exec, 1")
    for i in range(3):
        A(f"buffer_store_dwordx4 v[{4+4*i}:{7+4*i}], v0, s[{SWS}:{SWS+3}], s61 offen offset:{16*i}")


def spin(A, name, issue, check):
    l0, l1 = A.newlabel("L_sp" + name), A.newlabel("L_spd" + name)
    A(f"s_mov_b32 s{sSpin}, 0")
    A.label(l0)
    issue()
    A("s_waitcnt vmcnt(0)")
    check()
    A(f"s_cbranch_scc1 {l1}")
    A(f"s_add_u32 s{sSpin}, s{sSpin}, 1")
    A(f"s_cmp_ge_u32 s{sSpin}, {SPIN_MAX}")
    A(f"s_cbranch_scc1 {l1}")
    A("s_sleep 2")
    A(f"s_branch {l0}")
    A.label(l1)


def poll_pre(A, name, issue, check):
    l = A.newlabel("L_pp" + name)
    check()
    A(f"s_cbranch_scc1 {l}")
    spin(A, name, issue, check)
    A.label(l)


W = f"s[{SWS}:{SWS+3}]"


def gen():
    A = Asm("k_")
    A(f".p2align 8\n.type {KNAME},@function")
    A.label(KNAME)
    stamp(A, 0)
    A("s_cmp_ge_u32 s2, 256")
    A("s_cbranch_scc0 L_go")
    A("s_endpgm")
    A.label("L_go")
    A("s_load_dwordx16 s[36:51], s[0:1], 0")
    A("s_load_dwordx2 s[52:53], s[0:1], 64")
    A("s_load_dwordx2 s[34:35], s[0:1], 72")
    A("s_load_dwordx2 s[54:55], s[0:1], 80")
    A("v_lshrrev_b32 v2, 6, v0")
    A("v_and_b32 v1, 63, v0")
    A("s_nop 0")
    A("v_readfirstlane_b32 s3, v2")
    A("s_and_b32 s61, s2, 7")
    A("s_lshr_b32 s62, s2, 3")
    A(f"s_lshr_b32 s{sTB}, s61, 1")
    A(f"s_lshl_b32 s{sTB}, s{sTB}, 2")
    A("s_and_b32 s63, s62, 3")
    A(f"s_add_u32 s{sTB}, s{sTB}, s63")
    A(f"s_and_b32 s{sCG}, s61, 1")
    A(f"s_lshl_b32 s{sCG}, s{sCG}, 3")
    A("s_lshr_b32 s63, s62, 2")
    A(f"s_add_u32 s{sCG}, s{sCG}, s63")
    A(f"s_and_b32 s{sTT}, s3, 3")
    A(f"s_lshr_b32 s{sWC}, s3, 2")
    A("v_lshrrev_b32 v16, 3, v1")
    A("s_lshl_b32 s61, s3, 3")
    A("v_add_u32 v16, s61, v16")
    A("v_lshrrev_b32 v17, 1, v16")
    A("v_and_b32 v17, 7, v17")
    A("v_and_b32 v18, 7, v1")
    A("v_xor_b32 v17, v17, v18")
    A("v_lshlrev_b32 v17, 4, v17")
    A("v_mul_u32_u24 v16, 1280, v16")
    A(f"v_add_u32 v{vXo}, v16, v17")
    A("v_lshrrev_b32 v16, 4, v1")
    A("v_lshlrev_b32 v17, 2, v16")
    A("v_and_b32 v18, 15, v1")
    A("v_xor_b32 v17, v17, v18")
    A("v_lshlrev_b32 v17, 4, v17")
    A("s_lshl_b32 s61, s3, 2")
    A("v_add_u32 v16, s61, v16")
    A("v_mul_u32_u24 v16, 3840, v16")
    A(f"v_add_u32 v{vWoQ}, v16, v17")
    sXs, sXs2, sWs, sWs2, sGs, sGx = 32, 33, 66, 67, 72, 73
    sM0x, sM0q, sM0g0, sM0g1, sM0g2 = 74, 65, 100, 101, 71
    sStage, sSlot = 69, 70
    sXslot, sWslot, sDX, sDW = 44, 45, 46, 47
    A(f"s_mul_i32 s{sXs}, s{sTB}, {128*1280}")
    A(f"s_mul_i32 s61, s{sCG}, 240")
    A(f"s_sub_u32 s62, s{sCG}, 11")
    A("s_lshl_b32 s62, s62, 8")
    A("s_add_u32 s62, s62, 2560")
    A(f"s_cmp_lt_u32 s{sCG}, 11")
    A(f"s_cselect_b32 s{sWs}, s61, s62")
    A(f"s_lshl_b32 s{sM0x}, s3, 10")
    A(f"s_add_u32 s{sM0q}, s{sM0x}, {WRING}")
    A("v_lshlrev_b32 v2, 2, v1")
    A("s_waitcnt lgkmcnt(0)")
    srd(A, SX, P_AX, 2048 * 1280)
    srd(A, SWQ, P_WQKV, 640 * 3840)

    def dma_groups(g):
        slot = g % 3
        k = g if g < 10 else g - 10
        out = []
        xs = slot * 16384
        ws_ = slot * WSLOT
        for half in range(2):
            if g >= 10 and k < NXC:
                continue
            out.append([f"s_add_u32 m0, s{sM0x}, {xs + 8192*half}",
                        f"s_add_u32 s{sXs2}, s{sXs}, {k*128 + 81920*half}",
                        f"buffer_load_dwordx4 v{vXo}, s[{SX}:{SX+3}], s{sXs2} offen lds"])
        if g < 10:
            for half in range(2):
                out.append([f"s_add_u32 m0, s{sM0q}, {ws_ + 8192*half}",
                            f"s_add_u32 s{sWs2}, s{sWs}, {(k*64 + 32*half)*3840}",
                            f"buffer_load_dwordx4 v{vWoQ}, s[{SWQ}:{SWQ+3}], s{sWs2} offen lds"])
        else:
            for (sm, vo, sr) in ((sM0g0, vWo0, SWG), (sM0g1, vWo1, SW1), (sM0g2, vWo2, SWU)):
                out.append([f"s_add_u32 m0, s{sm}, {ws_}",
                            f"s_add_u32 s{sWs2}, s{sGs}, {k*64*3072}",
                            f"buffer_load_dwordx4 v{vo}, s[{sr}:{sr+3}], s{sWs2} offen lds"])
        if "p1nodma" in DBG and g >= 3:
            return [[] for _ in out]
        return out

    srd(A, SDB, P_DBG, 256)
    A("s_or_b32 s61, s2, s3")
    A("s_cmp_eq_u32 s61, 0")

    def pub(lb):
        A("s_memrealtime s[62:63]")
        A("s_waitcnt lgkmcnt(0)")
        A("s_or_b32 s62, s62, 1")
        A("v_mov_b32 v16, s62")
        A("v_mov_b32 v17, 0")
        A("s_mov_b64 exec, 1")
        A(f"buffer_store_dword v16, v17, s[{SDB}:{SDB+3}], 0 offen sc1")
        A("s_mov_b64 exec, -1")
    A.rare([], pub)
    for st in range(3):
        for grp in dma_groups(st):
            for x in grp:
                A(x)
    SGW = 68
    srd(A, SGW, P_GW, 1280)
    vGX, vGW = 100, 106
    sTOK = 33
    sGoff = 0
    A(f"s_lshl_b32 s{sTOK}, s{sTB}, 7")
    A(f"s_lshl_b32 s61, s{sCG}, 3")
    A(f"s_add_u32 s{sTOK}, s{sTOK}, s61")
    A(f"s_add_u32 s{sTOK}, s{sTOK}, s3")
    A(f"s_lshl_b32 s{sGoff}, s{sTOK}, 2")
    A(f"s_add_u32 s{sGoff}, s{sGoff}, {G_OFF}")
    A(f"s_mul_i32 s61, s{sTOK}, 1280")
    for m in range(5):
        A(f"buffer_load_dword v{vGX+m}, v2, s[{SX}:{SX+3}], s61 offen offset:{256*m}")
    for m in range(5):
        A(f"buffer_load_dword v{vGW+m}, v2, s[{SGW}:{SGW+3}], 0 offen offset:{256*m}")
    srd(A, SWG, P_WG, 640 * 3072)
    srd(A, SWU, P_WU, 640 * 3072)
    NPF = 0 if "nopf" in DBG else 1

    def prefetch():
        A("s_mov_b32 s60, s4\ns_mov_b32 s61, s5")
        A(f"s_mov_b32 s62, {2048*1280}")
        A("s_mov_b32 s64, 10240")
        for (wmin, lo, hi, sz, ch) in ((2, 8, 9, 640*3840, 9600), (4, 12, 13, 640*3072, 7680), (5, 16, 17, 640*3072, 7680),
                                       (6, 48, 49, 1536*1280, 7680), (7, 40, 41, 640*1280, 3200)):
            A(f"s_cmp_ge_u32 s3, {wmin}")
            A(f"s_cselect_b32 s60, s{lo}, s60")
            A(f"s_cselect_b32 s61, s{hi}, s61")
            A(f"s_cselect_b32 s62, {sz}, s62")
            A(f"s_cselect_b32 s64, {ch}, s64")
        A("s_and_b32 s61, s61, 0xffff")
        A("s_mov_b32 s63, 0x20000")
        A("s_cmp_lt_u32 s3, 4")
        A("s_cselect_b32 s75, 1, 0")
        A("s_and_b32 s75, s75, s3")
        A("s_lshl_b32 s75, s75, 13")
        A("v_lshlrev_b32 v3, 7, v1")
        A("v_add_u32 v3, s75, v3")
        A("v_cmp_gt_u32 vcc, s64, v3")
        A("s_mul_i32 s64, s64, s2")
        A("s_mov_b64 exec, vcc")
        A("buffer_load_dword v59, v3, s[60:63], s64 offen")
        A("s_mov_b64 exec, -1")
    if NPF and "pflate" not in DBG:
        prefetch()
    srd(A, SWS, P_WS, WS_USED)
    A("s_cmp_lt_u32 s3, 4")
    for k in range(4):
        A(f"s_cselect_b32 s{SW1+k}, s{SWG+k}, s{SWU+k}")

    A("v_and_b32 v16, 31, v1")
    A("v_lshrrev_b32 v17, 5, v1")
    A("v_lshrrev_b32 v18, 1, v16")
    A("v_and_b32 v18, 7, v18")
    A(f"s_lshl_b32 s61, s{sTT}, 5")
    A("v_add_u32 v19, s61, v16")
    A("v_lshlrev_b32 v19, 7, v19")
    for j in range(4):
        A(f"v_add_u32 v20, {2*j}, v17")
        A("v_xor_b32 v20, v20, v18")
        A("v_lshlrev_b32 v20, 4, v20")
        A(f"v_add_u32 v{vXa+j}, v19, v20")
    A("v_and_b32 v18, 15, v1")
    A("v_lshrrev_b32 v19, 2, v18")
    A("v_lshrrev_b32 v20, 4, v1")
    A(f"s_cmp_lt_u32 s{sCG}, 11")
    A("s_cselect_b32 s61, 8, 0")
    A("s_sub_u32 s61, 128, s61")
    A(f"s_mul_i32 s61, s61, s{sWC}")
    A("v_lshrrev_b32 v21, 1, v20")
    A("v_lshl_add_u32 v21, v21, 3, v19")
    A("v_lshlrev_b32 v27, 8, v21")
    A(f"v_add_u32 v27, {WRING}, v27")
    A("v_and_b32 v22, 1, v20")
    A("v_lshlrev_b32 v22, 5, v22")
    A("v_and_b32 v23, 3, v1")
    A("v_lshl_add_u32 v22, v23, 3, v22")
    A("v_add_u32 v22, s61, v22")
    A("v_and_b32 v24, 3, v19")
    A("v_lshlrev_b32 v24, 2, v24")
    for t in range(2):
        A(f"v_add_u32 v25, {64*t}, v22")
        A("v_lshrrev_b32 v26, 4, v25")
        A("v_xor_b32 v26, v26, v24")
        A("v_lshlrev_b32 v26, 4, v26")
        A("v_and_b32 v25, 15, v25")
        A(f"v_add3_u32 v{vWaQ+t}, v27, v26, v25")
    A("v_mul_u32_u24 v21, 192, v21")
    A("v_and_b32 v22, 1, v20")
    A(f"v_mul_u32_u24 v22, {UPOFF}, v22")
    A("v_lshlrev_b32 v23, 3, v23")
    A("v_add3_u32 v21, v21, v22, v23")
    A(f"s_mul_i32 s61, s{sWC}, 96")
    A(f"s_add_u32 s61, s61, {WRING}")
    A(f"v_add_u32 v{vWaG}, s61, v21")
    A("s_add_u32 s61, s3, 8")
    A("s_sub_u32 s62, s3, 4")
    A("s_cmp_lt_u32 s3, 4")
    A("s_cselect_b32 s63, s61, s62")
    A(f"s_cselect_b32 s64, 0, {UPOFF}")
    A(f"s_lshl_b32 s{sM0g1}, s63, 10")
    A(f"s_add_u32 s{sM0g1}, s{sM0g1}, s64")
    A(f"s_add_u32 s{sM0g1}, s{sM0g1}, {WRING}")
    A("s_add_u32 s64, s3, 4")
    A(f"s_lshl_b32 s{sM0g2}, s64, 10")
    A(f"s_add_u32 s{sM0g2}, s{sM0g2}, {WRING + UPOFF}")
    A(f"s_lshl_b32 s{sM0g0}, s3, 10")
    A(f"s_add_u32 s{sM0g0}, s{sM0g0}, {WRING}")
    for (vd, sj) in ((vWo0, 3), (vWo1, 63), (vWo2, 64)):
        A(f"s_lshl_b32 s61, s{sj}, 6")
        A("v_add_u32 v21, s61, v1")
        magic_div(A, 22, 21, 12, 768, 62)
        A("v_mul_u32_u24 v23, 12, v22")
        A("v_sub_u32 v23, v21, v23")
        A("v_lshlrev_b32 v23, 4, v23")
        A("v_mul_u32_u24 v22, 3072, v22")
        A(f"v_add_u32 v{vd}, v22, v23")
    A(f"s_mul_i32 s{sGs}, s{sCG}, 192")

    A(f"v_lshlrev_b32 v{vL16p}, 4, v1")
    A(f"v_and_b32 v16, 31, v1")
    A(f"v_lshlrev_b32 v{vT8p}, 3, v16")
    A(f"v_lshlrev_b32 v{vGt}, 2, v16")
    A(f"s_mul_i32 s61, s{sWC}, 2560")
    A(f"s_add_u32 s61, s61, {KVB + 4*KVSLOT}")
    A(f"v_add_u32 v{vK0}, s61, v{vL16p}")
    A(f"v_add_u32 v{vK1}, s61, v{vT8p}")
    A(f"v_add_u32 v{vK1}, 1024, v{vK1}")
    A("v_lshrrev_b32 v17, 5, v1")
    A("v_mul_u32_u24 v17, 320, v17")
    A("v_lshlrev_b32 v18, 4, v16")
    A("v_add3_u32 v17, v17, v18, s61")
    A(f"v_add_u32 v{vV}, 1280, v17")
    A("s_sub_i32 s61, s3, 2")
    A("s_max_i32 s61, s61, 0")
    A("s_min_i32 s61, s61, 4")
    A("s_lshl_b32 s62, s61, 10")
    A(f"v_add_u32 v{vKVo}, s62, v{vL16p}")
    A(f"v_cmp_le_u32 vcc, 2560, v{vKVo}")
    A(f"v_add_u32 v17, {32*2560-2560}, v{vKVo}")
    A("s_nop 0")
    A(f"v_cndmask_b32 v{vKVo}, v{vKVo}, v17, vcc")
    A("v_lshrrev_b32 v17, 4, v1")
    A("v_lshrrev_b32 v18, 1, v17")
    A("v_lshlrev_b32 v18, 10, v18")
    A("v_and_b32 v19, 1, v17")
    A("v_lshlrev_b32 v19, 9, v19")
    A("v_and_b32 v20, 15, v1")
    A(f"s_and_b32 s61, s{sTT}, 1")
    A("s_lshl_b32 s61, s61, 4")
    A("v_add_u32 v20, s61, v20")
    A("v_lshlrev_b32 v21, 4, v20")
    A(f"v_add3_u32 v{vActReal}, v18, v19, v21")
    A(f"v_mov_b32 v{vAct}, v{vActReal}")
    A(f"v_lshlrev_b32 v{vG2}, 2, v20")
    A("v_lshrrev_b32 v18, 1, v17")
    A("v_lshlrev_b32 v18, 4, v18")
    A("v_and_b32 v19, 1, v17")
    A("v_lshl_add_u32 v18, v19, 2, v18")
    A("v_and_b32 v19, 15, v1")
    A("v_lshrrev_b32 v19, 2, v19")
    A("v_add_u32 v18, v18, v19")
    A("v_mul_u32_u24 v18, 160, v18")
    A("v_and_b32 v19, 3, v1")
    A("v_lshl_add_u32 v18, v19, 3, v18")
    A(f"s_mul_i32 s61, s{sWC}, 5120")
    A(f"v_add_u32 v{vWr}, s61, v18")
    A(f"v_mov_b32 v{vW0}, v{vWr}")
    A(f"v_add_u32 v{vW1}, 61440, v{vWr}")
    A("s_cmp_ge_u32 s3, 5")
    A("s_cselect_b32 s63, 5, 0")
    A("s_sub_u32 s63, s3, s63")
    A("s_add_u32 s64, s3, 3")
    A("s_min_u32 s64, s64, 4")
    for (sj, vh, vm, vr) in ((63, vWA, vWAm, vWAr), (64, vWB, vWBm, vWBr)):
        A(f"s_lshl_b32 s61, s{sj}, 6")
        A("v_add_u32 v22, s61, v1")
        magic_div(A, 23, 22, 10, 320, 62)
        A("v_mul_u32_u24 v24, 10, v23")
        A("v_sub_u32 v24, v22, v24")
        A("v_lshlrev_b32 v24, 4, v24")
        A("v_mul_u32_u24 v25, 1280, v23")
        A(f"v_add_u32 v{vh}, v25, v24")
        A("v_lshrrev_b32 v25, 4, v23")
        A("v_mul_u32_u24 v25, 20, v25")
        A("v_and_b32 v26, 15, v23")
        A("v_add_u32 v25, v25, v26")
        A("v_mul_u32_u24 v25, 1280, v25")
        A(f"v_add_u32 v{vm}, v25, v24")
        A("v_lshrrev_b32 v25, 4, v23")
        A("v_lshlrev_b32 v25, 1, v25")
        A("v_bfe_u32 v26, v23, 2, 1")
        A("v_add_u32 v25, v25, v26")
        A("v_mul_u32_u24 v25, 20, v25")
        A("v_and_b32 v26, 3, v23")
        A("v_add3_u32 v25, v25, v26, 16")
        A("v_mul_u32_u24 v25, 1280, v25")
        A(f"v_add_u32 v{vr}, v25, v24")
    A("s_cmp_lt_u32 s3, 2")
    A("s_cselect_b64 vcc, -1, 0")
    A("s_nop 1")
    A(f"v_cndmask_b32 v{vPB}, v{vKVo}, v{vWB}, vcc")
    ONE2 = 0x3f803f80

    def p2_inits(part):
        if part == 0:
            A("v_and_b32 v56, 31, v1")
            A("v_cmp_eq_u32 vcc, 20, v56")
            A(f"v_mov_b32 v57, {hx(ONE2)}")
            A("s_nop 0")
            A("v_cndmask_b32 v58, 0, v57, vcc")
            for r in range(8):
                A(f"v_mov_b32 v{V0+r}, v58")
            A(f"v_mov_b32 v{K1+2}, {hx(ONE2)}")
            A(f"v_mov_b32 v{K1+3}, 0x3f80")
            for r in range(8):
                A(f"v_mov_b32 v{P+r}, 0")
        else:
            for r in range(32):
                A(f"v_mov_b32 v{O[0]+r}, 0")


    def gate_compute():
        A("v_mov_b32 v56, 0")
        for m in range(5):
            A(f"v_dot2_f32_bf16 v56, v{vGX+m}, v{vGW+m}, v56")
        A("s_nop 3")
        for sh in (1, 2, 4, 8):
            A(f"v_add_f32_dpp v56, v56, v56 row_shr:{sh} row_mask:0xf bank_mask:0xf bound_ctrl:0")
            A("s_nop 1")
        A("v_add_f32_dpp v56, v56, v56 row_bcast:15 row_mask:0xa bank_mask:0xf")
        A("s_nop 1")
        A("v_add_f32_dpp v56, v56, v56 row_bcast:31 row_mask:0xc bank_mask:0xf")
        A("s_nop 1")
        A(f"v_mul_f32 v56, {hx(f2u(-LOG2E))}, v56")
        A("v_exp_f32 v56, v56")
        A("s_nop 0")
        A("v_add_f32 v56, 1.0, v56")
        A("v_rcp_f32 v63, v56")

    if NPF and "pflate" in DBG:
        prefetch()
    A(f"s_waitcnt vmcnt({8+10+NPF})")
    A("s_barrier")
    stamp(A, 1)

    def xoff(g):
        return (g % 3) * 16384

    def woff(g):
        return (g % 3) * WSLOT

    def xreg(setX, g, half, jj):
        k = g if g < 10 else g - 10
        return XC(k, 2 * half + jj) if k < NXC else setX + 4 * jj

    def qkv_reads(setX, setW, g, half):
        r = []
        for jj in range(2):
            j = 2 * half + jj
            r.append(f"ds_read_b128 {v(xreg(setX, g, half, jj),4)}, v{vXa+j} offset:{xoff(g)}")
            for t in range(2):
                d = setW + 8 * jj + 4 * t
                o = woff(g) + j * 4096
                r.append(f"ds_read_b64_tr_b16 {v(d,2)}, v{vWaQ+t} offset:{o}")
                r.append(f"ds_read_b64_tr_b16 {v(d+2,2)}, v{vWaQ+t} offset:{o+1024}")
        return r

    def qkv_mfmas(setX, setW, g, half, vtype):
        m = []
        for jj in range(2):
            for t in range(2):
                a, b = setW + 8 * jj + 4 * t, xreg(setX, g, half, jj)
                if vtype:
                    a, b = b, a
                m.append(mfma32(ACC + 16 * t, a, b, "0" if (g == 0 and half == 0 and jj == 0) else None))
        return m

    def gu_reads(setX, setW, g, half):
        r = []
        for jj in range(2):
            j = 2 * half + jj
            if g - 10 >= NXC:
                r.append(f"ds_read_b128 {v(setX+4*jj,4)}, v{vXa+j} offset:{xoff(g)}")
            for t in range(3):
                d = setW + 12 * jj + 4 * t
                o = woff(g) + j * 3072 + 32 * t
                a = vWaG
                assert o + 768 < 65536
                r.append(f"ds_read_b64_tr_b16 {v(d,2)}, v{a} offset:{o}")
                r.append(f"ds_read_b64_tr_b16 {v(d+2,2)}, v{a} offset:{o+768}")
        return r

    def gu_mfmas(setX, setW, g, half):
        m = []
        for jj in range(2):
            for t in range(3):
                m.append(mfma32(ACC + 16 * t, setW + 12 * jj + 4 * t, xreg(setX, g, half, jj), "0" if (g == 10 and half == 0 and jj == 0) else None))
        return m

    def emit_half(mm, rr, dd, fill=()):
        if "p1noreads" in DBG: rr = []
        if "p1nomfma" in DBG: mm = ["s_nop 0"] * len(mm)
        n = len(mm)
        ng = n - 1
        if 'nghalf' in DBG: ng = max(1, n // 2)
        if 'ngm2' in DBG: ng = max(1, n - 2)
        if 'ngall' in DBG: ng = n
        per = (len(rr) + ng - 1) // ng
        pos = {}
        for i, grp in enumerate(dd):
            p_ = min(n - 1, (i * n) // max(1, len(dd)) + (0 if len(dd) > 2 else 1))
            pos.setdefault(p_, []).append(grp)
        load = [0] * n
        ri = 0
        for i in range(n):
            load[i] += len(rr[ri:ri + per]); ri += per
            load[i] += sum(len(g_) for g_ in pos.get(i, []))
        total = sum(load) + sum(len(g_) for g_ in fill)
        target = total / n
        fpos = [[] for _ in range(n)]
        gi = 0
        for g_ in fill:
            while gi < n - 1 and load[gi] >= target:
                gi += 1
            fpos[gi].append(g_); load[gi] += len(g_)
        ri = 0
        for i, m in enumerate(mm):
            A(m)
            for r in rr[ri:ri + per]:
                A(r)
            ri += per
            for grp in pos.get(i, []):
                for x in grp:
                    A(x)
            for grp in fpos[i]:
                for x in grp:
                    A(x)
        for r in rr[ri:]:
            A(r)

    def stage(g, reads, mfmas, wait, pre=None, post=None, fill0=(), fill1=()):
        d2 = dma_groups(g + 2)[2:] if (3 <= g + 2 <= 19 and g + 2 != 12) else []
        d3 = dma_groups(g + 3)[:2] if g + 3 <= 19 else []
        if g + 3 == 12:
            d3 = dma_groups(12)
        A("s_waitcnt lgkmcnt(0)")
        emit_half(mfmas(XA, WA, g, 0), reads(XB, WB, g, 1), d2, fill0)
        if pre: pre()
        if g == 12: stamp(A, 8, True)
        if g == 18: stamp(A, 9, True)
        wait()
        A("s_barrier")
        if g == 18: stamp(A, 10, True)
        nr = reads(XA, WA, g + 1, 0) if g not in (9, 19) else []
        emit_half(mfmas(XB, WB, g, 1), nr, d3, fill1)
        if post: post()

    def qkv_phase(vtype):
        for r in qkv_reads(XA, WA, 0, 0):
            A(r)
        for g in range(10):
            n = len(dma_groups(g + 2)) + (10 + NPF if g < 2 else 0)
            f0 = [capture(A, gate_compute)] if g == 3 else ()
            stage(g, qkv_reads, lambda x, w, g_, h_: qkv_mfmas(x, w, g_, h_, vtype), lambda n=n: A(f"s_waitcnt vmcnt({n}) lgkmcnt(0)"), fill0=atomic_groups(f0[0]) if f0 else ())

    sCls = 35
    A(f"s_cmp_ge_u32 s{sCG}, 11")
    A("s_cbranch_scc1 L_vtype")
    qkv_phase(False)
    stamp(A, 2)
    A("s_waitcnt lgkmcnt(0)")
    A("s_nop 7\ns_nop 7")
    PK = 32
    sU, sTile, sD = 65, 66, 67
    A(f"s_mul_i32 s{sU}, s{sCG}, 6")
    A(f"s_mul_i32 s61, s{sWC}, 3")
    A(f"s_add_u32 s{sU}, s{sU}, s61")
    A(f"s_lshl_b32 s{sTile}, s{sTB}, 2")
    A(f"s_add_u32 s{sTile}, s{sTile}, s{sTT}")
    A(f"s_add_u32 s61, s{sU}, 1")
    A("s_cmp_lt_u32 s61, 32")
    A(f"s_cselect_b32 s62, {hx(f2u(QSCALE))}, 1.0")
    A(f"s_add_u32 s61, s{sU}, 2")
    A("s_cmp_lt_u32 s61, 32")
    A(f"s_cselect_b32 s63, {hx(f2u(QSCALE))}, 1.0")
    for r in range(32):
        G = r // 4
        A(f"v_mul_f32 v{ACC+r}, s{62 if G < 5 else 63}, v{ACC+r}")
    for p in range(16):
        A(f"v_cvt_pk_bf16_f32 v{PK+p}, v{ACC+2*p}, v{ACC+2*p+1}")
    vL16x = 58
    A(f"v_xor_b32 v{vL16x}, 512, v{vL16p}")

    def dest(a):
        A(f"s_add_u32 s61, s{sU}, {a}")
        A("s_lshl_b32 s62, s61, 6")
        A(f"s_add_u32 s62, s62, s{sTile}")
        A("s_mul_i32 s63, s62, 1280")
        A(f"s_sub_u32 s62, s62, {32*64}")
        A("s_mul_i32 s62, s62, 2560")
        A(f"s_add_u32 s62, s62, {KV_OFF}")
        A("s_cmp_lt_u32 s61, 32")
        A(f"s_cselect_b32 s{sD}, s63, s62")
    dest(0)
    A(f"buffer_store_dwordx4 {v(PK,4)}, v{vL16p}, {W}, s{sD} offen{SC1}")
    A("s_mov_b32 exec_hi, 0")
    A(f"buffer_store_dwordx2 {v(PK+4,2)}, v{vT8p}, {W}, s{sD} offen offset:1024{SC1}")
    A("s_mov_b32 exec_hi, -1")
    A(f"s_mov_b32 s{sCls}, 2")
    A(f"s_cmp_ge_u32 s{sU}, 63")
    A("s_cbranch_scc1 L_qkv_done")
    A(f"s_mov_b32 s{sCls}, 0")
    dest(1)
    A("s_mov_b32 exec_hi, 0")
    A(f"buffer_store_dwordx4 {v(PK+6,4)}, v{vL16x}, {W}, s{sD} offen{SC1}")
    A("s_mov_b32 exec_lo, 0\ns_mov_b32 exec_hi, -1")
    A(f"buffer_store_dwordx4 {v(PK+4,4)}, v{vL16x}, {W}, s{sD} offen{SC1}")
    A(f"buffer_store_dwordx2 {v(PK+8,2)}, v{vT8p}, {W}, s{sD} offen offset:1024{SC1}")
    A("s_mov_b32 exec_lo, -1")
    dest(2)
    A(f"buffer_store_dwordx4 {v(PK+10,4)}, v{vL16p}, {W}, s{sD} offen{SC1}")
    A("s_mov_b32 exec_hi, 0")
    A(f"buffer_store_dwordx2 {v(PK+14,2)}, v{vT8p}, {W}, s{sD} offen offset:1024{SC1}")
    A("s_mov_b32 exec_hi, -1")
    A("s_branch L_qkv_done")

    A.label("L_vtype")
    qkv_phase(True)
    stamp(A, 2)
    A("s_waitcnt lgkmcnt(0)")
    A("s_nop 7\ns_nop 7")
    A(f"s_mov_b32 s{sCls}, 1")
    A(f"s_lshl_b32 s{sTile}, s{sTB}, 2")
    A(f"s_add_u32 s{sTile}, s{sTile}, s{sTT}")
    A(f"s_mul_i32 s{sD}, s{sTile}, 2560")
    A(f"s_add_u32 s{sD}, s{sD}, {KV_OFF + 1280}")
    A(f"s_sub_u32 s61, s{sCG}, 11")
    A("s_lshl_b32 s61, s61, 7")
    A(f"s_lshl_b32 s62, s{sWC}, 6")
    A("s_add_u32 s61, s61, s62")
    A("v_and_b32 v56, 31, v1")
    A("v_lshrrev_b32 v57, 5, v1")
    A("v_mul_u32_u24 v57, 320, v57")
    for t in range(2):
        A("v_add_u32 v58, s61, v56")
        if t:
            A("v_add_u32 v58, 32, v58")
        magic_div(A, 59, 58, 20, 640, 62)
        A("v_mul_u32_u24 v60, 20, v59")
        A("v_sub_u32 v60, v58, v60")
        A("v_lshlrev_b32 v60, 4, v60")
        A("s_mov_b32 s62, 163840")
        A("v_mul_lo_u32 v59, v59, s62")
        A(f"v_add3_u32 v{2+t}, v59, v60, v57")
    for t in range(2):
        for hf in range(2):
            base = ACC + 16 * t + 8 * hf
            dst = 32 + 8 * t + 4 * hf
            for p in range(4):
                A(f"v_cvt_pk_bf16_f32 v{dst+p}, v{base+2*p}, v{base+2*p+1}")
            A(f"buffer_store_dwordx4 {v(dst,4)}, v{2+t}, {W}, s{sD} offen offset:{640*hf}{SC1}")
    A.label("L_qkv_done")
    A("v_mov_b32 v3, 0")
    A("s_mov_b32 exec_lo, 0")
    A("s_mov_b32 exec_hi, 0x80000000")
    A(f"buffer_store_dword v63, v3, {W}, s{sGoff} offen{SC1}")
    A("s_mov_b64 exec, -1")
    stamp(A, 3)

    sHead, sQT, sKVs, sM0kv = 48, 49, 51, 65
    A("v_mov_b32 v3, 0")
    A(f"buffer_load_dword v{vN}, v3, s[{SDB}:{SDB+3}], 0 offen sc1")

    def gu_setup():
        A("s_mov_b32 s0, s48")
        A("s_mov_b32 s1, s49")
        A("s_and_b32 s61, s2, 7")
        A("s_lshr_b32 s62, s2, 3")
        A("s_lshl_b32 s61, s61, 2")
        A(f"s_lshr_b32 s{sHead}, s62, 3")
        A(f"s_add_u32 s{sHead}, s{sHead}, s61")
        A("s_and_b32 s62, s62, 7")
        A("s_lshl_b32 s62, s62, 3")
        A(f"s_lshl_b32 s61, s{sTT}, 1")
        A(f"s_add_u32 s{sQT}, s62, s61")
        A("s_mov_b32 s38, s40")
        A("s_mov_b32 s39, s41")
        srd(A, SK, P_WS, KV_SZ, add=KV_OFF)
        A("s_sub_i32 s61, s3, 2")
        A("s_max_i32 s61, s61, 0")
        A("s_min_i32 s61, s61, 4")
        A("s_lshl_b32 s62, s61, 10")
        A(f"s_add_u32 s{sM0kv}, s62, {KVB}")
        A(f"s_mul_i32 s{sKVs}, s{sHead}, 163840")

    def kv_dma(tile):
        A(f"s_add_u32 m0, s{sM0kv}, {((tile+4)%8)*KVSLOT}")
        A("s_nop 0")
        A(f"buffer_load_dwordx4 v{vKVo}, s[{SK}:{SK+3}], s{sKVs} offen{SC1} lds")
        A(f"s_add_u32 s{sKVs}, s{sKVs}, 2560")

    def p2_prologue():
        for a in range(2):
            A(f"s_lshl_b32 s61, s{sHead}, 6")
            A(f"s_add_u32 s61, s61, s{sQT}")
            A(f"s_add_u32 s61, s61, {a}")
            A("s_mul_i32 s61, s61, 1280")
            A(f"buffer_load_dwordx4 {v(Q0[a],4)}, v{vL16p}, {W}, s61 offen{SC1}")
            A(f"buffer_load_dwordx2 {v(Q1[a],2)}, v{vT8p}, {W}, s61 offen offset:1024{SC1}")
        A(f"s_add_u32 s61, s{sQT}, s{sWC}")
        A("s_lshl_b32 s61, s61, 7")
        A(f"s_add_u32 s61, s61, {G_OFF}")
        A(f"buffer_load_dword v{vGt}, v{vGt}, {W}, s61 offen{SC1}")
        for t in range(6):
            kv_dma(t)
        A(f"s_lshl_b32 s61, s{sTile3}, 7")
        A(f"s_add_u32 s61, s61, {G_OFF}")
        A(f"buffer_load_dword v{vG2}, v{vG2}, {W}, s61 offen{SC1}")

    def nonce_get():
        lk = A.newlabel("L_nk")
        A(f"v_readfirstlane_b32 s{sNonce}, v{vN}")
        A("s_nop 3")
        A(f"s_cmp_lg_u32 s{sNonce}, 0")
        A(f"s_cbranch_scc1 {lk}")

        def issue():
            A(f"buffer_load_dword v{vN}, v3, s[{SDB}:{SDB+3}], 0 offen sc1")

        def check():
            A(f"v_readfirstlane_b32 s{sNonce}, v{vN}")
            A("s_nop 3")
            A(f"s_cmp_lg_u32 s{sNonce}, 0")
        spin(A, "n", issue, check)
        A.label(lk)

    def f1_issue():
        A(f"s_mov_b32 s62, {F1_OFF}")
        A(f"buffer_load_dwordx4 v[56:59], v{vL16p}, {W}, s62 offen sc1")

    def f1_check():
        A(f"v_cmp_ne_u32 vcc, s{sNonce}, v56")
        A(f"v_cmp_ne_u32 s[62:63], s{sNonce}, v57")
        A("s_or_b64 vcc, vcc, s[62:63]")
        A(f"v_cmp_ne_u32 s[62:63], s{sNonce}, v58")
        A("s_or_b64 vcc, vcc, s[62:63]")
        A(f"v_cmp_ne_u32 s[62:63], s{sNonce}, v59")
        A("s_or_b64 vcc, vcc, s[62:63]")
        A("s_cmp_eq_u64 vcc, 0")

    sTB64, sCB, sT16, sPar, sTile3 = 44, 45, sTT, sWC, 32
    sKH = sWC
    sIsW = 38
    sM0A, sM0B, sWsA, sWsB, sStepA, sStepB = 33, 66, 67, 69, 74, 70
    sActS, sColb, sParA = 71, 72, 73
    sP, sG, sGp, sKd, sRrg, sHH = 64, 46, 47, 36, 37, 34
    sOffB = [52, 53, 54, 55]
    sVm = 0

    def p2_scal1():
        A("s_and_b32 s61, s2, 7")
        A("s_lshr_b32 s62, s2, 3")
        A(f"s_lshr_b32 s{sTB64}, s61, 1")
        A(f"s_lshl_b32 s{sTB64}, s{sTB64}, 3")
        A("s_and_b32 s63, s62, 7")
        A(f"s_add_u32 s{sTB64}, s{sTB64}, s63")
        A(f"s_and_b32 s{sCB}, s61, 1")
        A(f"s_lshl_b32 s{sCB}, s{sCB}, 2")
        A("s_lshr_b32 s63, s62, 3")
        A(f"s_add_u32 s{sCB}, s{sCB}, s63")
        A(f"s_lshl_b32 s{sTile3}, s{sTB64}, 1")
        A(f"s_lshr_b32 s61, s{sT16}, 1")
        A(f"s_add_u32 s{sTile3}, s{sTile3}, s61")
        srd(A, SWD, 0, 1536 * 1280)
        srd(A, SWO, 38, 640 * 1280)
        srd(A, SOUT, P_OUT, 2048 * 1280)
        for k in range(4):
            A(f"s_mov_b32 s{SPA+k}, s{SWD+k}")
        A("s_cmp_lt_u32 s3, 2")
        for k in range(4):
            A(f"s_cselect_b32 s{SPB+k}, s{SWD+k}, s{SK+k}")
        A(f"s_cselect_b32 s{sIsW}, 1, 0")

    def p2_scal2():
        A(f"s_mul_i32 s{sColb}, s{sCB}, 160")
        A("s_cmp_ge_u32 s3, 5")
        A(f"s_cselect_b32 s{sParA}, 1, 0")
        A(f"s_mul_i32 s61, s{sParA}, 5")
        A("s_sub_u32 s61, s3, s61")
        A(f"s_mul_i32 s{sM0A}, s{sParA}, 5120")
        A("s_lshl_b32 s61, s61, 10")
        A(f"s_add_u32 s{sM0A}, s{sM0A}, s61")
        A(f"s_mul_i32 s{sWsA}, s{sParA}, {32*1280}")
        A(f"s_add_u32 s{sWsA}, s{sWsA}, s{sColb}")
        A(f"s_mov_b32 s{sStepA}, {64*1280}")
        A(f"s_mul_i32 s{sActS}, s{sTile3}, {96*1024}")
        A(f"s_lshl_b32 s61, s{sPar}, 11")
        A(f"s_add_u32 s{sActS}, s{sActS}, s61")
        A(f"s_add_u32 s{sActS}, s{sActS}, {H_OFF}")
        A(f"s_mov_b32 s{sVm}, 0xfffff")
        A(f"s_mov_b32 s{sVm+1}, 0xfffff")
        A(f"s_mov_b32 s{sG}, 0")
        A(f"s_mov_b32 s{sGp}, 0")
        A(f"s_mov_b32 s{sRrg}, 0")
        A(f"s_mov_b32 s{sHH}, 0")
        A(f"s_mov_b32 s{sKd}, {hx(-4*KVSLOT)}")

    def p2_scal3():
        A("s_add_u32 s61, s3, 3")
        A("s_min_u32 s61, s61, 4")
        A("s_lshl_b32 s61, s61, 10")
        A("s_add_u32 s61, s61, 5120")
        A("s_cmp_lt_u32 s3, 2")
        A(f"s_cselect_b32 s{sM0B}, s61, s{sM0kv}")
        A(f"s_add_u32 s61, s{sColb}, {32*1280}")
        A("s_cmp_lt_u32 s3, 2")
        A(f"s_cselect_b32 s{sWsB}, s61, s{sKVs}")
        A(f"s_mov_b32 s61, {64*1280}")
        A("s_cmp_lt_u32 s3, 2")
        A(f"s_cselect_b32 s{sStepB}, s61, 2560")
        A(f"s_mov_b32 s{sP}, 0")

    def gu_wait(g):
        def w():
            if g in (10, 11):
                nb = len(dma_groups(g + 2))
                lE, lc1, lc2 = [A.newlabel("L_gw") for _ in range(3)]
                A(f"s_cmp_eq_u32 s{sCls}, 0")

                def body(lb):
                    A(f"s_cmp_eq_u32 s{sCls}, 1")
                    A(f"s_cbranch_scc0 {lc2}")
                    A(f"s_waitcnt vmcnt({nb+6})")
                    A(f"s_branch {lE}")
                    A.label(lc2)
                    A(f"s_waitcnt vmcnt({nb+4})")
                    A(f"s_branch {lE}")
                A.rare([], body, branch="s_cbranch_scc0")
                A(f"s_waitcnt vmcnt({nb+9})")
                A.label(lE)
                A("s_waitcnt lgkmcnt(0)")
            elif g <= 17:
                A(f"s_waitcnt vmcnt({len(dma_groups(g + 2))}) lgkmcnt(0)")
            elif g == 18:
                A("s_waitcnt vmcnt(0) lgkmcnt(0)")

                def body(lb):
                    poll_pre(A, "f1", f1_issue, f1_check)
                A.rare(["s_cmp_eq_u32 s3, 0"], body)
            else:
                A("s_waitcnt lgkmcnt(0)")
        return w

    def sig_f1():
        def body(lb):
            A("v_mov_b32 v3, 0")
            nonce_get()
            A(f"s_lshl_b32 s61, s{sTB}, 4")
            A(f"s_add_u32 s61, s61, s{sCG}")
            A("s_lshl_b32 s61, s61, 2")
            A(f"s_add_u32 s61, s61, {F1_OFF}")
            A(f"v_mov_b32 v2, s{sNonce}")
            A("s_mov_b64 exec, 1")
            A(f"buffer_store_dword v2, v3, {W}, s61 offen sc1")
            A("s_mov_b64 exec, -1")
        A.rare(["s_cmp_eq_u32 s3, 0"], body)

    def f1_pre():
        A.rare(["s_cmp_eq_u32 s3, 0"], lambda lb: f1_issue())

    for r in gu_reads(XA, WA, 10, 0):
        A(r)
    def F(*fns):
        out = []
        for fn in fns:
            out += atomic_groups(capture(A, fn))
        return out
    fills = {
        (13, 0): F(gu_setup),
        (16, 0): F(lambda: p2_inits(0)),
        (16, 1): F(lambda: p2_inits(1)),
        (17, 1): F(p2_scal1),
        (18, 0): F(p2_scal2),
        (18, 1): F(p2_prologue),
        (19, 0): F(p2_scal3),
    }
    for g in range(10, 20):
        post = {12: sig_f1, 17: f1_pre}.get(g)
        stage(g, gu_reads, gu_mfmas, gu_wait(g), post=post, fill0=fills.get((g, 0), ()), fill1=fills.get((g, 1), ()))
    stamp(A, 4)
    A("s_waitcnt lgkmcnt(0)")
    A("s_nop 7")
    A("s_nop 7")
    ca = -2.0 * LOG2E * (2.0 / 3.141592653589793) ** 0.5
    cb = ca * 0.044715
    sTile, sD = 100, 101
    A(f"s_mov_b32 s61, {hx(f2u(ca))}")
    A(f"s_mov_b32 s62, {hx(f2u(cb))}")
    A(f"s_lshl_b32 s{sTile}, s{sTB}, 2")
    A(f"s_add_u32 s{sTile}, s{sTile}, s{sTT}")
    A(f"s_mul_i32 s{sD}, s{sTile}, 96")
    A(f"s_mul_i32 s63, s{sCG}, 6")
    A(f"s_add_u32 s{sD}, s{sD}, s63")
    A(f"s_mul_i32 s63, s{sWC}, 3")
    A(f"s_add_u32 s{sD}, s{sD}, s63")
    A(f"s_lshl_b32 s{sD}, s{sD}, 10")
    A(f"s_add_u32 s{sD}, s{sD}, {H_OFF}")
    A("v_mov_b32 v61, s61")
    for t in range(3):
        g0 = ACC + 16 * t
        u0 = g0 + 8
        T = 32
        for j in range(8):
            A(f"v_mul_f32 v{T+j}, v{g0+j}, v{g0+j}")
        for j in range(8):
            A(f"v_fma_f32 v{T+j}, v{T+j}, s62, v61")
        for j in range(8):
            A(f"v_mul_f32 v{T+j}, v{T+j}, v{g0+j}")
        for j in range(8):
            A(f"v_exp_f32 v{T+j}, v{T+j}")
        for j in range(8):
            A(f"v_mul_f32 v{u0+j}, v{g0+j}, v{u0+j}")
        for j in range(8):
            A(f"v_add_f32 v{T+j}, 1.0, v{T+j}")
        for j in range(8):
            A(f"v_rcp_f32 v{T+j}, v{T+j}")
        A("s_nop 0")
        for j in range(8):
            A(f"v_mul_f32 v{u0+j}, v{u0+j}, v{T+j}")
        dst = 40 + 4 * t if t < 2 else 56
        for p in range(4):
            A(f"v_cvt_pk_bf16_f32 v{dst+p}, v{u0+2*p}, v{u0+2*p+1}")
        A(f"buffer_store_dwordx4 {v(dst,4)}, v{vL16p}, {W}, s{sD} offen offset:{1024*t}{SC1}")
    stamp(A, 5)

    A("v_mov_b32 v3, 0")
    nonce_get()
    for r in range(20):
        A(f"v_mov_b32 v{DACC+r}, 0")
    A(f"v_mov_b32 v{E+14}, 0")
    A(f"v_mov_b32 v{E+15}, 0")
    A("s_waitcnt vmcnt(3)")
    A("v_cmp_gt_u32 vcc, 32, v1")
    A("s_nop 1")
    for a in range(2):
        A(f"v_cndmask_b32 v{Q1[a]}, 0, v{Q1[a]}, vcc")
        A(f"v_cndmask_b32 v{Q1[a]+1}, 0, v{Q1[a]+1}, vcc")
        A(f"v_mov_b32 v{Q1[a]+2}, 0")
        A(f"v_mov_b32 v{Q1[a]+3}, 0")
    A("s_barrier")
    stamp(A, 6)

    def rdK0(o): return f"ds_read_b128 {v(K0,4)}, v{vK0} offset:{o}"
    def rdK1(o): return f"ds_read_b64 {v(K1,2)}, v{vK1} offset:{o}"
    def rdV(o):
        if "p2noexec" in DBG:
            return [f"ds_read_b128 {v(V0,4)}, v{vV} offset:{o}", f"ds_read_b128 {v(V1,4)}, v{vV} offset:{o+640}"]
        return [f"s_mov_b64 exec, s[{sVm}:{sVm+1}]",
                f"ds_read_b128 {v(V0,4)}, v{vV} offset:{o}",
                f"ds_read_b128 {v(V1,4)}, v{vV} offset:{o+640}",
                "s_mov_b64 exec, -1"]

    A(rdK0(0)); A(rdK1(0))
    A("s_waitcnt lgkmcnt(0)")
    A(mfma32(S[0], K0, Q0[0], "0"))
    A(mfma32(S[0], K1, Q1[0]))

    def valu_groups(cur):
        vl = []
        for i in range(8):
            vl.append(f"v_exp_f32 v{E+2*i}, v{cur+2*i}")
            vl.append(f"v_exp_f32 v{E+2*i+1}, v{cur+2*i+1}")
            j = (i - 1) % 8
            vl.append(f"v_cvt_pk_bf16_f32 v{P+j}, v{E+2*j}, v{E+2*j+1}")
        return [vl[0:6], vl[6:12], vl[12:18], vl[18:24]]

    sM0Ag, sM0Agp = 68, 50
    sM0Bg, sM0Bgp = 52, 53
    sKB0, sKB1 = 52, 53
    sDG = 54

    def period(u, beta, cls):
        A0 = A
        if "p2nobeta" in DBG:
            beta = False if True else beta
        def A_(x):
            if "p2novm" in DBG and (x.startswith("buffer_load") or x.startswith("s_add_u32 m0") or x.startswith("s_mov_b32 m0") or x.startswith(f"s_add_u32 s{sWsA},") or x.startswith(f"s_add_u32 s{sWsB},") or x.startswith(f"s_add_u32 s{sActS},")):
                return
            A0(x)
        return period_(u, beta, cls, A_)

    def period_(u, beta, cls, A):
        kofs = (u + 1) * KVSLOT if u < 3 else 0
        g = valu_groups(S[0])
        tr = []
        if beta:
            for c in range(5):
                tr.append(f"ds_read_b64_tr_b16 {v(WF+4*c,2)}, v{vWr} offset:{u*WPER+32*c}")
                tr.append(f"ds_read_b64_tr_b16 {v(WF+4*c+2,2)}, v{vWr} offset:{u*WPER+32*c+8*160}")
        if "noprio" not in DBG: A("s_setprio 1")
        if "prioC" in DBG: A("s_setprio 3")
        A(mfma32(S[1], K0, Q0[1], "0"))
        A(rdK0(kofs))
        if beta:
            A(f"buffer_load_dwordx4 {v(ACT+4*((u+3)%4),4)}, v{vAct}, {W}, s{sActS} offen{SC1}")
        for x in g[0][:3]: A(x)
        if beta:
            A(f"s_add_u32 s{sActS}, s{sActS}, 4096")
        for x in tr[:3]: A(x)
        for x in g[0][3:]: A(x)
        A(mfma32(O[1], V1, P + 4))
        for x in rdV(u * KVSLOT): A(x)
        for x in g[1][:3]: A(x)
        for x in tr[3:6]: A(x)
        for x in g[1][3:]: A(x)
        if "prioC" in DBG: A("s_setprio 2")
        A(mfma32(S[1], K1, Q1[1]))
        A(rdK1(kofs))
        for x in g[2][:3]: A(x)
        for x in tr[6:10]: A(x)
        for x in g[2][3:]: A(x)
        A(f"s_waitcnt lgkmcnt({2 + (7 if beta else 0)})")
        A(mfma32(O[0], V0, P))
        def wm0(bg, bgp):
            if not beta:
                return f"s_add_u32 m0, s{bg}, {u*WPER}"
            if u < 2:
                return f"s_add_u32 m0, s{bgp}, {(u+2)*WPER}"
            return f"s_add_u32 m0, s{bg}, {(u-2)*WPER}"
        A(wm0(sM0Ag, sM0Agp))
        for x in g[3][:3]: A(x)
        A(f"buffer_load_dwordx4 v{vWA}, s[{SPA}:{SPA+3}], s{sWsA} offen lds")
        for x in g[3][3:]: A(x)
        A(f"s_add_u32 s{sWsA}, s{sWsA}, s{sStepA}")
        g = valu_groups(S[1])
        m16 = [mfma16(DACC + 4 * c, WF + 4 * c, ACT + 4 * u) for c in range(5)] if beta else []
        A("s_waitcnt lgkmcnt(0)")
        if "noprio" not in DBG: A("s_setprio 0")
        if "prioC" in DBG: A("s_setprio 1")
        A(mfma32(S[0], K0, Q0[0], "0"))
        for x in g[0][:3]: A(x)
        if beta: A(m16[0])
        for x in g[0][3:]: A(x)
        A(mfma32(O[0], V1, P + 4))
        for x in g[1][:3]: A(x)
        if beta: A(m16[1])
        for x in g[1][3:]: A(x)
        if "prioC" in DBG: A("s_setprio 0")
        A(mfma32(S[0], K1, Q1[0]))
        for x in g[2][:3]: A(x)
        if beta: A(m16[2])
        for x in g[2][3:]: A(x)
        A(mfma32(O[1], V0, P))
        if cls == "W":
            A(wm0(sM0Bg, sM0Bgp))
        elif u < 2:
            A(f"s_add_u32 m0, s{sKB0}, {(u+2)*KVSLOT}")
        else:
            A(f"s_add_u32 m0, s{sKB1}, {(u-2)*KVSLOT}")
        for x in g[3][:2]: A(x)
        if beta: A(m16[3])
        for x in g[3][2:3]: A(x)
        A(f"buffer_load_dwordx4 v{vPB}, s[{SPB}:{SPB+3}], s{sWsB} offen{SC1} lds")
        for x in g[3][3:]: A(x)
        A(f"s_add_u32 s{sWsB}, s{sWsB}, s{sStepB}")
        if beta: A(m16[4])
        if u == 2:
            A(f"v_add_u32 v{vK0}, s{sKd}, v{vK0}")
            A(f"v_add_u32 v{vK1}, s{sKd}, v{vK1}")

    def cond(val, body, wave0=False):
        def b(lb):
            if wave0:
                A("s_cmp_eq_u32 s3, 0")
                A(f"s_cbranch_scc0 {lb}")
            body()
        A.rare([f"s_cmp_eq_u32 s{sP}, {val}"], b)

    def f2_issue():
        A(f"s_lshr_b32 s62, s{sTB64}, 1")
        A("s_lshl_b32 s62, s62, 6")
        A(f"s_add_u32 s62, s62, {F2_OFF}")
        A("v_and_b32 v56, 15, v1")
        A("v_lshlrev_b32 v56, 2, v56")
        A(f"buffer_load_dword v57, v56, {W}, s62 offen sc1")

    def f2_check():
        A(f"v_cmp_ne_u32 vcc, s{sNonce}, v57")
        A("s_nop 0")
        A("s_cmp_eq_u64 vcc, 0")

    def poll_f2():
        poll_pre(A, "f2", f2_issue, f2_check)

    def first_acts():
        for i in range(3):
            A(f"buffer_load_dwordx4 {v(ACT+4*i,4)}, v{vAct}, {W}, s{sActS} offen{SC1}")
            A(f"s_add_u32 s{sActS}, s{sActS}, 4096")

    def signal_f2():
        A(f"s_lshl_b32 s61, s{sTB}, 4")
        A(f"s_add_u32 s61, s61, s{sCG}")
        A("s_lshl_b32 s61, s61, 2")
        A(f"s_add_u32 s61, s61, {F2_OFF}")
        A(f"v_mov_b32 v2, s{sNonce}")
        A("v_mov_b32 v3, 0")
        A("s_mov_b64 exec, 1")
        A(f"buffer_store_dword v2, v3, {W}, s61 offen sc1")
        A("s_mov_b64 exec, -1")

    def switch_kind(cls):
        A(f"v_mov_b32 v{vWA}, v{vWAm}")
        for k in range(4):
            A(f"s_mov_b32 s{SPA+k}, s{SWO+k}")
        A(f"s_mul_i32 s{sWsA}, s{sParA}, {40*1280}")
        A(f"s_add_u32 s{sWsA}, s{sWsA}, s{sColb}")
        A(f"s_mov_b32 s{sStepA}, {80*1280}")
        if cls == "W":
            A(f"v_mov_b32 v{vPB}, v{vWBm}")
            for k in range(4):
                A(f"s_mov_b32 s{SPB+k}, s{SWO+k}")
            A(f"s_add_u32 s{sWsB}, s{sColb}, {40*1280}")
            A(f"s_mov_b32 s{sStepB}, {80*1280}")

    def iteration(lbl, beta, cls):
        A.label(lbl)
        for u in range(4):
            if beta and u == 2:
                cond(24, lambda: switch_kind(cls))
            period(u, beta, cls)
            bar = (u % 2 == 1)
            if "p2novm" not in DBG and (beta or bar):
                A(f"s_waitcnt vmcnt({7 if beta else 6})")
            if not beta and u == 1 and cls == "W":
                cond(PB - 4, poll_f2, wave0=True)
            if bar and "p2nobar" not in DBG:
                A("s_barrier")
            if not beta:
                if u == 1:
                    cond(PB - 4, first_acts)
                    if cls == "W":
                        cond(PB - 8, f2_issue, wave0=True)
                if u == 3 and cls == "W":
                    cond(0, signal_f2, wave0=True)
        A(f"s_add_u32 s{sP}, s{sP}, 4")
        A(f"s_mov_b32 s{sGp}, s{sG}")
        A(f"s_add_u32 s{sG}, s{sG}, {4*WPER}")
        A(f"s_cmp_eq_u32 s{sG}, {12*WPER}")
        A(f"s_cselect_b32 s{sG}, 0, s{sG}")
        A(f"s_add_u32 s{sM0Ag}, s{sM0A}, s{sG}")
        A(f"s_add_u32 s{sM0Agp}, s{sM0A}, s{sGp}")
        if cls == "W":
            A(f"s_add_u32 s{sM0Bg}, s{sM0B}, s{sG}")
            A(f"s_add_u32 s{sM0Bgp}, s{sM0B}, s{sGp}")
        else:
            A(f"s_sub_u32 s{sKB0}, s{sKB0}, s{sKd}")
            A(f"s_add_u32 s{sKB1}, s{sKB1}, s{sKd}")
        A(f"v_add_u32 v{vV}, s{sKd}, v{vV}")
        A(f"s_sub_u32 s{sKd}, 0, s{sKd}")
        if beta:
            A(f"s_sub_u32 s{sDG}, s{sG}, s{sGp}")
            A(f"v_add_u32 v{vWr}, s{sDG}, v{vWr}")

    def p2_loops(cls):
        A(f"s_mov_b32 s{sM0Ag}, s{sM0A}")
        A(f"s_mov_b32 s{sM0Agp}, s{sM0A}")
        if cls == "W":
            A(f"s_mov_b32 s{sM0Bg}, s{sM0B}")
            A(f"s_mov_b32 s{sM0Bgp}, s{sM0B}")
        else:
            A(f"s_mov_b32 s{sKB0}, s{sM0B}")
            A(f"s_add_u32 s{sKB1}, s{sM0B}, {4*KVSLOT}")
        iteration(f"L_alpha{cls}", False, cls)
        A(f"s_cmp_lt_u32 s{sP}, {PB}")
        A(f"s_cbranch_scc1 L_alpha{cls}")
        A(f"s_lshl_b32 s61, s{sStepA}, 1")
        A(f"s_sub_u32 s{sWsA}, s{sWsA}, s61")
        if cls == "W":
            A(f"s_lshl_b32 s61, s{sStepB}, 1")
            A(f"s_sub_u32 s{sWsB}, s{sWsB}, s61")
        iteration(f"L_beta{cls}", True, cls)
        A(f"s_cmp_lt_u32 s{sP}, 32")
        A(f"s_cbranch_scc1 L_beta{cls}")

    A("s_nop 7\ns_nop 7")
    A("s_cmp_lt_u32 s3, 2")
    A("s_cbranch_scc1 L_p2W")
    p2_loops("K")
    A("s_branch L_p2end")
    A.label("L_p2W")
    p2_loops("W")
    A.label("L_p2end")
    A("s_setprio 0")
    stamp(A, 7)
    A(f"v_cvt_pk_bf16_f32 v{P+7}, v{E+14}, v{E+15}")
    A(f"buffer_load_dwordx4 {v(ACT+12,4)}, v{vAct}, {W}, s{sActS} offen{SC1}")
    A(mfma32(O[1], V1, P + 4))
    A("s_nop 7\ns_nop 7")
    A("s_mul_i32 s61, s3, 3072")
    A(f"s_add_u32 s61, s61, {XCH}")
    A(f"v_add_u32 v2, s61, v{vL16p}")
    A(f"s_cmp_eq_u32 s{sKH}, 0")
    A("s_cbranch_scc1 L_x0")
    for i in range(3):
        A(f"ds_write_b128 v2, {v(O[0]+4*i,4)} offset:{1024*i}")
    A("s_waitcnt lgkmcnt(0)")
    for r in range(12):
        A(f"v_mov_b32 v{O[0]+r}, v{O[1]+r}")
    A("s_branch L_x1")
    A.label("L_x0")
    for i in range(3):
        A(f"ds_write_b128 v2, {v(O[1]+4*i,4)} offset:{1024*i}")
    A("s_waitcnt lgkmcnt(0)")
    A.label("L_x1")
    A("s_barrier")
    A("s_xor_b32 s61, s3, 4")
    A("s_mul_i32 s61, s61, 3072")
    A(f"s_add_u32 s61, s61, {XCH}")
    A(f"v_add_u32 v2, s61, v{vL16p}")
    for i in range(3):
        A(f"ds_read_b128 {v(64+4*i,4)}, v2 offset:{1024*i}")
    A("s_waitcnt lgkmcnt(0)")
    OO = O[0]
    A("s_mov_b64 s[100:101], -1")
    for r in range(12):
        A(f"v_add_f32 v{OO+r}, v{OO+r}, v{64+r}")
    A.label("L_norm")
    A(f"v_mov_b32 v80, v{OO+8}")
    A(f"v_mov_b32 v81, v{OO+8}")
    A("v_mov_b32 v82, 0")
    A("s_nop 1")
    A("v_permlane32_swap_b32 v80, v81")
    for r in range(12):
        A(f"v_fma_f32 v82, v{OO+r}, 0, v82")
    A(f"s_mov_b32 s61, {hx(f2u(2.0**-80))}")
    A(f"s_mov_b32 s62, {hx(f2u(2.0**100))}")
    A("v_add_f32 v82, v82, v81")
    A("v_cmp_nle_f32 vcc, s61, v82")
    A("v_cmp_nge_f32 s[62:63], s62, v82") if False else None
    A(f"v_mov_b32 v83, {hx(f2u(2.0**100))}")
    A("v_cmp_nle_f32 s[62:63], v82, v83")
    A("s_or_b64 vcc, vcc, s[62:63]")
    A("s_and_b64 vcc, vcc, s[100:101]")
    A("s_cmp_lg_u64 vcc, 0")
    A("s_cbranch_scc1 L_fallback")

    def fallback():
        A.label("L_fallback")
        A("s_mov_b64 s[100:101], 0")
        QA, QB = 56, 60
        lk1, lk2 = A.newlabel("L_fq"), A.newlabel("L_fq")
        A(f"s_cmp_eq_u32 s{sKH}, 0")
        A(f"s_cbranch_scc0 {lk1}")
        for r in range(4):
            A(f"v_mov_b32 v{QA+r}, v{Q0[0]+r}")
            A(f"v_mov_b32 v{QB+r}, v{Q1[0]+r}")
        A(f"s_branch {lk2}")
        A.label(lk1)
        for r in range(4):
            A(f"v_mov_b32 v{QA+r}, v{Q0[1]+r}")
            A(f"v_mov_b32 v{QB+r}, v{Q1[1]+r}")
        A.label(lk2)
        SKs = f"s[{SK}:{SK+3}]"
        vVa, vM = 96, 97
        A("v_lshrrev_b32 v98, 5, v1")
        A("v_mul_u32_u24 v98, 320, v98")
        A("v_and_b32 v99, 31, v1")
        A(f"v_lshl_add_u32 v{vVa}, v99, 4, v98")
        A(f"v_mov_b32 v{vM}, 0xff800000")
        A(f"s_mul_i32 s61, s{sHead}, 163840")
        A("s_mov_b32 s62, 0")
        A.label("L_fb1")
        A(f"buffer_load_dwordx4 {v(K0,4)}, v{vL16p}, {SKs}, s61 offen sc1")
        A(f"buffer_load_dwordx2 {v(K1,2)}, v{vT8p}, {SKs}, s61 offen offset:1024 sc1")
        A("s_waitcnt vmcnt(0)")
        A(mfma32(64, K0, QA, "0"))
        A(mfma32(64, K1, QB))
        A("s_nop 7\ns_nop 7")
        for r in range(0, 16, 2):
            A(f"v_max3_f32 v{vM}, v{vM}, v{64+r}, v{65+r}")
        A("s_add_u32 s61, s61, 2560")
        A("s_add_u32 s62, s62, 1")
        A("s_cmp_lt_u32 s62, 64")
        A("s_cbranch_scc1 L_fb1")
        A(f"v_mov_b32 v98, v{vM}")
        A(f"v_mov_b32 v99, v{vM}")
        A("s_nop 1")
        A("v_permlane32_swap_b32 v98, v99")
        A("s_nop 1")
        A("v_max3_f32 v98, v98, v99, v97")
        A("v_sub_f32 v98, 0, v98")
        A("v_and_b32 v99, 0xffff0000, v98")
        A("v_sub_f32 v98, v98, v99")
        A("v_and_b32 v100, 0xffff0000, v98")
        A("v_sub_f32 v98, v98, v100")
        A("v_lshrrev_b32 v99, 16, v99")
        A("v_or_b32 v99, v99, v100")
        A("v_cvt_pk_bf16_f32 v100, v98, 0")
        A("v_cmp_gt_u32 vcc, 32, v1")
        A("s_nop 1")
        A(f"v_cndmask_b32 v{QB+2}, 0, v99, vcc")
        A(f"v_cndmask_b32 v{QB+3}, 0, v100, vcc")
        for r in range(16):
            A(f"v_mov_b32 v{O[1]+r}, 0")
        A(f"s_mul_i32 s61, s{sHead}, 163840")
        A("s_mov_b32 s62, 0")
        A.label("L_fb2")
        A(f"buffer_load_dwordx4 {v(K0,4)}, v{vL16p}, {SKs}, s61 offen sc1")
        A(f"buffer_load_dwordx2 {v(K1,2)}, v{vT8p}, {SKs}, s61 offen offset:1024 sc1")
        A(f"s_mov_b64 exec, s[{sVm}:{sVm+1}]")
        A(f"buffer_load_dwordx4 {v(V0,4)}, v{vVa}, {SKs}, s61 offen offset:1280 sc1")
        A(f"buffer_load_dwordx4 {v(V1,4)}, v{vVa}, {SKs}, s61 offen offset:1920 sc1")
        A("s_mov_b64 exec, -1")
        A("s_waitcnt vmcnt(0)")
        A(mfma32(64, K0, QA, "0"))
        A(mfma32(64, K1, QB))
        A("s_nop 7\ns_nop 7")
        for r in range(16):
            A(f"v_exp_f32 v{100+r}, v{64+r}") if 100 + r < 112 else A(f"v_exp_f32 v{80+r-12}, v{64+r}")
        A("s_nop 0")
        ex = [100 + r if r < 12 else 80 + r - 12 for r in range(16)]
        for p_ in range(8):
            A(f"v_cvt_pk_bf16_f32 v{P+p_}, v{ex[2*p_]}, v{ex[2*p_+1]}")
        A("s_nop 1")
        A(mfma32(O[1], V0, P))
        A(mfma32(O[1], V1, P + 4))
        A("s_add_u32 s61, s61, 2560")
        A("s_add_u32 s62, s62, 1")
        A("s_cmp_lt_u32 s62, 64")
        A("s_cbranch_scc1 L_fb2")
        A("s_nop 7\ns_nop 7")
        for r in range(12):
            A(f"v_mov_b32 v{OO+r}, v{O[1]+r}")
        A("s_branch L_norm")
    A.defer(fallback)
    A("v_rcp_f32 v81, v81")
    A("s_nop 0")
    A(f"v_mul_f32 v81, v81, v{vGt}")
    for r in range(12):
        A(f"v_mul_f32 v{OO+r}, v81, v{OO+r}")
    for p in range(6):
        A(f"v_cvt_pk_bf16_f32 v{84+p}, v{OO+2*p}, v{OO+2*p+1}")
    A("v_mov_b32 v90, 0\nv_mov_b32 v91, 0")
    sTq = 61
    A(f"s_add_u32 s{sTq}, s{sQT}, s{sKH}")
    A(f"s_mul_i32 s62, s{sTq}, 48")
    A(f"s_add_u32 s63, s62, s{sHead}")
    A("s_lshl_b32 s63, s63, 10")
    A(f"s_add_u32 s63, s63, {O_OFF}")
    A(f"buffer_store_dwordx4 {v(84,4)}, v{vL16p}, {W}, s63 offen{SC1}")
    A(f"s_lshr_b32 s63, s{sHead}, 1")
    A("s_add_u32 s63, s63, 32")
    A("s_add_u32 s63, s63, s62")
    A("s_lshl_b32 s63, s63, 10")
    A(f"s_and_b32 s62, s{sHead}, 1")
    A("s_lshl_b32 s62, s62, 9")
    A("s_add_u32 s63, s63, s62")
    A(f"s_add_u32 s63, s63, {O_OFF}")
    A("s_mov_b32 exec_hi, 0")
    A(f"buffer_store_dwordx4 {v(88,4)}, v{vL16p}, {W}, s63 offen{SC1}")
    A("s_mov_b32 exec_hi, -1")
    sF3 = 35
    A(f"s_lshl_b32 s{sF3}, s{sTq}, 5")
    A(f"s_add_u32 s{sF3}, s{sF3}, s{sHead}")
    A(f"s_lshl_b32 s{sF3}, s{sF3}, 2")
    A(f"s_add_u32 s{sF3}, s{sF3}, {F3_OFF}")
    def consume(qs, actreg):
        n = len(qs)

        def rd(i):
            base = WF2[i % 2]
            o = (qs[i] % 12) * WPER
            out = []
            for c in range(5):
                for hf in range(2):
                    oo = o + 32 * c + 1280 * hf
                    a, oo = (vW0, oo) if oo < 65536 else (vW1, oo - 61440)
                    out.append(f"ds_read_b64_tr_b16 {v(base+4*c+2*hf,2)}, v{a} offset:{oo}")
            return out
        for x in rd(0): A(x)
        for i in range(n):
            if i + 1 < n:
                for x in rd(i + 1): A(x)
                A("s_waitcnt lgkmcnt(10)")
            else:
                A("s_waitcnt lgkmcnt(0)")
            vm = actreg(i)
            if vm[1] is not None:
                A(f"s_waitcnt vmcnt({vm[1]})")
            for c in range(5):
                A(mfma16(DACC + 4 * c, WF2[i % 2] + 4 * c, vm[0]))

    for q in (30, 31):
        A(f"s_add_u32 m0, s{sM0A}, {(q%12)*WPER}")
        A("s_nop 0")
        A(f"buffer_load_dwordx4 v{vWA}, s[{SPA}:{SPA+3}], s{sWsA} offen lds")
        A(f"s_add_u32 s{sWsA}, s{sWsA}, s{sStepA}")
    l, l2 = A.newlabel("L_w31"), A.newlabel("L_w32")
    A(f"v_mov_b32 v2, s{sNonce}")
    A("v_mov_b32 v3, 0")
    A(f"s_cmp_eq_u32 s{sIsW}, 0")
    A(f"s_cbranch_scc1 {l}")
    for q in (30, 31):
        A(f"s_add_u32 m0, s{sM0B}, {(q%12)*WPER}")
        A("s_nop 0")
        A(f"buffer_load_dwordx4 v{vPB}, s[{SPB}:{SPB+3}], s{sWsB} offen lds")
        A(f"s_add_u32 s{sWsB}, s{sWsB}, s{sStepB}")
    A("s_waitcnt vmcnt(6)")
    A(f"s_branch {l2}")
    A.label(l)
    A("s_waitcnt vmcnt(4)")
    A.label(l2)
    consume(list(range(NB, 24)), lambda i: (ACT + 4 * i, None))
    l, l2 = A.newlabel("L_w33"), A.newlabel("L_w34")
    A(f"s_cmp_eq_u32 s{sIsW}, 0")
    A(f"s_cbranch_scc1 {l}")
    A("s_waitcnt vmcnt(4)")
    A(f"s_branch {l2}")
    A.label(l)
    A("s_waitcnt vmcnt(2)")
    A.label(l2)
    A("s_mov_b64 exec, 1")
    A(f"buffer_store_dword v2, v3, {W}, s{sF3} offen sc1")
    A("s_mov_b64 exec, -1")
    stamp(A, 8)

    A("s_waitcnt vmcnt(1)")
    A(f"v_sub_f32 v56, 1.0, v{vG2}")
    A("s_nop 7")
    for r in range(20):
        A(f"v_mul_f32 v{DACC+r}, v56, v{DACC+r}")
    A("s_barrier")
    for i in range(4):
        q = 32 + i
        A(f"s_mul_i32 s61, s{sParA}, {80*1280}")
        A(f"s_add_u32 s61, s61, {i*160*1280}")
        A(f"s_add_u32 s61, s61, s{sColb}")
        A(f"s_add_u32 m0, s{sM0A}, {(q%12)*WPER}")
        A("s_nop 0")
        A(f"buffer_load_dwordx4 v{vWAr}, s[{SWO}:{SWO+3}], s61 offen lds")
    l = A.newlabel("L_rb")
    A(f"s_cmp_eq_u32 s{sIsW}, 0")
    A(f"s_cbranch_scc1 {l}")
    for i in range(4):
        q = 32 + i
        A(f"s_add_u32 s61, s{sColb}, {(80 + i*160)*1280}")
        A(f"s_add_u32 m0, s{sM0B}, {(q%12)*WPER}")
        A("s_nop 0")
        A(f"buffer_load_dwordx4 v{vWBr}, s[{SWO}:{SWO+3}], s61 offen lds")
    A.label(l)
    l = A.newlabel("L_f3")
    A("s_cmp_eq_u32 s3, 0")
    A(f"s_cbranch_scc0 {l}")
    A("v_lshlrev_b32 v2, 2, v1")
    A(f"s_lshl_b32 s63, s{sTB64}, 8")
    A(f"s_add_u32 s63, s63, {F3_OFF}")
    A(f"s_mov_b32 s{sSpin}, 0")
    A("s_waitcnt vmcnt(0)")
    lp, ld = A.newlabel("L_f3p"), A.newlabel("L_f3d")
    A(f"buffer_load_dword v3, v2, {W}, s63 offen sc1")
    A("s_sleep 3")
    A(f"buffer_load_dword v56, v2, {W}, s63 offen sc1")
    A("s_sleep 3")
    A.label(lp)
    A(f"buffer_load_dword v57, v2, {W}, s63 offen sc1")
    A("s_waitcnt vmcnt(2)")
    A(f"v_cmp_ne_u32 vcc, s{sNonce}, v3")
    A("s_nop 0")
    A("s_cmp_eq_u64 vcc, 0")
    A(f"s_cbranch_scc1 {ld}")
    A(f"buffer_load_dword v3, v2, {W}, s63 offen sc1")
    A("s_waitcnt vmcnt(2)")
    A(f"v_cmp_ne_u32 vcc, s{sNonce}, v56")
    A("s_nop 0")
    A("s_cmp_eq_u64 vcc, 0")
    A(f"s_cbranch_scc1 {ld}")
    A(f"buffer_load_dword v56, v2, {W}, s63 offen sc1")
    A("s_waitcnt vmcnt(2)")
    A(f"v_cmp_ne_u32 vcc, s{sNonce}, v57")
    A("s_nop 0")
    A("s_cmp_eq_u64 vcc, 0")
    A(f"s_cbranch_scc1 {ld}")
    A(f"s_add_u32 s{sSpin}, s{sSpin}, 1")
    A(f"s_cmp_lt_u32 s{sSpin}, {SPIN_MAX}")
    A(f"s_cbranch_scc1 {lp}")
    A.label(ld)
    A.label(l)
    A("s_barrier")
    stamp(A, 9)
    A(f"s_mul_i32 s61, s{sTile3}, {48*1024}")
    A(f"s_lshl_b32 s62, s{sPar}, 11")
    A("s_add_u32 s61, s61, s62")
    A(f"s_add_u32 s61, s61, {O_OFF}")
    for i in range(12):
        A(f"buffer_load_dwordx4 {v(ACTX+4*i,4)}, v{vActReal}, {W}, s61 offen{SC1}")
        A("s_add_u32 s61, s61, 4096")
    consume(list(range(24, 32)), lambda i: (ACTX + 4 * i, 11 - i))
    A("s_waitcnt vmcnt(0)")
    A("s_barrier")
    consume(list(range(32, 36)), lambda i: (ACTX + 4 * (8 + i), None))
    stamp(A, 10)
    A("s_nop 7")
    A(f"s_mul_i32 s61, s{sT16}, 5120")
    A(f"s_add_u32 s61, s61, {XCH}")
    A(f"v_add_u32 v56, s61, v{vL16p}")
    A(f"s_cmp_eq_u32 s{sPar}, 0")
    A("s_cbranch_scc1 L_red")
    for t in range(5):
        A(f"ds_write_b128 v56, {v(DACC+4*t,4)} offset:{1024*t}")
    A("s_waitcnt lgkmcnt(0)")
    A("s_barrier")
    prof_end(A)
    A("s_endpgm")
    A.label("L_red")
    A("s_barrier")
    for t in range(5):
        A(f"ds_read_b128 {v(32+4*t,4)}, v56 offset:{1024*t}")
    A("s_waitcnt lgkmcnt(0)")
    for r in range(20):
        A(f"v_add_f32 v{DACC+r}, v{DACC+r}, v{32+r}")
    A("v_and_b32 v57, 15, v1")
    A("v_mul_u32_u24 v57, 1280, v57")
    A("v_lshrrev_b32 v2, 4, v1")
    A("v_lshl_add_u32 v57, v2, 3, v57")
    A(f"s_lshl_b32 s61, s{sTB64}, 6")
    A(f"s_lshl_b32 s62, s{sT16}, 4")
    A("s_add_u32 s61, s61, s62")
    A("s_mul_i32 s61, s61, 1280")
    A(f"s_add_u32 s61, s61, s{sColb}")
    for t in range(5):
        A(f"v_cvt_pk_bf16_f32 v{64+2*t}, v{DACC+4*t}, v{DACC+4*t+1}")
        A(f"v_cvt_pk_bf16_f32 v{64+2*t+1}, v{DACC+4*t+2}, v{DACC+4*t+3}")
        A(f"buffer_store_dwordx2 {v(64+2*t,2)}, v57, s[{SOUT}:{SOUT+3}], s61 offen offset:{32*t}{OUTF}")
    prof_end(A)
    A("s_endpgm")
    return A.text()


HEADER = """; gated mix of MHA block and GEGLU FFN -- single persistent kernel, 256 workgroups x 512 threads
"""


def build():
    out = HEADER
    out += f"; @launch grid=(256,1,1) block=(512,1,1) lds={LDS_SZ}\n"
    out += '.amdgcn_target "amdgcn-amd-amdhsa--gfx950"\n.text\n'
    out += f".globl {KNAME}\n" + gen()
    out += kernel_desc(KNAME, 256)
    return out


if __name__ == "__main__":
    if "--prof" in sys.argv:
        PROF = True
        sys.argv.remove("--prof")
    dst = sys.argv[1] if len(sys.argv) > 1 else f"cdna_kernels/{NAME}.s"
    open(dst, "w").write(build())
    print("wrote", dst)
```

```python
import sys, os, struct
from asmlib import *

NAME = "gated_mix__mha_block__glu_gated_geglu__prompt"
KNAME = NAME + "_kernel"

QF_OFF = 0
QF_SZ = 32 * 64 * 1280
KV_OFF = QF_OFF + QF_SZ
KV_SZ = 32 * 64 * 2560
H_OFF = KV_OFF + KV_SZ
H_SZ = 64 * 96 * 1024
O_OFF = H_OFF + H_SZ
O_SZ = 64 * 48 * 1024
G_OFF = O_OFF + O_SZ
G_SZ = 8192
F1_OFF = G_OFF + G_SZ
F2_OFF = F1_OFF + 1024
F3_OFF = F2_OFF + 1024
F_END = F3_OFF + 8192
PROF_OFF = F_END
PROF_SZ = 256 * 8 * 64
WS_USED = PROF_OFF + PROF_SZ
PROF = False
DBG = set(os.environ.get("DBG", "").split(","))
SC1 = " sc1"
OUTF = " sc1" if "outsc1" in DBG else (" nt" if "outnt" in DBG else (" sc0 sc1" if "outsc01" in DBG else ""))

LOG2E = 1.4426950408889634
QSCALE = LOG2E * (20 ** -0.5)
SPIN_MAX = 1 << 14


def f2u(x):
    return struct.unpack("<I", struct.pack("<f", x))[0]


def hx(x):
    return hex(x & 0xffffffff)


P_AX, P_WQKV, P_WO, P_BX, P_WG, P_WU, P_WD, P_GW = 36, 38, 40, 42, 44, 46, 48, 50
P_OUT, P_WS, P_DBG = 52, 54, 34
SX, SWQ, SWG, SWU, SW1, SWS, SDB = 4, 8, 12, 16, 20, 24, 28
SWD, SWO, SOUT, SPA, SPB = 4, 8, 12, 16, 20
SK = 40
sTB, sCG, sTT, sWC, sNonce = 56, 57, 58, 59, 60
T0, T1, T2, T3 = 61, 62, 63, 64
sSpin = 75
NSTAMP = 12
STAMP0 = 76

XRING = 0
WRING = 49152
WSLOT = 24640
UPOFF = 12288 + 32
KVB = 122880
KVSLOT = 5120
XCH = KVB + 2 * KVSLOT
LDS_SZ = 163840
WPER = 10240
PB, NB = 12, 20

vLane = 1
vXo, vWoQ, vWo0, vWo1, vWo2 = 4, 5, 6, 7, 14
vXa, vWaQ, vWaG = 8, 12, 15
XA, XB = 32, 40
ACC = 64
WA, WB = 112, 136
vN = 62
K0, K1, V0, V1 = 16, 20, 24, 28
P = 48
S = [64, 80]
E = 96
DACC = 112
WF = 132
Q0 = [160, 168]
Q1 = [164, 172]
vGt, vL16p, vT8p, vK0, vK1, vV = 176, 177, 178, 179, 180, 181
vActReal, vAct, vWr, vWA, vPB, vG2 = 182, 183, 184, 185, 186, 187
vWAm, vWBm, vWAr, vWBr, vKVo, vW0, vW1 = 188, 189, 190, 191, 192, 193, 194
vWB = 195
ACT = 200
O = [216, 232]
ACTX = 64
WF2 = [132, 16]
XCL = [16, 20, 24, 28, 48, 52, 160, 164, 168, 172] + list(range(200, 256, 4))
NXC = 0 if 'noxc' in DBG else 6


def XC(k, j):
    return XCL[4 * k + j]


CLK = "s_memtime" if "clk" in DBG else "s_memrealtime"


def stamp(A, idx, alt=False):
    if "gust" in DBG and idx in (8, 9, 10) and not alt:
        return
    if "gust" not in DBG and alt:
        return
    if PROF:
        A(f"{CLK} s[{STAMP0+2*idx}:{STAMP0+2*idx+1}]")


def prof_end(A):
    if not PROF:
        return
    A(f"{CLK} s[{STAMP0+2*(NSTAMP-1)}:{STAMP0+2*(NSTAMP-1)+1}]")
    A("s_waitcnt lgkmcnt(0)")
    A("s_lshl_b32 s61, s2, 3")
    A("s_add_u32 s61, s61, s3")
    A("s_lshl_b32 s61, s61, 6")
    A(f"s_add_u32 s61, s61, {PROF_OFF}")
    for i in range(NSTAMP):
        A(f"v_mov_b32 v{4+i}, s{STAMP0+2*i}")
    A("v_mov_b32 v0, 0")
    A("s_mov_b64 exec, 1")
    for i in range(3):
        A(f"buffer_store_dwordx4 v[{4+4*i}:{7+4*i}], v0, s[{SWS}:{SWS+3}], s61 offen offset:{16*i}")


def spin(A, name, issue, check):
    l0, l1 = A.newlabel("L_sp" + name), A.newlabel("L_spd" + name)
    A(f"s_mov_b32 s{sSpin}, 0")
    A.label(l0)
    issue()
    A("s_waitcnt vmcnt(0)")
    check()
    A(f"s_cbranch_scc1 {l1}")
    A(f"s_add_u32 s{sSpin}, s{sSpin}, 1")
    A(f"s_cmp_ge_u32 s{sSpin}, {SPIN_MAX}")
    A(f"s_cbranch_scc1 {l1}")
    A("s_sleep 2")
    A(f"s_branch {l0}")
    A.label(l1)


def poll_pre(A, name, issue, check):
    l = A.newlabel("L_pp" + name)
    check()
    A(f"s_cbranch_scc1 {l}")
    spin(A, name, issue, check)
    A.label(l)


W = f"s[{SWS}:{SWS+3}]"


def gen():
    A = Asm("k_")
    A(f".p2align 8\n.type {KNAME},@function")
    A.label(KNAME)
    stamp(A, 0)
    A("s_cmp_ge_u32 s2, 256")
    A("s_cbranch_scc0 L_go")
    A("s_endpgm")
    A.label("L_go")
    A("s_load_dwordx16 s[36:51], s[0:1], 0")
    A("s_load_dwordx2 s[52:53], s[0:1], 64")
    A("s_load_dwordx2 s[34:35], s[0:1], 72")
    A("s_load_dwordx2 s[54:55], s[0:1], 80")
    A("v_lshrrev_b32 v2, 6, v0")
    A("v_and_b32 v1, 63, v0")
    A("s_nop 0")
    A("v_readfirstlane_b32 s3, v2")
    A("s_and_b32 s61, s2, 7")
    A("s_lshr_b32 s62, s2, 3")
    A(f"s_lshr_b32 s{sTB}, s61, 1")
    A(f"s_lshl_b32 s{sTB}, s{sTB}, 2")
    A("s_and_b32 s63, s62, 3")
    A(f"s_add_u32 s{sTB}, s{sTB}, s63")
    A(f"s_and_b32 s{sCG}, s61, 1")
    A(f"s_lshl_b32 s{sCG}, s{sCG}, 3")
    A("s_lshr_b32 s63, s62, 2")
    A(f"s_add_u32 s{sCG}, s{sCG}, s63")
    A(f"s_and_b32 s{sTT}, s3, 3")
    A(f"s_lshr_b32 s{sWC}, s3, 2")
    A("v_lshrrev_b32 v16, 3, v1")
    A("s_lshl_b32 s61, s3, 3")
    A("v_add_u32 v16, s61, v16")
    A("v_lshrrev_b32 v17, 1, v16")
    A("v_and_b32 v17, 7, v17")
    A("v_and_b32 v18, 7, v1")
    A("v_xor_b32 v17, v17, v18")
    A("v_lshlrev_b32 v17, 4, v17")
    A("v_mul_u32_u24 v16, 1280, v16")
    A(f"v_add_u32 v{vXo}, v16, v17")
    A("v_lshrrev_b32 v16, 4, v1")
    A("v_lshlrev_b32 v17, 2, v16")
    A("v_and_b32 v18, 15, v1")
    A("v_xor_b32 v17, v17, v18")
    A("v_lshlrev_b32 v17, 4, v17")
    A("s_lshl_b32 s61, s3, 2")
    A("v_add_u32 v16, s61, v16")
    A("v_mul_u32_u24 v16, 3840, v16")
    A(f"v_add_u32 v{vWoQ}, v16, v17")
    sXs, sXs2, sWs, sWs2, sGs, sGx = 32, 33, 66, 67, 72, 73
    sM0x, sM0q, sM0g0, sM0g1, sM0g2 = 74, 65, 100, 101, 71
    sStage, sSlot = 69, 70
    sXslot, sWslot, sDX, sDW = 44, 45, 46, 47
    A(f"s_mul_i32 s{sXs}, s{sTB}, {128*1280}")
    A(f"s_mul_i32 s61, s{sCG}, 240")
    A(f"s_sub_u32 s62, s{sCG}, 11")
    A("s_lshl_b32 s62, s62, 8")
    A("s_add_u32 s62, s62, 2560")
    A(f"s_cmp_lt_u32 s{sCG}, 11")
    A(f"s_cselect_b32 s{sWs}, s61, s62")
    A(f"s_lshl_b32 s{sM0x}, s3, 10")
    A(f"s_add_u32 s{sM0q}, s{sM0x}, {WRING}")
    A("v_lshlrev_b32 v2, 2, v1")
    A("s_waitcnt lgkmcnt(0)")
    srd(A, SX, P_AX, 2048 * 1280)
    srd(A, SWQ, P_WQKV, 640 * 3840)

    def dma_groups(g):
        slot = g % 3
        k = g if g < 10 else g - 10
        out = []
        xs = slot * 16384
        ws_ = slot * WSLOT
        for half in range(2):
            if g >= 10 and k < NXC:
                continue
            out.append([f"s_add_u32 m0, s{sM0x}, {xs + 8192*half}",
                        f"s_add_u32 s{sXs2}, s{sXs}, {k*128 + 81920*half}",
                        f"buffer_load_dwordx4 v{vXo}, s[{SX}:{SX+3}], s{sXs2} offen lds"])
        if g < 10:
            for half in range(2):
                out.append([f"s_add_u32 m0, s{sM0q}, {ws_ + 8192*half}",
                            f"s_add_u32 s{sWs2}, s{sWs}, {(k*64 + 32*half)*3840}",
                            f"buffer_load_dwordx4 v{vWoQ}, s[{SWQ}:{SWQ+3}], s{sWs2} offen lds"])
        else:
            for (sm, vo, sr) in ((sM0g0, vWo0, SWG), (sM0g1, vWo1, SW1), (sM0g2, vWo2, SWU)):
                out.append([f"s_add_u32 m0, s{sm}, {ws_}",
                            f"s_add_u32 s{sWs2}, s{sGs}, {k*64*3072}",
                            f"buffer_load_dwordx4 v{vo}, s[{sr}:{sr+3}], s{sWs2} offen lds"])
        if "p1nodma" in DBG and g >= 3:
            return [[] for _ in out]
        return out

    srd(A, SDB, P_DBG, 256)
    A("s_or_b32 s61, s2, s3")
    A("s_cmp_eq_u32 s61, 0")

    def pub(lb):
        A("s_memrealtime s[62:63]")
        A("s_waitcnt lgkmcnt(0)")
        A("s_or_b32 s62, s62, 1")
        A("v_mov_b32 v16, s62")
        A("v_mov_b32 v17, 0")
        A("s_mov_b64 exec, 1")
        A(f"buffer_store_dword v16, v17, s[{SDB}:{SDB+3}], 0 offen sc1")
        A("s_mov_b64 exec, -1")
    A.rare([], pub)
    for st in range(3):
        for grp in dma_groups(st):
            for x in grp:
                A(x)
    SGW = 68
    srd(A, SGW, P_GW, 1280)
    vGX, vGW = 100, 106
    sTOK = 33
    sGoff = 0
    A(f"s_lshl_b32 s{sTOK}, s{sTB}, 7")
    A(f"s_lshl_b32 s61, s{sCG}, 3")
    A(f"s_add_u32 s{sTOK}, s{sTOK}, s61")
    A(f"s_add_u32 s{sTOK}, s{sTOK}, s3")
    A(f"s_lshl_b32 s{sGoff}, s{sTOK}, 2")
    A(f"s_add_u32 s{sGoff}, s{sGoff}, {G_OFF}")
    A(f"s_mul_i32 s61, s{sTOK}, 1280")
    for m in range(5):
        A(f"buffer_load_dword v{vGX+m}, v2, s[{SX}:{SX+3}], s61 offen offset:{256*m}")
    for m in range(5):
        A(f"buffer_load_dword v{vGW+m}, v2, s[{SGW}:{SGW+3}], 0 offen offset:{256*m}")
    srd(A, SWG, P_WG, 640 * 3072)
    srd(A, SWU, P_WU, 640 * 3072)
    NPF = 0 if "nopf" in DBG else 1

    def prefetch():
        A("s_mov_b32 s60, s4\ns_mov_b32 s61, s5")
        A(f"s_mov_b32 s62, {2048*1280}")
        A("s_mov_b32 s64, 10240")
        for (wmin, lo, hi, sz, ch) in ((2, 8, 9, 640*3840, 9600), (4, 12, 13, 640*3072, 7680), (5, 16, 17, 640*3072, 7680),
                                       (6, 48, 49, 1536*1280, 7680), (7, 40, 41, 640*1280, 3200)):
            A(f"s_cmp_ge_u32 s3, {wmin}")
            A(f"s_cselect_b32 s60, s{lo}, s60")
            A(f"s_cselect_b32 s61, s{hi}, s61")
            A(f"s_cselect_b32 s62, {sz}, s62")
            A(f"s_cselect_b32 s64, {ch}, s64")
        A("s_and_b32 s61, s61, 0xffff")
        A("s_mov_b32 s63, 0x20000")
        A("s_cmp_lt_u32 s3, 4")
        A("s_cselect_b32 s75, 1, 0")
        A("s_and_b32 s75, s75, s3")
        A("s_lshl_b32 s75, s75, 13")
        A("v_lshlrev_b32 v3, 7, v1")
        A("v_add_u32 v3, s75, v3")
        A("v_cmp_gt_u32 vcc, s64, v3")
        A("s_mul_i32 s64, s64, s2")
        A("s_mov_b64 exec, vcc")
        A("buffer_load_dword v59, v3, s[60:63], s64 offen")
        A("s_mov_b64 exec, -1")
    if NPF and "pflate" not in DBG:
        prefetch()
    srd(A, SWS, P_WS, WS_USED)
    A("s_cmp_lt_u32 s3, 4")
    for k in range(4):
        A(f"s_cselect_b32 s{SW1+k}, s{SWG+k}, s{SWU+k}")

    A("v_and_b32 v16, 31, v1")
    A("v_lshrrev_b32 v17, 5, v1")
    A("v_lshrrev_b32 v18, 1, v16")
    A("v_and_b32 v18, 7, v18")
    A(f"s_lshl_b32 s61, s{sTT}, 5")
    A("v_add_u32 v19, s61, v16")
    A("v_lshlrev_b32 v19, 7, v19")
    for j in range(4):
        A(f"v_add_u32 v20, {2*j}, v17")
        A("v_xor_b32 v20, v20, v18")
        A("v_lshlrev_b32 v20, 4, v20")
        A(f"v_add_u32 v{vXa+j}, v19, v20")
    A("v_and_b32 v18, 15, v1")
    A("v_lshrrev_b32 v19, 2, v18")
    A("v_lshrrev_b32 v20, 4, v1")
    A(f"s_cmp_lt_u32 s{sCG}, 11")
    A("s_cselect_b32 s61, 8, 0")
    A("s_sub_u32 s61, 128, s61")
    A(f"s_mul_i32 s61, s61, s{sWC}")
    A("v_lshrrev_b32 v21, 1, v20")
    A("v_lshl_add_u32 v21, v21, 3, v19")
    A("v_lshlrev_b32 v27, 8, v21")
    A(f"v_add_u32 v27, {WRING}, v27")
    A("v_and_b32 v22, 1, v20")
    A("v_lshlrev_b32 v22, 5, v22")
    A("v_and_b32 v23, 3, v1")
    A("v_lshl_add_u32 v22, v23, 3, v22")
    A("v_add_u32 v22, s61, v22")
    A("v_and_b32 v24, 3, v19")
    A("v_lshlrev_b32 v24, 2, v24")
    for t in range(2):
        A(f"v_add_u32 v25, {64*t}, v22")
        A("v_lshrrev_b32 v26, 4, v25")
        A("v_xor_b32 v26, v26, v24")
        A("v_lshlrev_b32 v26, 4, v26")
        A("v_and_b32 v25, 15, v25")
        A(f"v_add3_u32 v{vWaQ+t}, v27, v26, v25")
    A("v_mul_u32_u24 v21, 192, v21")
    A("v_and_b32 v22, 1, v20")
    A(f"v_mul_u32_u24 v22, {UPOFF}, v22")
    A("v_lshlrev_b32 v23, 3, v23")
    A("v_add3_u32 v21, v21, v22, v23")
    A(f"s_mul_i32 s61, s{sWC}, 96")
    A(f"s_add_u32 s61, s61, {WRING}")
    A(f"v_add_u32 v{vWaG}, s61, v21")
    A("s_add_u32 s61, s3, 8")
    A("s_sub_u32 s62, s3, 4")
    A("s_cmp_lt_u32 s3, 4")
    A("s_cselect_b32 s63, s61, s62")
    A(f"s_cselect_b32 s64, 0, {UPOFF}")
    A(f"s_lshl_b32 s{sM0g1}, s63, 10")
    A(f"s_add_u32 s{sM0g1}, s{sM0g1}, s64")
    A(f"s_add_u32 s{sM0g1}, s{sM0g1}, {WRING}")
    A("s_add_u32 s64, s3, 4")
    A(f"s_lshl_b32 s{sM0g2}, s64, 10")
    A(f"s_add_u32 s{sM0g2}, s{sM0g2}, {WRING + UPOFF}")
    A(f"s_lshl_b32 s{sM0g0}, s3, 10")
    A(f"s_add_u32 s{sM0g0}, s{sM0g0}, {WRING}")
    for (vd, sj) in ((vWo0, 3), (vWo1, 63), (vWo2, 64)):
        A(f"s_lshl_b32 s61, s{sj}, 6")
        A("v_add_u32 v21, s61, v1")
        magic_div(A, 22, 21, 12, 768, 62)
        A("v_mul_u32_u24 v23, 12, v22")
        A("v_sub_u32 v23, v21, v23")
        A("v_lshlrev_b32 v23, 4, v23")
        A("v_mul_u32_u24 v22, 3072, v22")
        A(f"v_add_u32 v{vd}, v22, v23")
    A(f"s_mul_i32 s{sGs}, s{sCG}, 192")

    A(f"v_lshlrev_b32 v{vL16p}, 4, v1")
    A(f"v_and_b32 v16, 31, v1")
    A(f"v_lshlrev_b32 v{vT8p}, 3, v16")
    A(f"v_lshlrev_b32 v{vGt}, 2, v16")
    A(f"s_mul_i32 s61, s{sWC}, 2560")
    A(f"s_add_u32 s61, s61, {KVB + 4*KVSLOT}")
    A(f"v_add_u32 v{vK0}, s61, v{vL16p}")
    A(f"v_add_u32 v{vK1}, s61, v{vT8p}")
    A(f"v_add_u32 v{vK1}, 1024, v{vK1}")
    A("v_lshrrev_b32 v17, 5, v1")
    A("v_mul_u32_u24 v17, 320, v17")
    A("v_lshlrev_b32 v18, 4, v16")
    A("v_add3_u32 v17, v17, v18, s61")
    A(f"v_add_u32 v{vV}, 1280, v17")
    A("s_sub_i32 s61, s3, 2")
    A("s_max_i32 s61, s61, 0")
    A("s_min_i32 s61, s61, 4")
    A("s_lshl_b32 s62, s61, 10")
    A(f"v_add_u32 v{vKVo}, s62, v{vL16p}")
    A(f"v_cmp_le_u32 vcc, 2560, v{vKVo}")
    A(f"v_add_u32 v17, {32*2560-2560}, v{vKVo}")
    A("s_nop 0")
    A(f"v_cndmask_b32 v{vKVo}, v{vKVo}, v17, vcc")
    A("v_lshrrev_b32 v17, 4, v1")
    A("v_lshrrev_b32 v18, 1, v17")
    A("v_lshlrev_b32 v18, 10, v18")
    A("v_and_b32 v19, 1, v17")
    A("v_lshlrev_b32 v19, 9, v19")
    A("v_and_b32 v20, 15, v1")
    A(f"s_and_b32 s61, s{sTT}, 1")
    A("s_lshl_b32 s61, s61, 4")
    A("v_add_u32 v20, s61, v20")
    A("v_lshlrev_b32 v21, 4, v20")
    A(f"v_add3_u32 v{vActReal}, v18, v19, v21")
    A(f"v_mov_b32 v{vAct}, v{vActReal}")
    A(f"v_lshlrev_b32 v{vG2}, 2, v20")
    A("v_lshrrev_b32 v18, 1, v17")
    A("v_lshlrev_b32 v18, 4, v18")
    A("v_and_b32 v19, 1, v17")
    A("v_lshl_add_u32 v18, v19, 2, v18")
    A("v_and_b32 v19, 15, v1")
    A("v_lshrrev_b32 v19, 2, v19")
    A("v_add_u32 v18, v18, v19")
    A("v_mul_u32_u24 v18, 160, v18")
    A("v_and_b32 v19, 3, v1")
    A("v_lshl_add_u32 v18, v19, 3, v18")
    A(f"s_mul_i32 s61, s{sWC}, 5120")
    A(f"v_add_u32 v{vWr}, s61, v18")
    A(f"v_mov_b32 v{vW0}, v{vWr}")
    A(f"v_add_u32 v{vW1}, 61440, v{vWr}")
    A("s_cmp_ge_u32 s3, 5")
    A("s_cselect_b32 s63, 5, 0")
    A("s_sub_u32 s63, s3, s63")
    A("s_add_u32 s64, s3, 3")
    A("s_min_u32 s64, s64, 4")
    for (sj, vh, vm, vr) in ((63, vWA, vWAm, vWAr), (64, vWB, vWBm, vWBr)):
        A(f"s_lshl_b32 s61, s{sj}, 6")
        A("v_add_u32 v22, s61, v1")
        magic_div(A, 23, 22, 10, 320, 62)
        A("v_mul_u32_u24 v24, 10, v23")
        A("v_sub_u32 v24, v22, v24")
        A("v_lshlrev_b32 v24, 4, v24")
        A("v_mul_u32_u24 v25, 1280, v23")
        A(f"v_add_u32 v{vh}, v25, v24")
        A("v_lshrrev_b32 v25, 4, v23")
        A("v_mul_u32_u24 v25, 20, v25")
        A("v_and_b32 v26, 15, v23")
        A("v_add_u32 v25, v25, v26")
        A("v_mul_u32_u24 v25, 1280, v25")
        A(f"v_add_u32 v{vm}, v25, v24")
        A("v_lshrrev_b32 v25, 4, v23")
        A("v_lshlrev_b32 v25, 1, v25")
        A("v_bfe_u32 v26, v23, 2, 1")
        A("v_add_u32 v25, v25, v26")
        A("v_mul_u32_u24 v25, 20, v25")
        A("v_and_b32 v26, 3, v23")
        A("v_add3_u32 v25, v25, v26, 16")
        A("v_mul_u32_u24 v25, 1280, v25")
        A(f"v_add_u32 v{vr}, v25, v24")
    A("s_cmp_lt_u32 s3, 2")
    A("s_cselect_b64 vcc, -1, 0")
    A("s_nop 1")
    A(f"v_cndmask_b32 v{vPB}, v{vKVo}, v{vWB}, vcc")
    ONE2 = 0x3f803f80

    def p2_inits(part):
        if part == 0:
            A("v_and_b32 v56, 31, v1")
            A("v_cmp_eq_u32 vcc, 20, v56")
            A(f"v_mov_b32 v57, {hx(ONE2)}")
            A("s_nop 0")
            A("v_cndmask_b32 v58, 0, v57, vcc")
            for r in range(8):
                A(f"v_mov_b32 v{V0+r}, v58")
            A(f"v_mov_b32 v{K1+2}, {hx(ONE2)}")
            A(f"v_mov_b32 v{K1+3}, 0x3f80")
            for r in range(8):
                A(f"v_mov_b32 v{P+r}, 0")
        else:
            for r in range(32):
                A(f"v_mov_b32 v{O[0]+r}, 0")


    def gate_compute():
        A("v_mov_b32 v56, 0")
        for m in range(5):
            A(f"v_dot2_f32_bf16 v56, v{vGX+m}, v{vGW+m}, v56")
        A("s_nop 3")
        for sh in (1, 2, 4, 8):
            A(f"v_add_f32_dpp v56, v56, v56 row_shr:{sh} row_mask:0xf bank_mask:0xf bound_ctrl:0")
            A("s_nop 1")
        A("v_add_f32_dpp v56, v56, v56 row_bcast:15 row_mask:0xa bank_mask:0xf")
        A("s_nop 1")
        A("v_add_f32_dpp v56, v56, v56 row_bcast:31 row_mask:0xc bank_mask:0xf")
        A("s_nop 1")
        A(f"v_mul_f32 v56, {hx(f2u(-LOG2E))}, v56")
        A("v_exp_f32 v56, v56")
        A("s_nop 0")
        A("v_add_f32 v56, 1.0, v56")
        A("v_rcp_f32 v63, v56")

    if NPF and "pflate" in DBG:
        prefetch()
    A(f"s_waitcnt vmcnt({8+10+NPF})")
    A("s_barrier")
    stamp(A, 1)

    def xoff(g):
        return (g % 3) * 16384

    def woff(g):
        return (g % 3) * WSLOT

    def xreg(setX, g, half, jj):
        k = g if g < 10 else g - 10
        return XC(k, 2 * half + jj) if k < NXC else setX + 4 * jj

    def qkv_reads(setX, setW, g, half):
        r = []
        for jj in range(2):
            j = 2 * half + jj
            r.append(f"ds_read_b128 {v(xreg(setX, g, half, jj),4)}, v{vXa+j} offset:{xoff(g)}")
            for t in range(2):
                d = setW + 8 * jj + 4 * t
                o = woff(g) + j * 4096
                r.append(f"ds_read_b64_tr_b16 {v(d,2)}, v{vWaQ+t} offset:{o}")
                r.append(f"ds_read_b64_tr_b16 {v(d+2,2)}, v{vWaQ+t} offset:{o+1024}")
        return r

    def qkv_mfmas(setX, setW, g, half, vtype):
        m = []
        for jj in range(2):
            for t in range(2):
                a, b = setW + 8 * jj + 4 * t, xreg(setX, g, half, jj)
                if vtype:
                    a, b = b, a
                m.append(mfma32(ACC + 16 * t, a, b, "0" if (g == 0 and half == 0 and jj == 0) else None))
        return m

    def gu_reads(setX, setW, g, half):
        r = []
        for jj in range(2):
            j = 2 * half + jj
            if g - 10 >= NXC:
                r.append(f"ds_read_b128 {v(setX+4*jj,4)}, v{vXa+j} offset:{xoff(g)}")
            for t in range(3):
                d = setW + 12 * jj + 4 * t
                o = woff(g) + j * 3072 + 32 * t
                a = vWaG
                assert o + 768 < 65536
                r.append(f"ds_read_b64_tr_b16 {v(d,2)}, v{a} offset:{o}")
                r.append(f"ds_read_b64_tr_b16 {v(d+2,2)}, v{a} offset:{o+768}")
        return r

    def gu_mfmas(setX, setW, g, half):
        m = []
        for jj in range(2):
            for t in range(3):
                m.append(mfma32(ACC + 16 * t, setW + 12 * jj + 4 * t, xreg(setX, g, half, jj), "0" if (g == 10 and half == 0 and jj == 0) else None))
        return m

    def emit_half(mm, rr, dd, fill=()):
        if "p1noreads" in DBG: rr = []
        if "p1nomfma" in DBG: mm = ["s_nop 0"] * len(mm)
        n = len(mm)
        ng = n - 1
        if 'nghalf' in DBG: ng = max(1, n // 2)
        if 'ngm2' in DBG: ng = max(1, n - 2)
        if 'ngall' in DBG: ng = n
        per = (len(rr) + ng - 1) // ng
        pos = {}
        for i, grp in enumerate(dd):
            p_ = min(n - 1, (i * n) // max(1, len(dd)) + (0 if len(dd) > 2 else 1))
            pos.setdefault(p_, []).append(grp)
        load = [0] * n
        ri = 0
        for i in range(n):
            load[i] += len(rr[ri:ri + per]); ri += per
            load[i] += sum(len(g_) for g_ in pos.get(i, []))
        total = sum(load) + sum(len(g_) for g_ in fill)
        target = total / n
        fpos = [[] for _ in range(n)]
        gi = 0
        for g_ in fill:
            while gi < n - 1 and load[gi] >= target:
                gi += 1
            fpos[gi].append(g_); load[gi] += len(g_)
        ri = 0
        for i, m in enumerate(mm):
            A(m)
            for r in rr[ri:ri + per]:
                A(r)
            ri += per
            for grp in pos.get(i, []):
                for x in grp:
                    A(x)
            for grp in fpos[i]:
                for x in grp:
                    A(x)
        for r in rr[ri:]:
            A(r)

    def stage(g, reads, mfmas, wait, pre=None, post=None, fill0=(), fill1=()):
        d2 = dma_groups(g + 2)[2:] if (3 <= g + 2 <= 19 and g + 2 != 12) else []
        d3 = dma_groups(g + 3)[:2] if g + 3 <= 19 else []
        if g + 3 == 12:
            d3 = dma_groups(12)
        A("s_waitcnt lgkmcnt(0)")
        emit_half(mfmas(XA, WA, g, 0), reads(XB, WB, g, 1), d2, fill0)
        if pre: pre()
        if g == 12: stamp(A, 8, True)
        if g == 18: stamp(A, 9, True)
        wait()
        A("s_barrier")
        if g == 18: stamp(A, 10, True)
        nr = reads(XA, WA, g + 1, 0) if g not in (9, 19) else []
        emit_half(mfmas(XB, WB, g, 1), nr, d3, fill1)
        if post: post()

    def qkv_phase(vtype):
        for r in qkv_reads(XA, WA, 0, 0):
            A(r)
        for g in range(10):
            n = len(dma_groups(g + 2)) + (10 + NPF if g < 2 else 0)
            f0 = [capture(A, gate_compute)] if g == 3 else ()
            stage(g, qkv_reads, lambda x, w, g_, h_: qkv_mfmas(x, w, g_, h_, vtype), lambda n=n: A(f"s_waitcnt vmcnt({n}) lgkmcnt(0)"), fill0=atomic_groups(f0[0]) if f0 else ())

    sCls = 35
    A(f"s_cmp_ge_u32 s{sCG}, 11")
    A("s_cbranch_scc1 L_vtype")
    qkv_phase(False)
    stamp(A, 2)
    A("s_waitcnt lgkmcnt(0)")
    A("s_nop 7\ns_nop 7")
    PK = 32
    sU, sTile, sD = 65, 66, 67
    A(f"s_mul_i32 s{sU}, s{sCG}, 6")
    A(f"s_mul_i32 s61, s{sWC}, 3")
    A(f"s_add_u32 s{sU}, s{sU}, s61")
    A(f"s_lshl_b32 s{sTile}, s{sTB}, 2")
    A(f"s_add_u32 s{sTile}, s{sTile}, s{sTT}")
    A(f"s_add_u32 s61, s{sU}, 1")
    A("s_cmp_lt_u32 s61, 32")
    A(f"s_cselect_b32 s62, {hx(f2u(QSCALE))}, 1.0")
    A(f"s_add_u32 s61, s{sU}, 2")
    A("s_cmp_lt_u32 s61, 32")
    A(f"s_cselect_b32 s63, {hx(f2u(QSCALE))}, 1.0")
    for r in range(32):
        G = r // 4
        A(f"v_mul_f32 v{ACC+r}, s{62 if G < 5 else 63}, v{ACC+r}")
    for p in range(16):
        A(f"v_cvt_pk_bf16_f32 v{PK+p}, v{ACC+2*p}, v{ACC+2*p+1}")
    vL16x = 58
    A(f"v_xor_b32 v{vL16x}, 512, v{vL16p}")

    def dest(a):
        A(f"s_add_u32 s61, s{sU}, {a}")
        A("s_lshl_b32 s62, s61, 6")
        A(f"s_add_u32 s62, s62, s{sTile}")
        A("s_mul_i32 s63, s62, 1280")
        A(f"s_sub_u32 s62, s62, {32*64}")
        A("s_mul_i32 s62, s62, 2560")
        A(f"s_add_u32 s62, s62, {KV_OFF}")
        A("s_cmp_lt_u32 s61, 32")
        A(f"s_cselect_b32 s{sD}, s63, s62")
    dest(0)
    A(f"buffer_store_dwordx4 {v(PK,4)}, v{vL16p}, {W}, s{sD} offen{SC1}")
    A("s_mov_b32 exec_hi, 0")
    A(f"buffer_store_dwordx2 {v(PK+4,2)}, v{vT8p}, {W}, s{sD} offen offset:1024{SC1}")
    A("s_mov_b32 exec_hi, -1")
    A(f"s_mov_b32 s{sCls}, 2")
    A(f"s_cmp_ge_u32 s{sU}, 63")
    A("s_cbranch_scc1 L_qkv_done")
    A(f"s_mov_b32 s{sCls}, 0")
    dest(1)
    A("s_mov_b32 exec_hi, 0")
    A(f"buffer_store_dwordx4 {v(PK+6,4)}, v{vL16x}, {W}, s{sD} offen{SC1}")
    A("s_mov_b32 exec_lo, 0\ns_mov_b32 exec_hi, -1")
    A(f"buffer_store_dwordx4 {v(PK+4,4)}, v{vL16x}, {W}, s{sD} offen{SC1}")
    A(f"buffer_store_dwordx2 {v(PK+8,2)}, v{vT8p}, {W}, s{sD} offen offset:1024{SC1}")
    A("s_mov_b32 exec_lo, -1")
    dest(2)
    A(f"buffer_store_dwordx4 {v(PK+10,4)}, v{vL16p}, {W}, s{sD} offen{SC1}")
    A("s_mov_b32 exec_hi, 0")
    A(f"buffer_store_dwordx2 {v(PK+14,2)}, v{vT8p}, {W}, s{sD} offen offset:1024{SC1}")
    A("s_mov_b32 exec_hi, -1")
    A("s_branch L_qkv_done")

    A.label("L_vtype")
    qkv_phase(True)
    stamp(A, 2)
    A("s_waitcnt lgkmcnt(0)")
    A("s_nop 7\ns_nop 7")
    A(f"s_mov_b32 s{sCls}, 1")
    A(f"s_lshl_b32 s{sTile}, s{sTB}, 2")
    A(f"s_add_u32 s{sTile}, s{sTile}, s{sTT}")
    A(f"s_mul_i32 s{sD}, s{sTile}, 2560")
    A(f"s_add_u32 s{sD}, s{sD}, {KV_OFF + 1280}")
    A(f"s_sub_u32 s61, s{sCG}, 11")
    A("s_lshl_b32 s61, s61, 7")
    A(f"s_lshl_b32 s62, s{sWC}, 6")
    A("s_add_u32 s61, s61, s62")
    A("v_and_b32 v56, 31, v1")
    A("v_lshrrev_b32 v57, 5, v1")
    A("v_mul_u32_u24 v57, 320, v57")
    for t in range(2):
        A("v_add_u32 v58, s61, v56")
        if t:
            A("v_add_u32 v58, 32, v58")
        magic_div(A, 59, 58, 20, 640, 62)
        A("v_mul_u32_u24 v60, 20, v59")
        A("v_sub_u32 v60, v58, v60")
        A("v_lshlrev_b32 v60, 4, v60")
        A("s_mov_b32 s62, 163840")
        A("v_mul_lo_u32 v59, v59, s62")
        A(f"v_add3_u32 v{2+t}, v59, v60, v57")
    for t in range(2):
        for hf in range(2):
            base = ACC + 16 * t + 8 * hf
            dst = 32 + 8 * t + 4 * hf
            for p in range(4):
                A(f"v_cvt_pk_bf16_f32 v{dst+p}, v{base+2*p}, v{base+2*p+1}")
            A(f"buffer_store_dwordx4 {v(dst,4)}, v{2+t}, {W}, s{sD} offen offset:{640*hf}{SC1}")
    A.label("L_qkv_done")
    A("v_mov_b32 v3, 0")
    A("s_mov_b32 exec_lo, 0")
    A("s_mov_b32 exec_hi, 0x80000000")
    A(f"buffer_store_dword v63, v3, {W}, s{sGoff} offen{SC1}")
    A("s_mov_b64 exec, -1")
    stamp(A, 3)

    sHead, sQT, sKVs, sM0kv = 48, 49, 51, 65
    A("v_mov_b32 v3, 0")
    A(f"buffer_load_dword v{vN}, v3, s[{SDB}:{SDB+3}], 0 offen sc1")

    def gu_setup():
        A("s_mov_b32 s0, s48")
        A("s_mov_b32 s1, s49")
        A("s_and_b32 s61, s2, 7")
        A("s_lshr_b32 s62, s2, 3")
        A("s_lshl_b32 s61, s61, 2")
        A(f"s_lshr_b32 s{sHead}, s62, 3")
        A(f"s_add_u32 s{sHead}, s{sHead}, s61")
        A("s_and_b32 s62, s62, 7")
        A("s_lshl_b32 s62, s62, 3")
        A(f"s_lshl_b32 s61, s{sTT}, 1")
        A(f"s_add_u32 s{sQT}, s62, s61")
        A("s_mov_b32 s38, s40")
        A("s_mov_b32 s39, s41")
        srd(A, SK, P_WS, KV_SZ, add=KV_OFF)
        A("s_sub_i32 s61, s3, 2")
        A("s_max_i32 s61, s61, 0")
        A("s_min_i32 s61, s61, 4")
        A("s_lshl_b32 s62, s61, 10")
        A(f"s_add_u32 s{sM0kv}, s62, {KVB}")
        A(f"s_mul_i32 s{sKVs}, s{sHead}, 163840")

    def kv_dma(tile):
        A(f"s_add_u32 m0, s{sM0kv}, {((tile+4)%8)*KVSLOT}")
        A("s_nop 0")
        A(f"buffer_load_dwordx4 v{vKVo}, s[{SK}:{SK+3}], s{sKVs} offen{SC1} lds")
        A(f"s_add_u32 s{sKVs}, s{sKVs}, 2560")

    def p2_prologue():
        for a in range(2):
            A(f"s_lshl_b32 s61, s{sHead}, 6")
            A(f"s_add_u32 s61, s61, s{sQT}")
            A(f"s_add_u32 s61, s61, {a}")
            A("s_mul_i32 s61, s61, 1280")
            A(f"buffer_load_dwordx4 {v(Q0[a],4)}, v{vL16p}, {W}, s61 offen{SC1}")
            A(f"buffer_load_dwordx2 {v(Q1[a],2)}, v{vT8p}, {W}, s61 offen offset:1024{SC1}")
        A(f"s_add_u32 s61, s{sQT}, s{sWC}")
        A("s_lshl_b32 s61, s61, 7")
        A(f"s_add_u32 s61, s61, {G_OFF}")
        A(f"buffer_load_dword v{vGt}, v{vGt}, {W}, s61 offen{SC1}")
        for t in range(6):
            kv_dma(t)
        A(f"s_lshl_b32 s61, s{sTile3}, 7")
        A(f"s_add_u32 s61, s61, {G_OFF}")
        A(f"buffer_load_dword v{vG2}, v{vG2}, {W}, s61 offen{SC1}")

    def nonce_get():
        lk = A.newlabel("L_nk")
        A(f"v_readfirstlane_b32 s{sNonce}, v{vN}")
        A("s_nop 3")
        A(f"s_cmp_lg_u32 s{sNonce}, 0")
        A(f"s_cbranch_scc1 {lk}")

        def issue():
            A(f"buffer_load_dword v{vN}, v3, s[{SDB}:{SDB+3}], 0 offen sc1")

        def check():
            A(f"v_readfirstlane_b32 s{sNonce}, v{vN}")
            A("s_nop 3")
            A(f"s_cmp_lg_u32 s{sNonce}, 0")
        spin(A, "n", issue, check)
        A.label(lk)

    def f1_issue():
        A(f"s_mov_b32 s62, {F1_OFF}")
        A(f"buffer_load_dwordx4 v[56:59], v{vL16p}, {W}, s62 offen sc1")

    def f1_check():
        A(f"v_cmp_ne_u32 vcc, s{sNonce}, v56")
        A(f"v_cmp_ne_u32 s[62:63], s{sNonce}, v57")
        A("s_or_b64 vcc, vcc, s[62:63]")
        A(f"v_cmp_ne_u32 s[62:63], s{sNonce}, v58")
        A("s_or_b64 vcc, vcc, s[62:63]")
        A(f"v_cmp_ne_u32 s[62:63], s{sNonce}, v59")
        A("s_or_b64 vcc, vcc, s[62:63]")
        A("s_cmp_eq_u64 vcc, 0")

    sTB64, sCB, sT16, sPar, sTile3 = 44, 45, sTT, sWC, 32
    sKH = sWC
    sIsW = 38
    sM0A, sM0B, sWsA, sWsB, sStepA, sStepB = 33, 66, 67, 69, 74, 70
    sActS, sColb, sParA = 71, 72, 73
    sP, sG, sGp, sKd, sRrg, sHH = 64, 46, 47, 36, 37, 34
    sOffB = [52, 53, 54, 55]
    sVm = 0

    def p2_scal1():
        A("s_and_b32 s61, s2, 7")
        A("s_lshr_b32 s62, s2, 3")
        A(f"s_lshr_b32 s{sTB64}, s61, 1")
        A(f"s_lshl_b32 s{sTB64}, s{sTB64}, 3")
        A("s_and_b32 s63, s62, 7")
        A(f"s_add_u32 s{sTB64}, s{sTB64}, s63")
        A(f"s_and_b32 s{sCB}, s61, 1")
        A(f"s_lshl_b32 s{sCB}, s{sCB}, 2")
        A("s_lshr_b32 s63, s62, 3")
        A(f"s_add_u32 s{sCB}, s{sCB}, s63")
        A(f"s_lshl_b32 s{sTile3}, s{sTB64}, 1")
        A(f"s_lshr_b32 s61, s{sT16}, 1")
        A(f"s_add_u32 s{sTile3}, s{sTile3}, s61")
        srd(A, SWD, 0, 1536 * 1280)
        srd(A, SWO, 38, 640 * 1280)
        srd(A, SOUT, P_OUT, 2048 * 1280)
        for k in range(4):
            A(f"s_mov_b32 s{SPA+k}, s{SWD+k}")
        A("s_cmp_lt_u32 s3, 2")
        for k in range(4):
            A(f"s_cselect_b32 s{SPB+k}, s{SWD+k}, s{SK+k}")
        A(f"s_cselect_b32 s{sIsW}, 1, 0")

    def p2_scal2():
        A(f"s_mul_i32 s{sColb}, s{sCB}, 160")
        A("s_cmp_ge_u32 s3, 5")
        A(f"s_cselect_b32 s{sParA}, 1, 0")
        A(f"s_mul_i32 s61, s{sParA}, 5")
        A("s_sub_u32 s61, s3, s61")
        A(f"s_mul_i32 s{sM0A}, s{sParA}, 5120")
        A("s_lshl_b32 s61, s61, 10")
        A(f"s_add_u32 s{sM0A}, s{sM0A}, s61")
        A(f"s_mul_i32 s{sWsA}, s{sParA}, {32*1280}")
        A(f"s_add_u32 s{sWsA}, s{sWsA}, s{sColb}")
        A(f"s_mov_b32 s{sStepA}, {64*1280}")
        A(f"s_mul_i32 s{sActS}, s{sTile3}, {96*1024}")
        A(f"s_lshl_b32 s61, s{sPar}, 11")
        A(f"s_add_u32 s{sActS}, s{sActS}, s61")
        A(f"s_add_u32 s{sActS}, s{sActS}, {H_OFF}")
        A(f"s_mov_b32 s{sVm}, 0xfffff")
        A(f"s_mov_b32 s{sVm+1}, 0xfffff")
        A(f"s_mov_b32 s{sG}, 0")
        A(f"s_mov_b32 s{sGp}, 0")
        A(f"s_mov_b32 s{sRrg}, 0")
        A(f"s_mov_b32 s{sHH}, 0")
        A(f"s_mov_b32 s{sKd}, {hx(-4*KVSLOT)}")

    def p2_scal3():
        A("s_add_u32 s61, s3, 3")
        A("s_min_u32 s61, s61, 4")
        A("s_lshl_b32 s61, s61, 10")
        A("s_add_u32 s61, s61, 5120")
        A("s_cmp_lt_u32 s3, 2")
        A(f"s_cselect_b32 s{sM0B}, s61, s{sM0kv}")
        A(f"s_add_u32 s61, s{sColb}, {32*1280}")
        A("s_cmp_lt_u32 s3, 2")
        A(f"s_cselect_b32 s{sWsB}, s61, s{sKVs}")
        A(f"s_mov_b32 s61, {64*1280}")
        A("s_cmp_lt_u32 s3, 2")
        A(f"s_cselect_b32 s{sStepB}, s61, 2560")
        A(f"s_mov_b32 s{sP}, 0")
        if "outwarm" in DBG:
            A("v_and_b32 v57, 15, v1")
            A("v_mul_u32_u24 v57, 1280, v57")
            A(f"s_lshl_b32 s61, s{sTB64}, 6")
            A(f"s_lshl_b32 s62, s{sT16}, 4")
            A("s_add_u32 s61, s61, s62")
            A("s_mul_i32 s61, s61, 1280")
            A(f"s_mul_i32 s62, s{sCB}, 160")
            A("s_add_u32 s61, s61, s62")
            A(f"buffer_load_dword v57, v57, s[{SOUT}:{SOUT+3}], s61 offen")

    def gu_wait(g):
        def w():
            if g in (10, 11):
                nb = len(dma_groups(g + 2))
                lE, lc1, lc2 = [A.newlabel("L_gw") for _ in range(3)]
                A(f"s_cmp_eq_u32 s{sCls}, 0")

                def body(lb):
                    A(f"s_cmp_eq_u32 s{sCls}, 1")
                    A(f"s_cbranch_scc0 {lc2}")
                    A(f"s_waitcnt vmcnt({nb+6})")
                    A(f"s_branch {lE}")
                    A.label(lc2)
                    A(f"s_waitcnt vmcnt({nb+4})")
                    A(f"s_branch {lE}")
                A.rare([], body, branch="s_cbranch_scc0")
                A(f"s_waitcnt vmcnt({nb+9})")
                A.label(lE)
                A("s_waitcnt lgkmcnt(0)")
            elif g <= 17:
                A(f"s_waitcnt vmcnt({len(dma_groups(g + 2))}) lgkmcnt(0)")
            elif g == 18:
                A("s_waitcnt vmcnt(0) lgkmcnt(0)")

                def body(lb):
                    poll_pre(A, "f1", f1_issue, f1_check)
                A.rare(["s_cmp_eq_u32 s3, 0"], body)
            else:
                A("s_waitcnt lgkmcnt(0)")
        return w

    def sig_f1():
        def body(lb):
            A("v_mov_b32 v3, 0")
            nonce_get()
            A(f"s_lshl_b32 s61, s{sTB}, 4")
            A(f"s_add_u32 s61, s61, s{sCG}")
            A("s_lshl_b32 s61, s61, 2")
            A(f"s_add_u32 s61, s61, {F1_OFF}")
            A(f"v_mov_b32 v2, s{sNonce}")
            A("s_mov_b64 exec, 1")
            A(f"buffer_store_dword v2, v3, {W}, s61 offen sc1")
            A("s_mov_b64 exec, -1")
        A.rare(["s_cmp_eq_u32 s3, 0"], body)

    def f1_pre():
        A.rare(["s_cmp_eq_u32 s3, 0"], lambda lb: f1_issue())

    for r in gu_reads(XA, WA, 10, 0):
        A(r)
    def F(*fns):
        out = []
        for fn in fns:
            out += atomic_groups(capture(A, fn))
        return out
    fills = {
        (13, 0): F(gu_setup),
        (16, 0): F(lambda: p2_inits(0)),
        (16, 1): F(lambda: p2_inits(1)),
        (17, 1): F(p2_scal1),
        (18, 0): F(p2_scal2),
        (18, 1): F(p2_prologue),
        (19, 0): F(p2_scal3),
    }
    for g in range(10, 20):
        post = {12: sig_f1, 17: f1_pre}.get(g)
        stage(g, gu_reads, gu_mfmas, gu_wait(g), post=post, fill0=fills.get((g, 0), ()), fill1=fills.get((g, 1), ()))
    stamp(A, 4)
    A("s_waitcnt lgkmcnt(0)")
    A("s_nop 7")
    A("s_nop 7")
    ca = -2.0 * LOG2E * (2.0 / 3.141592653589793) ** 0.5
    cb = ca * 0.044715
    sTile, sD = 100, 101
    A(f"s_mov_b32 s61, {hx(f2u(ca))}")
    A(f"s_mov_b32 s62, {hx(f2u(cb))}")
    A(f"s_lshl_b32 s{sTile}, s{sTB}, 2")
    A(f"s_add_u32 s{sTile}, s{sTile}, s{sTT}")
    A(f"s_mul_i32 s{sD}, s{sTile}, 96")
    A(f"s_mul_i32 s63, s{sCG}, 6")
    A(f"s_add_u32 s{sD}, s{sD}, s63")
    A(f"s_mul_i32 s63, s{sWC}, 3")
    A(f"s_add_u32 s{sD}, s{sD}, s63")
    A(f"s_lshl_b32 s{sD}, s{sD}, 10")
    A(f"s_add_u32 s{sD}, s{sD}, {H_OFF}")
    A("v_mov_b32 v61, s61")
    for t in range(3):
        g0 = ACC + 16 * t
        u0 = g0 + 8
        T = 32
        for j in range(8):
            A(f"v_mul_f32 v{T+j}, v{g0+j}, v{g0+j}")
        for j in range(8):
            A(f"v_fma_f32 v{T+j}, v{T+j}, s62, v61")
        for j in range(8):
            A(f"v_mul_f32 v{T+j}, v{T+j}, v{g0+j}")
        for j in range(8):
            A(f"v_exp_f32 v{T+j}, v{T+j}")
        for j in range(8):
            A(f"v_mul_f32 v{u0+j}, v{g0+j}, v{u0+j}")
        for j in range(8):
            A(f"v_add_f32 v{T+j}, 1.0, v{T+j}")
        for j in range(8):
            A(f"v_rcp_f32 v{T+j}, v{T+j}")
        A("s_nop 0")
        for j in range(8):
            A(f"v_mul_f32 v{u0+j}, v{u0+j}, v{T+j}")
        dst = 40 + 4 * t if t < 2 else 56
        for p in range(4):
            A(f"v_cvt_pk_bf16_f32 v{dst+p}, v{u0+2*p}, v{u0+2*p+1}")
        A(f"buffer_store_dwordx4 {v(dst,4)}, v{vL16p}, {W}, s{sD} offen offset:{1024*t}{SC1}")
    stamp(A, 5)

    A("v_mov_b32 v3, 0")
    nonce_get()
    for r in range(20):
        A(f"v_mov_b32 v{DACC+r}, 0")
    A(f"v_mov_b32 v{E+14}, 0")
    A(f"v_mov_b32 v{E+15}, 0")
    A("s_waitcnt vmcnt(3)")
    A("v_cmp_gt_u32 vcc, 32, v1")
    A("s_nop 1")
    for a in range(2):
        A(f"v_cndmask_b32 v{Q1[a]}, 0, v{Q1[a]}, vcc")
        A(f"v_cndmask_b32 v{Q1[a]+1}, 0, v{Q1[a]+1}, vcc")
        A(f"v_mov_b32 v{Q1[a]+2}, 0")
        A(f"v_mov_b32 v{Q1[a]+3}, 0")
    A("s_barrier")
    stamp(A, 6)

    def rdK0(o): return f"ds_read_b128 {v(K0,4)}, v{vK0} offset:{o}"
    def rdK1(o): return f"ds_read_b64 {v(K1,2)}, v{vK1} offset:{o}"
    def rdV(o):
        if "p2noexec" in DBG:
            return [f"ds_read_b128 {v(V0,4)}, v{vV} offset:{o}", f"ds_read_b128 {v(V1,4)}, v{vV} offset:{o+640}"]
        return [f"s_mov_b64 exec, s[{sVm}:{sVm+1}]",
                f"ds_read_b128 {v(V0,4)}, v{vV} offset:{o}",
                f"ds_read_b128 {v(V1,4)}, v{vV} offset:{o+640}",
                "s_mov_b64 exec, -1"]

    A(rdK0(0)); A(rdK1(0))
    A("s_waitcnt lgkmcnt(0)")
    A(mfma32(S[0], K0, Q0[0], "0"))
    A(mfma32(S[0], K1, Q1[0]))

    def valu_groups(cur):
        vl = []
        for i in range(8):
            vl.append(f"v_exp_f32 v{E+2*i}, v{cur+2*i}")
            vl.append(f"v_exp_f32 v{E+2*i+1}, v{cur+2*i+1}")
            j = (i - 1) % 8
            vl.append(f"v_cvt_pk_bf16_f32 v{P+j}, v{E+2*j}, v{E+2*j+1}")
        return [vl[0:6], vl[6:12], vl[12:18], vl[18:24]]

    sM0Ag, sM0Agp = 68, 50
    sM0Bg, sM0Bgp = 52, 53
    sKB0, sKB1 = 52, 53
    sDG = 54

    def period(u, beta, cls):
        A0 = A
        if "p2nobeta" in DBG:
            beta = False if True else beta
        def A_(x):
            if "p2novm" in DBG and (x.startswith("buffer_load") or x.startswith("s_add_u32 m0") or x.startswith("s_mov_b32 m0") or x.startswith(f"s_add_u32 s{sWsA},") or x.startswith(f"s_add_u32 s{sWsB},") or x.startswith(f"s_add_u32 s{sActS},")):
                return
            A0(x)
        return period_(u, beta, cls, A_)

    def period_(u, beta, cls, A):
        kofs = (u + 1) * KVSLOT if u < 3 else 0
        g = valu_groups(S[0])
        tr = []
        if beta:
            for c in range(5):
                tr.append(f"ds_read_b64_tr_b16 {v(WF+4*c,2)}, v{vWr} offset:{u*WPER+32*c}")
                tr.append(f"ds_read_b64_tr_b16 {v(WF+4*c+2,2)}, v{vWr} offset:{u*WPER+32*c+8*160}")
        if "noprio" not in DBG: A("s_setprio 1")
        if "prioC" in DBG: A("s_setprio 3")
        A(mfma32(S[1], K0, Q0[1], "0"))
        A(rdK0(kofs))
        if beta:
            A(f"buffer_load_dwordx4 {v(ACT+4*((u+3)%4),4)}, v{vAct}, {W}, s{sActS} offen{SC1}")
        for x in g[0][:3]: A(x)
        if beta:
            A(f"s_add_u32 s{sActS}, s{sActS}, 4096")
        for x in tr[:3]: A(x)
        for x in g[0][3:]: A(x)
        A(mfma32(O[1], V1, P + 4))
        for x in rdV(u * KVSLOT): A(x)
        for x in g[1][:3]: A(x)
        for x in tr[3:6]: A(x)
        for x in g[1][3:]: A(x)
        if "prioC" in DBG: A("s_setprio 2")
        A(mfma32(S[1], K1, Q1[1]))
        A(rdK1(kofs))
        for x in g[2][:3]: A(x)
        for x in tr[6:10]: A(x)
        for x in g[2][3:]: A(x)
        A(f"s_waitcnt lgkmcnt({2 + (7 if beta else 0)})")
        A(mfma32(O[0], V0, P))
        def wm0(bg, bgp):
            if not beta:
                return f"s_add_u32 m0, s{bg}, {u*WPER}"
            if u < 2:
                return f"s_add_u32 m0, s{bgp}, {(u+2)*WPER}"
            return f"s_add_u32 m0, s{bg}, {(u-2)*WPER}"
        A(wm0(sM0Ag, sM0Agp))
        for x in g[3][:3]: A(x)
        A(f"buffer_load_dwordx4 v{vWA}, s[{SPA}:{SPA+3}], s{sWsA} offen lds")
        for x in g[3][3:]: A(x)
        A(f"s_add_u32 s{sWsA}, s{sWsA}, s{sStepA}")
        g = valu_groups(S[1])
        m16 = [mfma16(DACC + 4 * c, WF + 4 * c, ACT + 4 * u) for c in range(5)] if beta else []
        A("s_waitcnt lgkmcnt(0)")
        if "noprio" not in DBG: A("s_setprio 0")
        if "prioC" in DBG: A("s_setprio 1")
        A(mfma32(S[0], K0, Q0[0], "0"))
        for x in g[0][:3]: A(x)
        if beta: A(m16[0])
        for x in g[0][3:]: A(x)
        A(mfma32(O[0], V1, P + 4))
        for x in g[1][:3]: A(x)
        if beta: A(m16[1])
        for x in g[1][3:]: A(x)
        if "prioC" in DBG: A("s_setprio 0")
        A(mfma32(S[0], K1, Q1[0]))
        for x in g[2][:3]: A(x)
        if beta: A(m16[2])
        for x in g[2][3:]: A(x)
        A(mfma32(O[1], V0, P))
        if cls == "W":
            A(wm0(sM0Bg, sM0Bgp))
        elif u < 2:
            A(f"s_add_u32 m0, s{sKB0}, {(u+2)*KVSLOT}")
        else:
            A(f"s_add_u32 m0, s{sKB1}, {(u-2)*KVSLOT}")
        for x in g[3][:2]: A(x)
        if beta: A(m16[3])
        for x in g[3][2:3]: A(x)
        A(f"buffer_load_dwordx4 v{vPB}, s[{SPB}:{SPB+3}], s{sWsB} offen{SC1} lds")
        for x in g[3][3:]: A(x)
        A(f"s_add_u32 s{sWsB}, s{sWsB}, s{sStepB}")
        if beta: A(m16[4])
        if u == 2:
            A(f"v_add_u32 v{vK0}, s{sKd}, v{vK0}")
            A(f"v_add_u32 v{vK1}, s{sKd}, v{vK1}")

    def cond(val, body, wave0=False):
        def b(lb):
            if wave0:
                A("s_cmp_eq_u32 s3, 0")
                A(f"s_cbranch_scc0 {lb}")
            body()
        A.rare([f"s_cmp_eq_u32 s{sP}, {val}"], b)

    def f2_issue():
        A(f"s_lshr_b32 s62, s{sTB64}, 1")
        A("s_lshl_b32 s62, s62, 6")
        A(f"s_add_u32 s62, s62, {F2_OFF}")
        A("v_and_b32 v56, 15, v1")
        A("v_lshlrev_b32 v56, 2, v56")
        A(f"buffer_load_dword v57, v56, {W}, s62 offen sc1")

    def f2_check():
        A(f"v_cmp_ne_u32 vcc, s{sNonce}, v57")
        A("s_nop 0")
        A("s_cmp_eq_u64 vcc, 0")

    def poll_f2():
        poll_pre(A, "f2", f2_issue, f2_check)

    def first_acts():
        for i in range(3):
            A(f"buffer_load_dwordx4 {v(ACT+4*i,4)}, v{vAct}, {W}, s{sActS} offen{SC1}")
            A(f"s_add_u32 s{sActS}, s{sActS}, 4096")

    def signal_f2():
        A(f"s_lshl_b32 s61, s{sTB}, 4")
        A(f"s_add_u32 s61, s61, s{sCG}")
        A("s_lshl_b32 s61, s61, 2")
        A(f"s_add_u32 s61, s61, {F2_OFF}")
        A(f"v_mov_b32 v2, s{sNonce}")
        A("v_mov_b32 v3, 0")
        A("s_mov_b64 exec, 1")
        A(f"buffer_store_dword v2, v3, {W}, s61 offen sc1")
        A("s_mov_b64 exec, -1")

    def switch_kind(cls):
        A(f"v_mov_b32 v{vWA}, v{vWAm}")
        for k in range(4):
            A(f"s_mov_b32 s{SPA+k}, s{SWO+k}")
        A(f"s_mul_i32 s{sWsA}, s{sParA}, {40*1280}")
        A(f"s_add_u32 s{sWsA}, s{sWsA}, s{sColb}")
        A(f"s_mov_b32 s{sStepA}, {80*1280}")
        if cls == "W":
            A(f"v_mov_b32 v{vPB}, v{vWBm}")
            for k in range(4):
                A(f"s_mov_b32 s{SPB+k}, s{SWO+k}")
            A(f"s_add_u32 s{sWsB}, s{sColb}, {40*1280}")
            A(f"s_mov_b32 s{sStepB}, {80*1280}")

    def iteration(lbl, beta, cls):
        A.label(lbl)
        for u in range(4):
            if beta and u == 2:
                cond(24, lambda: switch_kind(cls))
            period(u, beta, cls)
            bar = (u % 2 == 1)
            if "p2novm" not in DBG and (beta or bar):
                A(f"s_waitcnt vmcnt({7 if beta else 6})")
            if not beta and u == 1 and cls == "W":
                cond(PB - 4, poll_f2, wave0=True)
            if bar and "p2nobar" not in DBG:
                A("s_barrier")
            if not beta:
                if u == 1:
                    cond(PB - 4, first_acts)
                    if cls == "W":
                        cond(PB - 8, f2_issue, wave0=True)
                if u == 3 and cls == "W":
                    cond(0, signal_f2, wave0=True)
        A(f"s_add_u32 s{sP}, s{sP}, 4")
        A(f"s_mov_b32 s{sGp}, s{sG}")
        A(f"s_add_u32 s{sG}, s{sG}, {4*WPER}")
        A(f"s_cmp_eq_u32 s{sG}, {12*WPER}")
        A(f"s_cselect_b32 s{sG}, 0, s{sG}")
        A(f"s_add_u32 s{sM0Ag}, s{sM0A}, s{sG}")
        A(f"s_add_u32 s{sM0Agp}, s{sM0A}, s{sGp}")
        if cls == "W":
            A(f"s_add_u32 s{sM0Bg}, s{sM0B}, s{sG}")
            A(f"s_add_u32 s{sM0Bgp}, s{sM0B}, s{sGp}")
        else:
            A(f"s_sub_u32 s{sKB0}, s{sKB0}, s{sKd}")
            A(f"s_add_u32 s{sKB1}, s{sKB1}, s{sKd}")
        A(f"v_add_u32 v{vV}, s{sKd}, v{vV}")
        A(f"s_sub_u32 s{sKd}, 0, s{sKd}")
        if beta:
            A(f"s_sub_u32 s{sDG}, s{sG}, s{sGp}")
            A(f"v_add_u32 v{vWr}, s{sDG}, v{vWr}")

    def p2_loops(cls):
        A(f"s_mov_b32 s{sM0Ag}, s{sM0A}")
        A(f"s_mov_b32 s{sM0Agp}, s{sM0A}")
        if cls == "W":
            A(f"s_mov_b32 s{sM0Bg}, s{sM0B}")
            A(f"s_mov_b32 s{sM0Bgp}, s{sM0B}")
        else:
            A(f"s_mov_b32 s{sKB0}, s{sM0B}")
            A(f"s_add_u32 s{sKB1}, s{sM0B}, {4*KVSLOT}")
        iteration(f"L_alpha{cls}", False, cls)
        A(f"s_cmp_lt_u32 s{sP}, {PB}")
        A(f"s_cbranch_scc1 L_alpha{cls}")
        A(f"s_lshl_b32 s61, s{sStepA}, 1")
        A(f"s_sub_u32 s{sWsA}, s{sWsA}, s61")
        if cls == "W":
            A(f"s_lshl_b32 s61, s{sStepB}, 1")
            A(f"s_sub_u32 s{sWsB}, s{sWsB}, s61")
        iteration(f"L_beta{cls}", True, cls)
        A(f"s_cmp_lt_u32 s{sP}, 32")
        A(f"s_cbranch_scc1 L_beta{cls}")

    A("s_nop 7\ns_nop 7")
    A("s_cmp_lt_u32 s3, 2")
    A("s_cbranch_scc1 L_p2W")
    p2_loops("K")
    A("s_branch L_p2end")
    A.label("L_p2W")
    p2_loops("W")
    A.label("L_p2end")
    A("s_setprio 0")
    stamp(A, 7)
    A(f"v_cvt_pk_bf16_f32 v{P+7}, v{E+14}, v{E+15}")
    A(f"buffer_load_dwordx4 {v(ACT+12,4)}, v{vAct}, {W}, s{sActS} offen{SC1}")
    A(mfma32(O[1], V1, P + 4))
    A("s_nop 7\ns_nop 7")
    A("s_mul_i32 s61, s3, 3072")
    A(f"s_add_u32 s61, s61, {XCH}")
    A(f"v_add_u32 v2, s61, v{vL16p}")
    A(f"s_cmp_eq_u32 s{sKH}, 0")
    A("s_cbranch_scc1 L_x0")
    for i in range(3):
        A(f"ds_write_b128 v2, {v(O[0]+4*i,4)} offset:{1024*i}")
    A("s_waitcnt lgkmcnt(0)")
    for r in range(12):
        A(f"v_mov_b32 v{O[0]+r}, v{O[1]+r}")
    A("s_branch L_x1")
    A.label("L_x0")
    for i in range(3):
        A(f"ds_write_b128 v2, {v(O[1]+4*i,4)} offset:{1024*i}")
    A("s_waitcnt lgkmcnt(0)")
    A.label("L_x1")
    A("s_barrier")
    A("s_xor_b32 s61, s3, 4")
    A("s_mul_i32 s61, s61, 3072")
    A(f"s_add_u32 s61, s61, {XCH}")
    A(f"v_add_u32 v2, s61, v{vL16p}")
    for i in range(3):
        A(f"ds_read_b128 {v(64+4*i,4)}, v2 offset:{1024*i}")
    A("s_waitcnt lgkmcnt(0)")
    OO = O[0]
    A("s_mov_b64 s[100:101], -1")
    for r in range(12):
        A(f"v_add_f32 v{OO+r}, v{OO+r}, v{64+r}")
    A.label("L_norm")
    A(f"v_mov_b32 v80, v{OO+8}")
    A(f"v_mov_b32 v81, v{OO+8}")
    A("v_mov_b32 v82, 0")
    A("s_nop 1")
    A("v_permlane32_swap_b32 v80, v81")
    for r in range(12):
        A(f"v_fma_f32 v82, v{OO+r}, 0, v82")
    A(f"s_mov_b32 s61, {hx(f2u(2.0**-80))}")
    A(f"s_mov_b32 s62, {hx(f2u(2.0**100))}")
    A("v_add_f32 v82, v82, v81")
    A("v_cmp_nle_f32 vcc, s61, v82")
    A("v_cmp_nge_f32 s[62:63], s62, v82") if False else None
    A(f"v_mov_b32 v83, {hx(f2u(2.0**100))}")
    A("v_cmp_nle_f32 s[62:63], v82, v83")
    A("s_or_b64 vcc, vcc, s[62:63]")
    A("s_and_b64 vcc, vcc, s[100:101]")
    A("s_cmp_lg_u64 vcc, 0")
    A("s_cbranch_scc1 L_fallback")

    def fallback():
        A.label("L_fallback")
        A("s_mov_b64 s[100:101], 0")
        QA, QB = 56, 60
        lk1, lk2 = A.newlabel("L_fq"), A.newlabel("L_fq")
        A(f"s_cmp_eq_u32 s{sKH}, 0")
        A(f"s_cbranch_scc0 {lk1}")
        for r in range(4):
            A(f"v_mov_b32 v{QA+r}, v{Q0[0]+r}")
            A(f"v_mov_b32 v{QB+r}, v{Q1[0]+r}")
        A(f"s_branch {lk2}")
        A.label(lk1)
        for r in range(4):
            A(f"v_mov_b32 v{QA+r}, v{Q0[1]+r}")
            A(f"v_mov_b32 v{QB+r}, v{Q1[1]+r}")
        A.label(lk2)
        SKs = f"s[{SK}:{SK+3}]"
        vVa, vM = 96, 97
        A("v_lshrrev_b32 v98, 5, v1")
        A("v_mul_u32_u24 v98, 320, v98")
        A("v_and_b32 v99, 31, v1")
        A(f"v_lshl_add_u32 v{vVa}, v99, 4, v98")
        A(f"v_mov_b32 v{vM}, 0xff800000")
        A(f"s_mul_i32 s61, s{sHead}, 163840")
        A("s_mov_b32 s62, 0")
        A.label("L_fb1")
        A(f"buffer_load_dwordx4 {v(K0,4)}, v{vL16p}, {SKs}, s61 offen sc1")
        A(f"buffer_load_dwordx2 {v(K1,2)}, v{vT8p}, {SKs}, s61 offen offset:1024 sc1")
        A("s_waitcnt vmcnt(0)")
        A(mfma32(64, K0, QA, "0"))
        A(mfma32(64, K1, QB))
        A("s_nop 7\ns_nop 7")
        for r in range(0, 16, 2):
            A(f"v_max3_f32 v{vM}, v{vM}, v{64+r}, v{65+r}")
        A("s_add_u32 s61, s61, 2560")
        A("s_add_u32 s62, s62, 1")
        A("s_cmp_lt_u32 s62, 64")
        A("s_cbranch_scc1 L_fb1")
        A(f"v_mov_b32 v98, v{vM}")
        A(f"v_mov_b32 v99, v{vM}")
        A("s_nop 1")
        A("v_permlane32_swap_b32 v98, v99")
        A("s_nop 1")
        A("v_max3_f32 v98, v98, v99, v97")
        A("v_sub_f32 v98, 0, v98")
        A("v_and_b32 v99, 0xffff0000, v98")
        A("v_sub_f32 v98, v98, v99")
        A("v_and_b32 v100, 0xffff0000, v98")
        A("v_sub_f32 v98, v98, v100")
        A("v_lshrrev_b32 v99, 16, v99")
        A("v_or_b32 v99, v99, v100")
        A("v_cvt_pk_bf16_f32 v100, v98, 0")
        A("v_cmp_gt_u32 vcc, 32, v1")
        A("s_nop 1")
        A(f"v_cndmask_b32 v{QB+2}, 0, v99, vcc")
        A(f"v_cndmask_b32 v{QB+3}, 0, v100, vcc")
        for r in range(16):
            A(f"v_mov_b32 v{O[1]+r}, 0")
        A(f"s_mul_i32 s61, s{sHead}, 163840")
        A("s_mov_b32 s62, 0")
        A.label("L_fb2")
        A(f"buffer_load_dwordx4 {v(K0,4)}, v{vL16p}, {SKs}, s61 offen sc1")
        A(f"buffer_load_dwordx2 {v(K1,2)}, v{vT8p}, {SKs}, s61 offen offset:1024 sc1")
        A(f"s_mov_b64 exec, s[{sVm}:{sVm+1}]")
        A(f"buffer_load_dwordx4 {v(V0,4)}, v{vVa}, {SKs}, s61 offen offset:1280 sc1")
        A(f"buffer_load_dwordx4 {v(V1,4)}, v{vVa}, {SKs}, s61 offen offset:1920 sc1")
        A("s_mov_b64 exec, -1")
        A("s_waitcnt vmcnt(0)")
        A(mfma32(64, K0, QA, "0"))
        A(mfma32(64, K1, QB))
        A("s_nop 7\ns_nop 7")
        for r in range(16):
            A(f"v_exp_f32 v{100+r}, v{64+r}") if 100 + r < 112 else A(f"v_exp_f32 v{80+r-12}, v{64+r}")
        A("s_nop 0")
        ex = [100 + r if r < 12 else 80 + r - 12 for r in range(16)]
        for p_ in range(8):
            A(f"v_cvt_pk_bf16_f32 v{P+p_}, v{ex[2*p_]}, v{ex[2*p_+1]}")
        A("s_nop 1")
        A(mfma32(O[1], V0, P))
        A(mfma32(O[1], V1, P + 4))
        A("s_add_u32 s61, s61, 2560")
        A("s_add_u32 s62, s62, 1")
        A("s_cmp_lt_u32 s62, 64")
        A("s_cbranch_scc1 L_fb2")
        A("s_nop 7\ns_nop 7")
        for r in range(12):
            A(f"v_mov_b32 v{OO+r}, v{O[1]+r}")
        A("s_branch L_norm")
    A.defer(fallback)
    A("v_rcp_f32 v81, v81")
    A("s_nop 0")
    A(f"v_mul_f32 v81, v81, v{vGt}")
    for r in range(12):
        A(f"v_mul_f32 v{OO+r}, v81, v{OO+r}")
    for p in range(6):
        A(f"v_cvt_pk_bf16_f32 v{84+p}, v{OO+2*p}, v{OO+2*p+1}")
    A("v_mov_b32 v90, 0\nv_mov_b32 v91, 0")
    sTq = 61
    A(f"s_add_u32 s{sTq}, s{sQT}, s{sKH}")
    A(f"s_mul_i32 s62, s{sTq}, 48")
    A(f"s_add_u32 s63, s62, s{sHead}")
    A("s_lshl_b32 s63, s63, 10")
    A(f"s_add_u32 s63, s63, {O_OFF}")
    A(f"buffer_store_dwordx4 {v(84,4)}, v{vL16p}, {W}, s63 offen{SC1}")
    A(f"s_lshr_b32 s63, s{sHead}, 1")
    A("s_add_u32 s63, s63, 32")
    A("s_add_u32 s63, s63, s62")
    A("s_lshl_b32 s63, s63, 10")
    A(f"s_and_b32 s62, s{sHead}, 1")
    A("s_lshl_b32 s62, s62, 9")
    A("s_add_u32 s63, s63, s62")
    A(f"s_add_u32 s63, s63, {O_OFF}")
    A("s_mov_b32 exec_hi, 0")
    A(f"buffer_store_dwordx4 {v(88,4)}, v{vL16p}, {W}, s63 offen{SC1}")
    A("s_mov_b32 exec_hi, -1")
    sF3 = 35
    A(f"s_lshl_b32 s{sF3}, s{sTq}, 5")
    A(f"s_add_u32 s{sF3}, s{sF3}, s{sHead}")
    A(f"s_lshl_b32 s{sF3}, s{sF3}, 2")
    A(f"s_add_u32 s{sF3}, s{sF3}, {F3_OFF}")
    def consume(qs, actreg):
        n = len(qs)

        def rd(i):
            base = WF2[i % 2]
            o = (qs[i] % 12) * WPER
            out = []
            for c in range(5):
                for hf in range(2):
                    oo = o + 32 * c + 1280 * hf
                    a, oo = (vW0, oo) if oo < 65536 else (vW1, oo - 61440)
                    out.append(f"ds_read_b64_tr_b16 {v(base+4*c+2*hf,2)}, v{a} offset:{oo}")
            return out
        for x in rd(0): A(x)
        for i in range(n):
            if i + 1 < n:
                for x in rd(i + 1): A(x)
                A("s_waitcnt lgkmcnt(10)")
            else:
                A("s_waitcnt lgkmcnt(0)")
            vm = actreg(i)
            if vm[1] is not None:
                A(f"s_waitcnt vmcnt({vm[1]})")
            for c in range(5):
                A(mfma16(DACC + 4 * c, WF2[i % 2] + 4 * c, vm[0]))

    for q in (30, 31):
        A(f"s_add_u32 m0, s{sM0A}, {(q%12)*WPER}")
        A("s_nop 0")
        A(f"buffer_load_dwordx4 v{vWA}, s[{SPA}:{SPA+3}], s{sWsA} offen lds")
        A(f"s_add_u32 s{sWsA}, s{sWsA}, s{sStepA}")
    l, l2 = A.newlabel("L_w31"), A.newlabel("L_w32")
    A(f"v_mov_b32 v2, s{sNonce}")
    A("v_mov_b32 v3, 0")
    A(f"s_cmp_eq_u32 s{sIsW}, 0")
    A(f"s_cbranch_scc1 {l}")
    for q in (30, 31):
        A(f"s_add_u32 m0, s{sM0B}, {(q%12)*WPER}")
        A("s_nop 0")
        A(f"buffer_load_dwordx4 v{vPB}, s[{SPB}:{SPB+3}], s{sWsB} offen lds")
        A(f"s_add_u32 s{sWsB}, s{sWsB}, s{sStepB}")
    A("s_waitcnt vmcnt(6)")
    A(f"s_branch {l2}")
    A.label(l)
    A("s_waitcnt vmcnt(4)")
    A.label(l2)
    consume(list(range(NB, 24)), lambda i: (ACT + 4 * i, None))
    l, l2 = A.newlabel("L_w33"), A.newlabel("L_w34")
    A(f"s_cmp_eq_u32 s{sIsW}, 0")
    A(f"s_cbranch_scc1 {l}")
    A("s_waitcnt vmcnt(4)")
    A(f"s_branch {l2}")
    A.label(l)
    A("s_waitcnt vmcnt(2)")
    A.label(l2)
    A("s_mov_b64 exec, 1")
    A(f"buffer_store_dword v2, v3, {W}, s{sF3} offen sc1")
    A("s_mov_b64 exec, -1")
    stamp(A, 8)

    A("s_waitcnt vmcnt(1)")
    A(f"v_sub_f32 v56, 1.0, v{vG2}")
    A("s_nop 7")
    for r in range(20):
        A(f"v_mul_f32 v{DACC+r}, v56, v{DACC+r}")
    A("s_barrier")
    for i in range(4):
        q = 32 + i
        A(f"s_mul_i32 s61, s{sParA}, {80*1280}")
        A(f"s_add_u32 s61, s61, {i*160*1280}")
        A(f"s_add_u32 s61, s61, s{sColb}")
        A(f"s_add_u32 m0, s{sM0A}, {(q%12)*WPER}")
        A("s_nop 0")
        A(f"buffer_load_dwordx4 v{vWAr}, s[{SWO}:{SWO+3}], s61 offen lds")
    l = A.newlabel("L_rb")
    A(f"s_cmp_eq_u32 s{sIsW}, 0")
    A(f"s_cbranch_scc1 {l}")
    for i in range(4):
        q = 32 + i
        A(f"s_add_u32 s61, s{sColb}, {(80 + i*160)*1280}")
        A(f"s_add_u32 m0, s{sM0B}, {(q%12)*WPER}")
        A("s_nop 0")
        A(f"buffer_load_dwordx4 v{vWBr}, s[{SWO}:{SWO+3}], s61 offen lds")
    A.label(l)
    l = A.newlabel("L_f3")
    A("s_cmp_eq_u32 s3, 0")
    A(f"s_cbranch_scc0 {l}")
    A("v_lshlrev_b32 v2, 2, v1")
    A(f"s_lshl_b32 s63, s{sTB64}, 8")
    A(f"s_add_u32 s63, s63, {F3_OFF}")
    A(f"s_mov_b32 s{sSpin}, 0")
    A("s_waitcnt vmcnt(0)")
    lp, ld = A.newlabel("L_f3p"), A.newlabel("L_f3d")
    A(f"buffer_load_dword v3, v2, {W}, s63 offen sc1")
    A("s_sleep 3")
    A(f"buffer_load_dword v56, v2, {W}, s63 offen sc1")
    A("s_sleep 3")
    A.label(lp)
    A(f"buffer_load_dword v57, v2, {W}, s63 offen sc1")
    A("s_waitcnt vmcnt(2)")
    A(f"v_cmp_ne_u32 vcc, s{sNonce}, v3")
    A("s_nop 0")
    A("s_cmp_eq_u64 vcc, 0")
    A(f"s_cbranch_scc1 {ld}")
    A(f"buffer_load_dword v3, v2, {W}, s63 offen sc1")
    A("s_waitcnt vmcnt(2)")
    A(f"v_cmp_ne_u32 vcc, s{sNonce}, v56")
    A("s_nop 0")
    A("s_cmp_eq_u64 vcc, 0")
    A(f"s_cbranch_scc1 {ld}")
    A(f"buffer_load_dword v56, v2, {W}, s63 offen sc1")
    A("s_waitcnt vmcnt(2)")
    A(f"v_cmp_ne_u32 vcc, s{sNonce}, v57")
    A("s_nop 0")
    A("s_cmp_eq_u64 vcc, 0")
    A(f"s_cbranch_scc1 {ld}")
    A(f"s_add_u32 s{sSpin}, s{sSpin}, 1")
    A(f"s_cmp_lt_u32 s{sSpin}, {SPIN_MAX}")
    A(f"s_cbranch_scc1 {lp}")
    A.label(ld)
    A.label(l)
    A("s_barrier")
    stamp(A, 9)
    A(f"s_mul_i32 s61, s{sTile3}, {48*1024}")
    A(f"s_lshl_b32 s62, s{sPar}, 11")
    A("s_add_u32 s61, s61, s62")
    A(f"s_add_u32 s61, s61, {O_OFF}")
    for i in range(12):
        A(f"buffer_load_dwordx4 {v(ACTX+4*i,4)}, v{vActReal}, {W}, s61 offen{SC1}")
        A("s_add_u32 s61, s61, 4096")
    consume(list(range(24, 32)), lambda i: (ACTX + 4 * i, 11 - i))
    A("s_waitcnt vmcnt(0)")
    A("s_barrier")
    consume(list(range(32, 36)), lambda i: (ACTX + 4 * (8 + i), None))
    stamp(A, 10)
    A("s_nop 7")
    A(f"s_mul_i32 s61, s{sT16}, 5120")
    A(f"s_add_u32 s61, s61, {XCH}")
    A(f"v_add_u32 v56, s61, v{vL16p}")
    A(f"s_cmp_eq_u32 s{sPar}, 0")
    A("s_cbranch_scc1 L_red")
    for t in range(5):
        A(f"ds_write_b128 v56, {v(DACC+4*t,4)} offset:{1024*t}")
    A("s_waitcnt lgkmcnt(0)")
    A("s_barrier")
    prof_end(A)
    A("s_endpgm")
    A.label("L_red")
    A("s_barrier")
    for t in range(5):
        A(f"ds_read_b128 {v(32+4*t,4)}, v56 offset:{1024*t}")
    A("s_waitcnt lgkmcnt(0)")
    for r in range(20):
        A(f"v_add_f32 v{DACC+r}, v{DACC+r}, v{32+r}")
    A("v_and_b32 v57, 15, v1")
    A("v_mul_u32_u24 v57, 1280, v57")
    A("v_lshrrev_b32 v2, 4, v1")
    A("v_lshl_add_u32 v57, v2, 3, v57")
    A(f"s_lshl_b32 s61, s{sTB64}, 6")
    A(f"s_lshl_b32 s62, s{sT16}, 4")
    A("s_add_u32 s61, s61, s62")
    A("s_mul_i32 s61, s61, 1280")
    A(f"s_add_u32 s61, s61, s{sColb}")
    for t in range(5):
        A(f"v_cvt_pk_bf16_f32 v{64+2*t}, v{DACC+4*t}, v{DACC+4*t+1}")
        A(f"v_cvt_pk_bf16_f32 v{64+2*t+1}, v{DACC+4*t+2}, v{DACC+4*t+3}")
        A(f"buffer_store_dwordx2 {v(64+2*t,2)}, v57, s[{SOUT}:{SOUT+3}], s61 offen offset:{32*t}{OUTF}")
    prof_end(A)
    A("s_endpgm")
    return A.text()


HEADER = """; gated mix of MHA block and GEGLU FFN -- single persistent kernel, 256 workgroups x 512 threads
"""


def build():
    out = HEADER
    out += f"; @launch grid=(256,1,1) block=(512,1,1) lds={LDS_SZ}\n"
    out += '.amdgcn_target "amdgcn-amd-amdhsa--gfx950"\n.text\n'
    out += f".globl {KNAME}\n" + gen()
    out += kernel_desc(KNAME, 256)
    return out


if __name__ == "__main__":
    if "--prof" in sys.argv:
        PROF = True
        sys.argv.remove("--prof")
    dst = sys.argv[1] if len(sys.argv) > 1 else f"cdna_kernels/{NAME}.s"
    open(dst, "w").write(build())
    print("wrote", dst)
```

```python
import sys, os, struct
from asmlib import *

NAME = "gated_mix__mha_block__glu_gated_geglu__prompt"
KNAME = NAME + "_kernel"

QF_OFF = 0
QF_SZ = 32 * 64 * 1280
KV_OFF = QF_OFF + QF_SZ
KV_SZ = 32 * 64 * 2560
H_OFF = KV_OFF + KV_SZ
H_SZ = 64 * 96 * 1024
O_OFF = H_OFF + H_SZ
O_SZ = 64 * 48 * 1024
G_OFF = O_OFF + O_SZ
G_SZ = 8192
F1_OFF = G_OFF + G_SZ
F2_OFF = F1_OFF + 1024
F3_OFF = F2_OFF + 1024
F_END = F3_OFF + 8192
PROF_OFF = F_END
PROF_SZ = 256 * 8 * 64
WS_USED = PROF_OFF + PROF_SZ
PROF = False
DBG = set(os.environ.get("DBG", "").split(","))
SC1 = " sc1"
OUTF = " sc1" if "outsc1" in DBG else (" nt" if "outnt" in DBG else (" sc0 sc1" if "outsc01" in DBG else ""))

LOG2E = 1.4426950408889634
QSCALE = LOG2E * (20 ** -0.5)
SPIN_MAX = 1 << 14


def f2u(x):
    return struct.unpack("<I", struct.pack("<f", x))[0]


def hx(x):
    return hex(x & 0xffffffff)


P_AX, P_WQKV, P_WO, P_BX, P_WG, P_WU, P_WD, P_GW = 36, 38, 40, 42, 44, 46, 48, 50
P_OUT, P_WS, P_DBG = 52, 54, 34
SX, SWQ, SWG, SWU, SW1, SWS, SDB = 4, 8, 12, 16, 20, 24, 28
SWD, SWO, SOUT, SPA, SPB = 4, 8, 12, 16, 20
SK = 40
sTB, sCG, sTT, sWC, sNonce = 56, 57, 58, 59, 60
T0, T1, T2, T3 = 61, 62, 63, 64
sSpin = 75
NSTAMP = 12
STAMP0 = 76

XRING = 0
WRING = 49152
WSLOT = 24640
UPOFF = 12288 + 32
KVB = 122880
KVSLOT = 5120
XCH = KVB + 2 * KVSLOT
LDS_SZ = 163840
WPER = 10240
PB, NB = 12, 20

vLane = 1
vXo, vWoQ, vWo0, vWo1, vWo2 = 4, 5, 6, 7, 14
vXa, vWaQ, vWaG = 8, 12, 15
XA, XB = 32, 40
ACC = 64
WA, WB = 112, 136
vN = 62
K0, K1, V0, V1 = 16, 20, 24, 28
P = 48
S = [64, 80]
E = 96
DACC = 112
WF = 132
Q0 = [160, 168]
Q1 = [164, 172]
vGt, vL16p, vT8p, vK0, vK1, vV = 176, 177, 178, 179, 180, 181
vActReal, vAct, vWr, vWA, vPB, vG2 = 182, 183, 184, 185, 186, 187
vWAm, vWBm, vWAr, vWBr, vKVo, vW0, vW1 = 188, 189, 190, 191, 192, 193, 194
vWB = 195
ACT = 200
O = [216, 232]
ACTX = 64
WF2 = [132, 16]
XCL = [16, 20, 24, 28, 48, 52, 160, 164, 168, 172] + list(range(200, 256, 4))
NXC = 0 if 'noxc' in DBG else 6


def XC(k, j):
    return XCL[4 * k + j]


CLK = "s_memtime" if "clk" in DBG else "s_memrealtime"


def stamp(A, idx, alt=False):
    if alt == "st":
        if "stst" not in DBG:
            return
    else:
        if ("gust" in DBG or "stst" in DBG) and idx in (8, 9, 10) and not alt:
            return
        if "gust" not in DBG and alt:
            return
    if PROF:
        A(f"{CLK} s[{STAMP0+2*idx}:{STAMP0+2*idx+1}]")


def prof_end(A):
    if not PROF:
        return
    A(f"{CLK} s[{STAMP0+2*(NSTAMP-1)}:{STAMP0+2*(NSTAMP-1)+1}]")
    A("s_waitcnt lgkmcnt(0)")
    A("s_lshl_b32 s61, s2, 3")
    A("s_add_u32 s61, s61, s3")
    A("s_lshl_b32 s61, s61, 6")
    A(f"s_add_u32 s61, s61, {PROF_OFF}")
    for i in range(NSTAMP):
        A(f"v_mov_b32 v{4+i}, s{STAMP0+2*i}")
    A("v_mov_b32 v0, 0")
    A("s_mov_b64 exec, 1")
    for i in range(3):
        A(f"buffer_store_dwordx4 v[{4+4*i}:{7+4*i}], v0, s[{SWS}:{SWS+3}], s61 offen offset:{16*i}")


def spin(A, name, issue, check):
    l0, l1 = A.newlabel("L_sp" + name), A.newlabel("L_spd" + name)
    A(f"s_mov_b32 s{sSpin}, 0")
    A.label(l0)
    issue()
    A("s_waitcnt vmcnt(0)")
    check()
    A(f"s_cbranch_scc1 {l1}")
    A(f"s_add_u32 s{sSpin}, s{sSpin}, 1")
    A(f"s_cmp_ge_u32 s{sSpin}, {SPIN_MAX}")
    A(f"s_cbranch_scc1 {l1}")
    A("s_sleep 2")
    A(f"s_branch {l0}")
    A.label(l1)


def poll_pre(A, name, issue, check):
    l = A.newlabel("L_pp" + name)
    check()
    A(f"s_cbranch_scc1 {l}")
    spin(A, name, issue, check)
    A.label(l)


W = f"s[{SWS}:{SWS+3}]"


def gen():
    A = Asm("k_")
    A(f".p2align 8\n.type {KNAME},@function")
    A.label(KNAME)
    stamp(A, 0)
    A("s_cmp_ge_u32 s2, 256")
    A("s_cbranch_scc0 L_go")
    A("s_endpgm")
    A.label("L_go")
    A("s_load_dwordx16 s[36:51], s[0:1], 0")
    A("s_load_dwordx2 s[52:53], s[0:1], 64")
    A("s_load_dwordx2 s[34:35], s[0:1], 72")
    A("s_load_dwordx2 s[54:55], s[0:1], 80")
    A("v_lshrrev_b32 v2, 6, v0")
    A("v_and_b32 v1, 63, v0")
    A("s_nop 0")
    A("v_readfirstlane_b32 s3, v2")
    A("s_and_b32 s61, s2, 7")
    A("s_lshr_b32 s62, s2, 3")
    A(f"s_lshr_b32 s{sTB}, s61, 1")
    A(f"s_lshl_b32 s{sTB}, s{sTB}, 2")
    A("s_and_b32 s63, s62, 3")
    A(f"s_add_u32 s{sTB}, s{sTB}, s63")
    A(f"s_and_b32 s{sCG}, s61, 1")
    A(f"s_lshl_b32 s{sCG}, s{sCG}, 3")
    A("s_lshr_b32 s63, s62, 2")
    A(f"s_add_u32 s{sCG}, s{sCG}, s63")
    A(f"s_and_b32 s{sTT}, s3, 3")
    A(f"s_lshr_b32 s{sWC}, s3, 2")
    A("v_lshrrev_b32 v16, 3, v1")
    A("s_lshl_b32 s61, s3, 3")
    A("v_add_u32 v16, s61, v16")
    A("v_lshrrev_b32 v17, 1, v16")
    A("v_and_b32 v17, 7, v17")
    A("v_and_b32 v18, 7, v1")
    A("v_xor_b32 v17, v17, v18")
    A("v_lshlrev_b32 v17, 4, v17")
    A("v_mul_u32_u24 v16, 1280, v16")
    A(f"v_add_u32 v{vXo}, v16, v17")
    A("v_lshrrev_b32 v16, 4, v1")
    A("v_lshlrev_b32 v17, 2, v16")
    A("v_and_b32 v18, 15, v1")
    A("v_xor_b32 v17, v17, v18")
    A("v_lshlrev_b32 v17, 4, v17")
    A("s_lshl_b32 s61, s3, 2")
    A("v_add_u32 v16, s61, v16")
    A("v_mul_u32_u24 v16, 3840, v16")
    A(f"v_add_u32 v{vWoQ}, v16, v17")
    sXs, sXs2, sWs, sWs2, sGs, sGx = 32, 33, 66, 67, 72, 73
    sM0x, sM0q, sM0g0, sM0g1, sM0g2 = 74, 65, 100, 101, 71
    sStage, sSlot = 69, 70
    sXslot, sWslot, sDX, sDW = 44, 45, 46, 47
    A(f"s_mul_i32 s{sXs}, s{sTB}, {128*1280}")
    A(f"s_mul_i32 s61, s{sCG}, 240")
    A(f"s_sub_u32 s62, s{sCG}, 11")
    A("s_lshl_b32 s62, s62, 8")
    A("s_add_u32 s62, s62, 2560")
    A(f"s_cmp_lt_u32 s{sCG}, 11")
    A(f"s_cselect_b32 s{sWs}, s61, s62")
    A(f"s_lshl_b32 s{sM0x}, s3, 10")
    A(f"s_add_u32 s{sM0q}, s{sM0x}, {WRING}")
    A("v_lshlrev_b32 v2, 2, v1")
    A("s_waitcnt lgkmcnt(0)")
    stamp(A, 8, "st")
    srd(A, SX, P_AX, 2048 * 1280)
    srd(A, SWQ, P_WQKV, 640 * 3840)

    def dma_groups(g):
        slot = g % 3
        k = g if g < 10 else g - 10
        out = []
        xs = slot * 16384
        ws_ = slot * WSLOT
        for half in range(2):
            if g >= 10 and k < NXC:
                continue
            out.append([f"s_add_u32 m0, s{sM0x}, {xs + 8192*half}",
                        f"s_add_u32 s{sXs2}, s{sXs}, {k*128 + 81920*half}",
                        f"buffer_load_dwordx4 v{vXo}, s[{SX}:{SX+3}], s{sXs2} offen lds"])
        if g < 10:
            for half in range(2):
                out.append([f"s_add_u32 m0, s{sM0q}, {ws_ + 8192*half}",
                            f"s_add_u32 s{sWs2}, s{sWs}, {(k*64 + 32*half)*3840}",
                            f"buffer_load_dwordx4 v{vWoQ}, s[{SWQ}:{SWQ+3}], s{sWs2} offen lds"])
        else:
            for (sm, vo, sr) in ((sM0g0, vWo0, SWG), (sM0g1, vWo1, SW1), (sM0g2, vWo2, SWU)):
                out.append([f"s_add_u32 m0, s{sm}, {ws_}",
                            f"s_add_u32 s{sWs2}, s{sGs}, {k*64*3072}",
                            f"buffer_load_dwordx4 v{vo}, s[{sr}:{sr+3}], s{sWs2} offen lds"])
        if "p1nodma" in DBG and g >= 3:
            return [[] for _ in out]
        return out

    srd(A, SDB, P_DBG, 256)
    A("s_or_b32 s61, s2, s3")
    A("s_cmp_eq_u32 s61, 0")

    def pub(lb):
        A("s_memrealtime s[62:63]")
        A("s_waitcnt lgkmcnt(0)")
        A("s_or_b32 s62, s62, 1")
        A("v_mov_b32 v16, s62")
        A("v_mov_b32 v17, 0")
        A("s_mov_b64 exec, 1")
        A(f"buffer_store_dword v16, v17, s[{SDB}:{SDB+3}], 0 offen sc1")
        A("s_mov_b64 exec, -1")
    A.rare([], pub)
    def prefetch():
        A("s_mov_b32 s60, s4\ns_mov_b32 s61, s5")
        A(f"s_mov_b32 s62, {2048*1280}")
        A("s_mov_b32 s64, 10240")
        for (wmin, lo, hi, sz, ch) in ((2, 8, 9, 640*3840, 9600), (4, 12, 13, 640*3072, 7680), (5, 16, 17, 640*3072, 7680),
                                       (6, 48, 49, 1536*1280, 7680), (7, 40, 41, 640*1280, 3200)):
            A(f"s_cmp_ge_u32 s3, {wmin}")
            A(f"s_cselect_b32 s60, s{lo}, s60")
            A(f"s_cselect_b32 s61, s{hi}, s61")
            A(f"s_cselect_b32 s62, {sz}, s62")
            A(f"s_cselect_b32 s64, {ch}, s64")
        A("s_and_b32 s61, s61, 0xffff")
        A("s_mov_b32 s63, 0x20000")
        A("s_cmp_lt_u32 s3, 4")
        A("s_cselect_b32 s75, 1, 0")
        A("s_and_b32 s75, s75, s3")
        A("s_lshl_b32 s75, s75, 13")
        A("v_lshlrev_b32 v3, 7, v1")
        A("v_add_u32 v3, s75, v3")
        A("v_cmp_gt_u32 vcc, s64, v3")
        A("s_mul_i32 s64, s64, s2")
        A("s_mov_b64 exec, vcc")
        A("buffer_load_dword v59, v3, s[60:63], s64 offen")
        A("s_mov_b64 exec, -1")
    def issue_stage(st):
        for grp in dma_groups(st):
            for x in grp:
                A(x)
    if "pffirst" in DBG:
        srd(A, SWG, P_WG, 640 * 3072)
        srd(A, SWU, P_WU, 640 * 3072)
        prefetch()
    issue_stage(0)
    if "st012" in DBG:
        issue_stage(1)
        issue_stage(2)
    SGW = 68
    srd(A, SGW, P_GW, 1280)
    vGX, vGW = 100, 106
    sTOK = 33
    sGoff = 0
    A(f"s_lshl_b32 s{sTOK}, s{sTB}, 7")
    A(f"s_lshl_b32 s61, s{sCG}, 3")
    A(f"s_add_u32 s{sTOK}, s{sTOK}, s61")
    A(f"s_add_u32 s{sTOK}, s{sTOK}, s3")
    A(f"s_lshl_b32 s{sGoff}, s{sTOK}, 2")
    A(f"s_add_u32 s{sGoff}, s{sGoff}, {G_OFF}")
    srd(A, SWG, P_WG, 640 * 3072)
    srd(A, SWU, P_WU, 640 * 3072)
    srd(A, SWS, P_WS, WS_USED)
    A("s_cmp_lt_u32 s3, 4")
    for k in range(4):
        A(f"s_cselect_b32 s{SW1+k}, s{SWG+k}, s{SWU+k}")
    A(f"s_mul_i32 s75, s{sTOK}, 1280")
    if "st012" not in DBG:
        issue_stage(1)
        issue_stage(2)
    for m in range(5):
        A(f"buffer_load_dword v{vGX+m}, v2, s[{SX}:{SX+3}], s75 offen offset:{256*m}")
    for m in range(5):
        A(f"buffer_load_dword v{vGW+m}, v2, s[{SGW}:{SGW+3}], 0 offen offset:{256*m}")
    NPF = 0 if "nopf" in DBG else 1

    if NPF and "pflate" not in DBG and "pffirst" not in DBG:
        prefetch()

    A("v_and_b32 v16, 31, v1")
    A("v_lshrrev_b32 v17, 5, v1")
    A("v_lshrrev_b32 v18, 1, v16")
    A("v_and_b32 v18, 7, v18")
    A(f"s_lshl_b32 s61, s{sTT}, 5")
    A("v_add_u32 v19, s61, v16")
    A("v_lshlrev_b32 v19, 7, v19")
    for j in range(4):
        A(f"v_add_u32 v20, {2*j}, v17")
        A("v_xor_b32 v20, v20, v18")
        A("v_lshlrev_b32 v20, 4, v20")
        A(f"v_add_u32 v{vXa+j}, v19, v20")
    A("v_and_b32 v18, 15, v1")
    A("v_lshrrev_b32 v19, 2, v18")
    A("v_lshrrev_b32 v20, 4, v1")
    A(f"s_cmp_lt_u32 s{sCG}, 11")
    A("s_cselect_b32 s61, 8, 0")
    A("s_sub_u32 s61, 128, s61")
    A(f"s_mul_i32 s61, s61, s{sWC}")
    A("v_lshrrev_b32 v21, 1, v20")
    A("v_lshl_add_u32 v21, v21, 3, v19")
    A("v_lshlrev_b32 v27, 8, v21")
    A(f"v_add_u32 v27, {WRING}, v27")
    A("v_and_b32 v22, 1, v20")
    A("v_lshlrev_b32 v22, 5, v22")
    A("v_and_b32 v23, 3, v1")
    A("v_lshl_add_u32 v22, v23, 3, v22")
    A("v_add_u32 v22, s61, v22")
    A("v_and_b32 v24, 3, v19")
    A("v_lshlrev_b32 v24, 2, v24")
    for t in range(2):
        A(f"v_add_u32 v25, {64*t}, v22")
        A("v_lshrrev_b32 v26, 4, v25")
        A("v_xor_b32 v26, v26, v24")
        A("v_lshlrev_b32 v26, 4, v26")
        A("v_and_b32 v25, 15, v25")
        A(f"v_add3_u32 v{vWaQ+t}, v27, v26, v25")
    A("v_mul_u32_u24 v21, 192, v21")
    A("v_and_b32 v22, 1, v20")
    A(f"v_mul_u32_u24 v22, {UPOFF}, v22")
    A("v_lshlrev_b32 v23, 3, v23")
    A("v_add3_u32 v21, v21, v22, v23")
    A(f"s_mul_i32 s61, s{sWC}, 96")
    A(f"s_add_u32 s61, s61, {WRING}")
    A(f"v_add_u32 v{vWaG}, s61, v21")
    A("s_add_u32 s61, s3, 8")
    A("s_sub_u32 s62, s3, 4")
    A("s_cmp_lt_u32 s3, 4")
    A("s_cselect_b32 s63, s61, s62")
    A(f"s_cselect_b32 s64, 0, {UPOFF}")
    A(f"s_lshl_b32 s{sM0g1}, s63, 10")
    A(f"s_add_u32 s{sM0g1}, s{sM0g1}, s64")
    A(f"s_add_u32 s{sM0g1}, s{sM0g1}, {WRING}")
    A("s_add_u32 s64, s3, 4")
    A(f"s_lshl_b32 s{sM0g2}, s64, 10")
    A(f"s_add_u32 s{sM0g2}, s{sM0g2}, {WRING + UPOFF}")
    A(f"s_lshl_b32 s{sM0g0}, s3, 10")
    A(f"s_add_u32 s{sM0g0}, s{sM0g0}, {WRING}")
    for (vd, sj) in ((vWo0, 3), (vWo1, 63), (vWo2, 64)):
        A(f"s_lshl_b32 s61, s{sj}, 6")
        A("v_add_u32 v21, s61, v1")
        magic_div(A, 22, 21, 12, 768, 62)
        A("v_mul_u32_u24 v23, 12, v22")
        A("v_sub_u32 v23, v21, v23")
        A("v_lshlrev_b32 v23, 4, v23")
        A("v_mul_u32_u24 v22, 3072, v22")
        A(f"v_add_u32 v{vd}, v22, v23")
    A(f"s_mul_i32 s{sGs}, s{sCG}, 192")

    A(f"v_lshlrev_b32 v{vL16p}, 4, v1")
    A(f"v_and_b32 v16, 31, v1")
    A(f"v_lshlrev_b32 v{vT8p}, 3, v16")
    A(f"v_lshlrev_b32 v{vGt}, 2, v16")
    A(f"s_mul_i32 s61, s{sWC}, 2560")
    A(f"s_add_u32 s61, s61, {KVB + 4*KVSLOT}")
    A(f"v_add_u32 v{vK0}, s61, v{vL16p}")
    A(f"v_add_u32 v{vK1}, s61, v{vT8p}")
    A(f"v_add_u32 v{vK1}, 1024, v{vK1}")
    A("v_lshrrev_b32 v17, 5, v1")
    A("v_mul_u32_u24 v17, 320, v17")
    A("v_lshlrev_b32 v18, 4, v16")
    A("v_add3_u32 v17, v17, v18, s61")
    A(f"v_add_u32 v{vV}, 1280, v17")
    A("s_sub_i32 s61, s3, 2")
    A("s_max_i32 s61, s61, 0")
    A("s_min_i32 s61, s61, 4")
    A("s_lshl_b32 s62, s61, 10")
    A(f"v_add_u32 v{vKVo}, s62, v{vL16p}")
    A(f"v_cmp_le_u32 vcc, 2560, v{vKVo}")
    A(f"v_add_u32 v17, {32*2560-2560}, v{vKVo}")
    A("s_nop 0")
    A(f"v_cndmask_b32 v{vKVo}, v{vKVo}, v17, vcc")
    A("v_lshrrev_b32 v17, 4, v1")
    A("v_lshrrev_b32 v18, 1, v17")
    A("v_lshlrev_b32 v18, 10, v18")
    A("v_and_b32 v19, 1, v17")
    A("v_lshlrev_b32 v19, 9, v19")
    A("v_and_b32 v20, 15, v1")
    A(f"s_and_b32 s61, s{sTT}, 1")
    A("s_lshl_b32 s61, s61, 4")
    A("v_add_u32 v20, s61, v20")
    A("v_lshlrev_b32 v21, 4, v20")
    A(f"v_add3_u32 v{vActReal}, v18, v19, v21")
    A(f"v_mov_b32 v{vAct}, v{vActReal}")
    A(f"v_lshlrev_b32 v{vG2}, 2, v20")
    A("v_lshrrev_b32 v18, 1, v17")
    A("v_lshlrev_b32 v18, 4, v18")
    A("v_and_b32 v19, 1, v17")
    A("v_lshl_add_u32 v18, v19, 2, v18")
    A("v_and_b32 v19, 15, v1")
    A("v_lshrrev_b32 v19, 2, v19")
    A("v_add_u32 v18, v18, v19")
    A("v_mul_u32_u24 v18, 160, v18")
    A("v_and_b32 v19, 3, v1")
    A("v_lshl_add_u32 v18, v19, 3, v18")
    A(f"s_mul_i32 s61, s{sWC}, 5120")
    A(f"v_add_u32 v{vWr}, s61, v18")
    A(f"v_mov_b32 v{vW0}, v{vWr}")
    A(f"v_add_u32 v{vW1}, 61440, v{vWr}")
    A("s_cmp_ge_u32 s3, 5")
    A("s_cselect_b32 s63, 5, 0")
    A("s_sub_u32 s63, s3, s63")
    A("s_add_u32 s64, s3, 3")
    A("s_min_u32 s64, s64, 4")
    for (sj, vh, vm, vr) in ((63, vWA, vWAm, vWAr), (64, vWB, vWBm, vWBr)):
        A(f"s_lshl_b32 s61, s{sj}, 6")
        A("v_add_u32 v22, s61, v1")
        magic_div(A, 23, 22, 10, 320, 62)
        A("v_mul_u32_u24 v24, 10, v23")
        A("v_sub_u32 v24, v22, v24")
        A("v_lshlrev_b32 v24, 4, v24")
        A("v_mul_u32_u24 v25, 1280, v23")
        A(f"v_add_u32 v{vh}, v25, v24")
        A("v_lshrrev_b32 v25, 4, v23")
        A("v_mul_u32_u24 v25, 20, v25")
        A("v_and_b32 v26, 15, v23")
        A("v_add_u32 v25, v25, v26")
        A("v_mul_u32_u24 v25, 1280, v25")
        A(f"v_add_u32 v{vm}, v25, v24")
        A("v_lshrrev_b32 v25, 4, v23")
        A("v_lshlrev_b32 v25, 1, v25")
        A("v_bfe_u32 v26, v23, 2, 1")
        A("v_add_u32 v25, v25, v26")
        A("v_mul_u32_u24 v25, 20, v25")
        A("v_and_b32 v26, 3, v23")
        A("v_add3_u32 v25, v25, v26, 16")
        A("v_mul_u32_u24 v25, 1280, v25")
        A(f"v_add_u32 v{vr}, v25, v24")
    A("s_cmp_lt_u32 s3, 2")
    A("s_cselect_b64 vcc, -1, 0")
    A("s_nop 1")
    A(f"v_cndmask_b32 v{vPB}, v{vKVo}, v{vWB}, vcc")
    ONE2 = 0x3f803f80

    def p2_inits(part):
        if part == 0:
            A("v_and_b32 v56, 31, v1")
            A("v_cmp_eq_u32 vcc, 20, v56")
            A(f"v_mov_b32 v57, {hx(ONE2)}")
            A("s_nop 0")
            A("v_cndmask_b32 v58, 0, v57, vcc")
            for r in range(8):
                A(f"v_mov_b32 v{V0+r}, v58")
            A(f"v_mov_b32 v{K1+2}, {hx(ONE2)}")
            A(f"v_mov_b32 v{K1+3}, 0x3f80")
            for r in range(8):
                A(f"v_mov_b32 v{P+r}, 0")
        else:
            for r in range(32):
                A(f"v_mov_b32 v{O[0]+r}, 0")


    def gate_compute():
        A("v_mov_b32 v56, 0")
        for m in range(5):
            A(f"v_dot2_f32_bf16 v56, v{vGX+m}, v{vGW+m}, v56")
        A("s_nop 3")
        for sh in (1, 2, 4, 8):
            A(f"v_add_f32_dpp v56, v56, v56 row_shr:{sh} row_mask:0xf bank_mask:0xf bound_ctrl:0")
            A("s_nop 1")
        A("v_add_f32_dpp v56, v56, v56 row_bcast:15 row_mask:0xa bank_mask:0xf")
        A("s_nop 1")
        A("v_add_f32_dpp v56, v56, v56 row_bcast:31 row_mask:0xc bank_mask:0xf")
        A("s_nop 1")
        A(f"v_mul_f32 v56, {hx(f2u(-LOG2E))}, v56")
        A("v_exp_f32 v56, v56")
        A("s_nop 0")
        A("v_add_f32 v56, 1.0, v56")
        A("v_rcp_f32 v63, v56")

    if NPF and "pflate" in DBG:
        prefetch()
    stamp(A, 9, "st")
    NPY = 0 if "pffirst" in DBG else NPF
    A(f"s_waitcnt vmcnt({8+10+NPY})")
    stamp(A, 10, "st")
    A("s_barrier")
    stamp(A, 1)

    def xoff(g):
        return (g % 3) * 16384

    def woff(g):
        return (g % 3) * WSLOT

    def xreg(setX, g, half, jj):
        k = g if g < 10 else g - 10
        return XC(k, 2 * half + jj) if k < NXC else setX + 4 * jj

    def qkv_reads(setX, setW, g, half):
        r = []
        for jj in range(2):
            j = 2 * half + jj
            r.append(f"ds_read_b128 {v(xreg(setX, g, half, jj),4)}, v{vXa+j} offset:{xoff(g)}")
            for t in range(2):
                d = setW + 8 * jj + 4 * t
                o = woff(g) + j * 4096
                r.append(f"ds_read_b64_tr_b16 {v(d,2)}, v{vWaQ+t} offset:{o}")
                r.append(f"ds_read_b64_tr_b16 {v(d+2,2)}, v{vWaQ+t} offset:{o+1024}")
        return r

    def qkv_mfmas(setX, setW, g, half, vtype):
        m = []
        for jj in range(2):
            for t in range(2):
                a, b = setW + 8 * jj + 4 * t, xreg(setX, g, half, jj)
                if vtype:
                    a, b = b, a
                m.append(mfma32(ACC + 16 * t, a, b, "0" if (g == 0 and half == 0 and jj == 0) else None))
        return m

    def gu_reads(setX, setW, g, half):
        r = []
        for jj in range(2):
            j = 2 * half + jj
            if g - 10 >= NXC:
                r.append(f"ds_read_b128 {v(setX+4*jj,4)}, v{vXa+j} offset:{xoff(g)}")
            for t in range(3):
                d = setW + 12 * jj + 4 * t
                o = woff(g) + j * 3072 + 32 * t
                a = vWaG
                assert o + 768 < 65536
                r.append(f"ds_read_b64_tr_b16 {v(d,2)}, v{a} offset:{o}")
                r.append(f"ds_read_b64_tr_b16 {v(d+2,2)}, v{a} offset:{o+768}")
        return r

    def gu_mfmas(setX, setW, g, half):
        m = []
        for jj in range(2):
            for t in range(3):
                m.append(mfma32(ACC + 16 * t, setW + 12 * jj + 4 * t, xreg(setX, g, half, jj), "0" if (g == 10 and half == 0 and jj == 0) else None))
        return m

    def emit_half(mm, rr, dd, fill=()):
        if "p1noreads" in DBG: rr = []
        if "p1nomfma" in DBG: mm = ["s_nop 0"] * len(mm)
        n = len(mm)
        ng = n - 1
        if 'nghalf' in DBG: ng = max(1, n // 2)
        if 'ngm2' in DBG: ng = max(1, n - 2)
        if 'ngall' in DBG: ng = n
        per = (len(rr) + ng - 1) // ng
        pos = {}
        for i, grp in enumerate(dd):
            p_ = min(n - 1, (i * n) // max(1, len(dd)) + (0 if len(dd) > 2 else 1))
            pos.setdefault(p_, []).append(grp)
        load = [0] * n
        ri = 0
        for i in range(n):
            load[i] += len(rr[ri:ri + per]); ri += per
            load[i] += sum(len(g_) for g_ in pos.get(i, []))
        total = sum(load) + sum(len(g_) for g_ in fill)
        target = total / n
        fpos = [[] for _ in range(n)]
        gi = 0
        for g_ in fill:
            while gi < n - 1 and load[gi] >= target:
                gi += 1
            fpos[gi].append(g_); load[gi] += len(g_)
        ri = 0
        for i, m in enumerate(mm):
            A(m)
            for r in rr[ri:ri + per]:
                A(r)
            ri += per
            for grp in pos.get(i, []):
                for x in grp:
                    A(x)
            for grp in fpos[i]:
                for x in grp:
                    A(x)
        for r in rr[ri:]:
            A(r)

    def stage(g, reads, mfmas, wait, pre=None, post=None, fill0=(), fill1=()):
        d2 = dma_groups(g + 2)[2:] if (3 <= g + 2 <= 19 and g + 2 != 12) else []
        d3 = dma_groups(g + 3)[:2] if g + 3 <= 19 else []
        if "dmaearly" in DBG:
            d2 = []
            d3 = dma_groups(g + 3) if g + 3 <= 19 else []
        if g + 3 == 12:
            d3 = dma_groups(12)
        A("s_waitcnt lgkmcnt(0)")
        if "p1prio" in DBG: A("s_setprio 0")
        if "p1prio2" in DBG: A("s_setprio 1")
        emit_half(mfmas(XA, WA, g, 0), reads(XB, WB, g, 1), d2, fill0)
        if pre: pre()
        if g == 12: stamp(A, 8, True)
        if g == 18: stamp(A, 9, True)
        wait()
        A("s_barrier")
        if g == 18: stamp(A, 10, True)
        nr = reads(XA, WA, g + 1, 0) if g not in (9, 19) else []
        if "p1prio" in DBG: A("s_setprio 1")
        if "p1prio2" in DBG: A("s_setprio 0")
        emit_half(mfmas(XB, WB, g, 1), nr, d3, fill1)
        if post: post()

    def qkv_phase(vtype):
        for r in qkv_reads(XA, WA, 0, 0):
            A(r)
        for g in range(10):
            n = len(dma_groups(g + 2)) + (10 + NPY if g < 2 else 0)
            f0 = [capture(A, gate_compute)] if g == 3 else ()
            stage(g, qkv_reads, lambda x, w, g_, h_: qkv_mfmas(x, w, g_, h_, vtype), lambda n=n: A(f"s_waitcnt vmcnt({n}) lgkmcnt(0)"), fill0=atomic_groups(f0[0]) if f0 else ())

    sCls = 35
    A(f"s_cmp_ge_u32 s{sCG}, 11")
    A("s_cbranch_scc1 L_vtype")
    qkv_phase(False)
    stamp(A, 2)
    A("s_waitcnt lgkmcnt(0)")
    A("s_nop 7\ns_nop 7")
    PK = 32
    sU, sTile, sD = 65, 66, 67
    A(f"s_mul_i32 s{sU}, s{sCG}, 6")
    A(f"s_mul_i32 s61, s{sWC}, 3")
    A(f"s_add_u32 s{sU}, s{sU}, s61")
    A(f"s_lshl_b32 s{sTile}, s{sTB}, 2")
    A(f"s_add_u32 s{sTile}, s{sTile}, s{sTT}")
    A(f"s_add_u32 s61, s{sU}, 1")
    A("s_cmp_lt_u32 s61, 32")
    A(f"s_cselect_b32 s62, {hx(f2u(QSCALE))}, 1.0")
    A(f"s_add_u32 s61, s{sU}, 2")
    A("s_cmp_lt_u32 s61, 32")
    A(f"s_cselect_b32 s63, {hx(f2u(QSCALE))}, 1.0")
    for r in range(32):
        G = r // 4
        A(f"v_mul_f32 v{ACC+r}, s{62 if G < 5 else 63}, v{ACC+r}")
    for p in range(16):
        A(f"v_cvt_pk_bf16_f32 v{PK+p}, v{ACC+2*p}, v{ACC+2*p+1}")
    vL16x = 58
    A(f"v_xor_b32 v{vL16x}, 512, v{vL16p}")

    def dest(a):
        A(f"s_add_u32 s61, s{sU}, {a}")
        A("s_lshl_b32 s62, s61, 6")
        A(f"s_add_u32 s62, s62, s{sTile}")
        A("s_mul_i32 s63, s62, 1280")
        A(f"s_sub_u32 s62, s62, {32*64}")
        A("s_mul_i32 s62, s62, 2560")
        A(f"s_add_u32 s62, s62, {KV_OFF}")
        A("s_cmp_lt_u32 s61, 32")
        A(f"s_cselect_b32 s{sD}, s63, s62")
    dest(0)
    A(f"buffer_store_dwordx4 {v(PK,4)}, v{vL16p}, {W}, s{sD} offen{SC1}")
    A("s_mov_b32 exec_hi, 0")
    A(f"buffer_store_dwordx2 {v(PK+4,2)}, v{vT8p}, {W}, s{sD} offen offset:1024{SC1}")
    A("s_mov_b32 exec_hi, -1")
    A(f"s_mov_b32 s{sCls}, 2")
    A(f"s_cmp_ge_u32 s{sU}, 63")
    A("s_cbranch_scc1 L_qkv_done")
    A(f"s_mov_b32 s{sCls}, 0")
    dest(1)
    A("s_mov_b32 exec_hi, 0")
    A(f"buffer_store_dwordx4 {v(PK+6,4)}, v{vL16x}, {W}, s{sD} offen{SC1}")
    A("s_mov_b32 exec_lo, 0\ns_mov_b32 exec_hi, -1")
    A(f"buffer_store_dwordx4 {v(PK+4,4)}, v{vL16x}, {W}, s{sD} offen{SC1}")
    A(f"buffer_store_dwordx2 {v(PK+8,2)}, v{vT8p}, {W}, s{sD} offen offset:1024{SC1}")
    A("s_mov_b32 exec_lo, -1")
    dest(2)
    A(f"buffer_store_dwordx4 {v(PK+10,4)}, v{vL16p}, {W}, s{sD} offen{SC1}")
    A("s_mov_b32 exec_hi, 0")
    A(f"buffer_store_dwordx2 {v(PK+14,2)}, v{vT8p}, {W}, s{sD} offen offset:1024{SC1}")
    A("s_mov_b32 exec_hi, -1")
    A("s_branch L_qkv_done")

    A.label("L_vtype")
    qkv_phase(True)
    stamp(A, 2)
    A("s_waitcnt lgkmcnt(0)")
    A("s_nop 7\ns_nop 7")
    A(f"s_mov_b32 s{sCls}, 1")
    A(f"s_lshl_b32 s{sTile}, s{sTB}, 2")
    A(f"s_add_u32 s{sTile}, s{sTile}, s{sTT}")
    A(f"s_mul_i32 s{sD}, s{sTile}, 2560")
    A(f"s_add_u32 s{sD}, s{sD}, {KV_OFF + 1280}")
    A(f"s_sub_u32 s61, s{sCG}, 11")
    A("s_lshl_b32 s61, s61, 7")
    A(f"s_lshl_b32 s62, s{sWC}, 6")
    A("s_add_u32 s61, s61, s62")
    A("v_and_b32 v56, 31, v1")
    A("v_lshrrev_b32 v57, 5, v1")
    A("v_mul_u32_u24 v57, 320, v57")
    for t in range(2):
        A("v_add_u32 v58, s61, v56")
        if t:
            A("v_add_u32 v58, 32, v58")
        magic_div(A, 59, 58, 20, 640, 62)
        A("v_mul_u32_u24 v60, 20, v59")
        A("v_sub_u32 v60, v58, v60")
        A("v_lshlrev_b32 v60, 4, v60")
        A("s_mov_b32 s62, 163840")
        A("v_mul_lo_u32 v59, v59, s62")
        A(f"v_add3_u32 v{2+t}, v59, v60, v57")
    for t in range(2):
        for hf in range(2):
            base = ACC + 16 * t + 8 * hf
            dst = 32 + 8 * t + 4 * hf
            for p in range(4):
                A(f"v_cvt_pk_bf16_f32 v{dst+p}, v{base+2*p}, v{base+2*p+1}")
            A(f"buffer_store_dwordx4 {v(dst,4)}, v{2+t}, {W}, s{sD} offen offset:{640*hf}{SC1}")
    A.label("L_qkv_done")
    A("v_mov_b32 v3, 0")
    A("s_mov_b32 exec_lo, 0")
    A("s_mov_b32 exec_hi, 0x80000000")
    A(f"buffer_store_dword v63, v3, {W}, s{sGoff} offen{SC1}")
    A("s_mov_b64 exec, -1")
    stamp(A, 3)

    sHead, sQT, sKVs, sM0kv = 48, 49, 51, 65
    A("v_mov_b32 v3, 0")
    A(f"buffer_load_dword v{vN}, v3, s[{SDB}:{SDB+3}], 0 offen sc1")

    def gu_setup():
        A("s_mov_b32 s0, s48")
        A("s_mov_b32 s1, s49")
        A("s_and_b32 s61, s2, 7")
        A("s_lshr_b32 s62, s2, 3")
        A("s_lshl_b32 s61, s61, 2")
        A(f"s_lshr_b32 s{sHead}, s62, 3")
        A(f"s_add_u32 s{sHead}, s{sHead}, s61")
        A("s_and_b32 s62, s62, 7")
        A("s_lshl_b32 s62, s62, 3")
        A(f"s_lshl_b32 s61, s{sTT}, 1")
        A(f"s_add_u32 s{sQT}, s62, s61")
        A("s_mov_b32 s38, s40")
        A("s_mov_b32 s39, s41")
        srd(A, SK, P_WS, KV_SZ, add=KV_OFF)
        A("s_sub_i32 s61, s3, 2")
        A("s_max_i32 s61, s61, 0")
        A("s_min_i32 s61, s61, 4")
        A("s_lshl_b32 s62, s61, 10")
        A(f"s_add_u32 s{sM0kv}, s62, {KVB}")
        A(f"s_mul_i32 s{sKVs}, s{sHead}, 163840")

    def kv_dma(tile):
        A(f"s_add_u32 m0, s{sM0kv}, {((tile+4)%8)*KVSLOT}")
        A("s_nop 0")
        A(f"buffer_load_dwordx4 v{vKVo}, s[{SK}:{SK+3}], s{sKVs} offen{SC1} lds")
        A(f"s_add_u32 s{sKVs}, s{sKVs}, 2560")

    def p2_prologue():
        for a in range(2):
            A(f"s_lshl_b32 s61, s{sHead}, 6")
            A(f"s_add_u32 s61, s61, s{sQT}")
            A(f"s_add_u32 s61, s61, {a}")
            A("s_mul_i32 s61, s61, 1280")
            A(f"buffer_load_dwordx4 {v(Q0[a],4)}, v{vL16p}, {W}, s61 offen{SC1}")
            A(f"buffer_load_dwordx2 {v(Q1[a],2)}, v{vT8p}, {W}, s61 offen offset:1024{SC1}")
        A(f"s_add_u32 s61, s{sQT}, s{sWC}")
        A("s_lshl_b32 s61, s61, 7")
        A(f"s_add_u32 s61, s61, {G_OFF}")
        A(f"buffer_load_dword v{vGt}, v{vGt}, {W}, s61 offen{SC1}")
        for t in range(6):
            kv_dma(t)
        A(f"s_lshl_b32 s61, s{sTile3}, 7")
        A(f"s_add_u32 s61, s61, {G_OFF}")
        A(f"buffer_load_dword v{vG2}, v{vG2}, {W}, s61 offen{SC1}")

    def nonce_get():
        lk = A.newlabel("L_nk")
        A(f"v_readfirstlane_b32 s{sNonce}, v{vN}")
        A("s_nop 3")
        A(f"s_cmp_lg_u32 s{sNonce}, 0")
        A(f"s_cbranch_scc1 {lk}")

        def issue():
            A(f"buffer_load_dword v{vN}, v3, s[{SDB}:{SDB+3}], 0 offen sc1")

        def check():
            A(f"v_readfirstlane_b32 s{sNonce}, v{vN}")
            A("s_nop 3")
            A(f"s_cmp_lg_u32 s{sNonce}, 0")
        spin(A, "n", issue, check)
        A.label(lk)

    def f1_issue():
        A(f"s_mov_b32 s62, {F1_OFF}")
        A(f"buffer_load_dwordx4 v[56:59], v{vL16p}, {W}, s62 offen sc1")

    def f1_check():
        A(f"v_cmp_ne_u32 vcc, s{sNonce}, v56")
        A(f"v_cmp_ne_u32 s[62:63], s{sNonce}, v57")
        A("s_or_b64 vcc, vcc, s[62:63]")
        A(f"v_cmp_ne_u32 s[62:63], s{sNonce}, v58")
        A("s_or_b64 vcc, vcc, s[62:63]")
        A(f"v_cmp_ne_u32 s[62:63], s{sNonce}, v59")
        A("s_or_b64 vcc, vcc, s[62:63]")
        A("s_cmp_eq_u64 vcc, 0")

    sTB64, sCB, sT16, sPar, sTile3 = 44, 45, sTT, sWC, 32
    sKH = sWC
    sIsW = 38
    sM0A, sM0B, sWsA, sWsB, sStepA, sStepB = 33, 66, 67, 69, 74, 70
    sActS, sColb, sParA = 71, 72, 73
    sP, sG, sGp, sKd, sRrg, sHH = 64, 46, 47, 36, 37, 34
    sOffB = [52, 53, 54, 55]
    sVm = 0

    def p2_scal1():
        A("s_and_b32 s61, s2, 7")
        A("s_lshr_b32 s62, s2, 3")
        A(f"s_lshr_b32 s{sTB64}, s61, 1")
        A(f"s_lshl_b32 s{sTB64}, s{sTB64}, 3")
        A("s_and_b32 s63, s62, 7")
        A(f"s_add_u32 s{sTB64}, s{sTB64}, s63")
        A(f"s_and_b32 s{sCB}, s61, 1")
        A(f"s_lshl_b32 s{sCB}, s{sCB}, 2")
        A("s_lshr_b32 s63, s62, 3")
        A(f"s_add_u32 s{sCB}, s{sCB}, s63")
        A(f"s_lshl_b32 s{sTile3}, s{sTB64}, 1")
        A(f"s_lshr_b32 s61, s{sT16}, 1")
        A(f"s_add_u32 s{sTile3}, s{sTile3}, s61")
        srd(A, SWD, 0, 1536 * 1280)
        srd(A, SWO, 38, 640 * 1280)
        srd(A, SOUT, P_OUT, 2048 * 1280)
        for k in range(4):
            A(f"s_mov_b32 s{SPA+k}, s{SWD+k}")
        A("s_cmp_lt_u32 s3, 2")
        for k in range(4):
            A(f"s_cselect_b32 s{SPB+k}, s{SWD+k}, s{SK+k}")
        A(f"s_cselect_b32 s{sIsW}, 1, 0")

    def p2_scal2():
        A(f"s_mul_i32 s{sColb}, s{sCB}, 160")
        A("s_cmp_ge_u32 s3, 5")
        A(f"s_cselect_b32 s{sParA}, 1, 0")
        A(f"s_mul_i32 s61, s{sParA}, 5")
        A("s_sub_u32 s61, s3, s61")
        A(f"s_mul_i32 s{sM0A}, s{sParA}, 5120")
        A("s_lshl_b32 s61, s61, 10")
        A(f"s_add_u32 s{sM0A}, s{sM0A}, s61")
        A(f"s_mul_i32 s{sWsA}, s{sParA}, {32*1280}")
        A(f"s_add_u32 s{sWsA}, s{sWsA}, s{sColb}")
        A(f"s_mov_b32 s{sStepA}, {64*1280}")
        A(f"s_mul_i32 s{sActS}, s{sTile3}, {96*1024}")
        A(f"s_lshl_b32 s61, s{sPar}, 11")
        A(f"s_add_u32 s{sActS}, s{sActS}, s61")
        A(f"s_add_u32 s{sActS}, s{sActS}, {H_OFF}")
        A(f"s_mov_b32 s{sVm}, 0xfffff")
        A(f"s_mov_b32 s{sVm+1}, 0xfffff")
        A(f"s_mov_b32 s{sG}, 0")
        A(f"s_mov_b32 s{sGp}, 0")
        A(f"s_mov_b32 s{sRrg}, 0")
        A(f"s_mov_b32 s{sHH}, 0")
        A(f"s_mov_b32 s{sKd}, {hx(-4*KVSLOT)}")

    def p2_scal3():
        A("s_add_u32 s61, s3, 3")
        A("s_min_u32 s61, s61, 4")
        A("s_lshl_b32 s61, s61, 10")
        A("s_add_u32 s61, s61, 5120")
        A("s_cmp_lt_u32 s3, 2")
        A(f"s_cselect_b32 s{sM0B}, s61, s{sM0kv}")
        A(f"s_add_u32 s61, s{sColb}, {32*1280}")
        A("s_cmp_lt_u32 s3, 2")
        A(f"s_cselect_b32 s{sWsB}, s61, s{sKVs}")
        A(f"s_mov_b32 s61, {64*1280}")
        A("s_cmp_lt_u32 s3, 2")
        A(f"s_cselect_b32 s{sStepB}, s61, 2560")
        A(f"s_mov_b32 s{sP}, 0")
        if "outwarm" in DBG:
            A("v_and_b32 v255, 15, v1")
            A("v_mul_u32_u24 v255, 1280, v255")
            A(f"s_lshl_b32 s61, s{sTB64}, 6")
            A(f"s_lshl_b32 s62, s{sT16}, 4")
            A("s_add_u32 s61, s61, s62")
            A("s_mul_i32 s61, s61, 1280")
            A(f"s_mul_i32 s62, s{sCB}, 160")
            A("s_add_u32 s61, s61, s62")
            A(f"buffer_load_dword v255, v255, s[{SOUT}:{SOUT+3}], s61 offen")

    def gu_wait(g):
        def w():
            if g in (10, 11):
                nb = len(dma_groups(g + 2))
                lE, lc1, lc2 = [A.newlabel("L_gw") for _ in range(3)]
                A(f"s_cmp_eq_u32 s{sCls}, 0")

                def body(lb):
                    A(f"s_cmp_eq_u32 s{sCls}, 1")
                    A(f"s_cbranch_scc0 {lc2}")
                    A(f"s_waitcnt vmcnt({nb+6})")
                    A(f"s_branch {lE}")
                    A.label(lc2)
                    A(f"s_waitcnt vmcnt({nb+4})")
                    A(f"s_branch {lE}")
                A.rare([], body, branch="s_cbranch_scc0")
                A(f"s_waitcnt vmcnt({nb+9})")
                A.label(lE)
                A("s_waitcnt lgkmcnt(0)")
            elif g <= 17:
                A(f"s_waitcnt vmcnt({len(dma_groups(g + 2))}) lgkmcnt(0)")
            elif g == 18:
                A("s_waitcnt vmcnt(0) lgkmcnt(0)")

                def body(lb):
                    poll_pre(A, "f1", f1_issue, f1_check)
                A.rare(["s_cmp_eq_u32 s3, 0"], body)
            else:
                A("s_waitcnt lgkmcnt(0)")
        return w

    def sig_f1():
        def body(lb):
            A("v_mov_b32 v3, 0")
            nonce_get()
            A(f"s_lshl_b32 s61, s{sTB}, 4")
            A(f"s_add_u32 s61, s61, s{sCG}")
            A("s_lshl_b32 s61, s61, 2")
            A(f"s_add_u32 s61, s61, {F1_OFF}")
            A(f"v_mov_b32 v2, s{sNonce}")
            A("s_mov_b64 exec, 1")
            A(f"buffer_store_dword v2, v3, {W}, s61 offen sc1")
            A("s_mov_b64 exec, -1")
        A.rare(["s_cmp_eq_u32 s3, 0"], body)

    def f1_pre():
        A.rare(["s_cmp_eq_u32 s3, 0"], lambda lb: f1_issue())

    for r in gu_reads(XA, WA, 10, 0):
        A(r)
    def F(*fns):
        out = []
        for fn in fns:
            out += atomic_groups(capture(A, fn))
        return out
    fills = {
        (13, 0): F(gu_setup),
        (16, 0): F(lambda: p2_inits(0)),
        (16, 1): F(lambda: p2_inits(1)),
        (17, 1): F(p2_scal1),
        (18, 0): F(p2_scal2),
        (18, 1): F(p2_prologue),
        (19, 0): F(p2_scal3),
    }
    for g in range(10, 20):
        post = {12: sig_f1, 17: f1_pre}.get(g)
        stage(g, gu_reads, gu_mfmas, gu_wait(g), post=post, fill0=fills.get((g, 0), ()), fill1=fills.get((g, 1), ()))
    stamp(A, 4)
    A("s_waitcnt lgkmcnt(0)")
    A("s_nop 7")
    A("s_nop 7")
    ca = -2.0 * LOG2E * (2.0 / 3.141592653589793) ** 0.5
    cb = ca * 0.044715
    sTile, sD = 100, 101
    A(f"s_mov_b32 s61, {hx(f2u(ca))}")
    A(f"s_mov_b32 s62, {hx(f2u(cb))}")
    A(f"s_lshl_b32 s{sTile}, s{sTB}, 2")
    A(f"s_add_u32 s{sTile}, s{sTile}, s{sTT}")
    A(f"s_mul_i32 s{sD}, s{sTile}, 96")
    A(f"s_mul_i32 s63, s{sCG}, 6")
    A(f"s_add_u32 s{sD}, s{sD}, s63")
    A(f"s_mul_i32 s63, s{sWC}, 3")
    A(f"s_add_u32 s{sD}, s{sD}, s63")
    A(f"s_lshl_b32 s{sD}, s{sD}, 10")
    A(f"s_add_u32 s{sD}, s{sD}, {H_OFF}")
    A("v_mov_b32 v61, s61")
    for t in range(3):
        g0 = ACC + 16 * t
        u0 = g0 + 8
        T = 32
        for j in range(8):
            A(f"v_mul_f32 v{T+j}, v{g0+j}, v{g0+j}")
        for j in range(8):
            A(f"v_fma_f32 v{T+j}, v{T+j}, s62, v61")
        for j in range(8):
            A(f"v_mul_f32 v{T+j}, v{T+j}, v{g0+j}")
        for j in range(8):
            A(f"v_exp_f32 v{T+j}, v{T+j}")
        for j in range(8):
            A(f"v_mul_f32 v{u0+j}, v{g0+j}, v{u0+j}")
        for j in range(8):
            A(f"v_add_f32 v{T+j}, 1.0, v{T+j}")
        for j in range(8):
            A(f"v_rcp_f32 v{T+j}, v{T+j}")
        A("s_nop 0")
        for j in range(8):
            A(f"v_mul_f32 v{u0+j}, v{u0+j}, v{T+j}")
        dst = 40 + 4 * t if t < 2 else 56
        for p in range(4):
            A(f"v_cvt_pk_bf16_f32 v{dst+p}, v{u0+2*p}, v{u0+2*p+1}")
        A(f"buffer_store_dwordx4 {v(dst,4)}, v{vL16p}, {W}, s{sD} offen offset:{1024*t}{SC1}")
    stamp(A, 5)

    A("v_mov_b32 v3, 0")
    nonce_get()
    for r in range(20):
        A(f"v_mov_b32 v{DACC+r}, 0")
    A(f"v_mov_b32 v{E+14}, 0")
    A(f"v_mov_b32 v{E+15}, 0")
    A("s_waitcnt vmcnt(3)")
    A("v_cmp_gt_u32 vcc, 32, v1")
    A("s_nop 1")
    for a in range(2):
        A(f"v_cndmask_b32 v{Q1[a]}, 0, v{Q1[a]}, vcc")
        A(f"v_cndmask_b32 v{Q1[a]+1}, 0, v{Q1[a]+1}, vcc")
        A(f"v_mov_b32 v{Q1[a]+2}, 0")
        A(f"v_mov_b32 v{Q1[a]+3}, 0")
    A("s_barrier")
    stamp(A, 6)

    def rdK0(o): return f"ds_read_b128 {v(K0,4)}, v{vK0} offset:{o}"
    def rdK1(o): return f"ds_read_b64 {v(K1,2)}, v{vK1} offset:{o}"
    def rdV(o):
        if "p2noexec" in DBG:
            return [f"ds_read_b128 {v(V0,4)}, v{vV} offset:{o}", f"ds_read_b128 {v(V1,4)}, v{vV} offset:{o+640}"]
        return [f"s_mov_b64 exec, s[{sVm}:{sVm+1}]",
                f"ds_read_b128 {v(V0,4)}, v{vV} offset:{o}",
                f"ds_read_b128 {v(V1,4)}, v{vV} offset:{o+640}",
                "s_mov_b64 exec, -1"]

    A(rdK0(0)); A(rdK1(0))
    A("s_waitcnt lgkmcnt(0)")
    A(mfma32(S[0], K0, Q0[0], "0"))
    A(mfma32(S[0], K1, Q1[0]))

    def valu_groups(cur):
        vl = []
        for i in range(8):
            vl.append(f"v_exp_f32 v{E+2*i}, v{cur+2*i}")
            vl.append(f"v_exp_f32 v{E+2*i+1}, v{cur+2*i+1}")
            j = (i - 1) % 8
            vl.append(f"v_cvt_pk_bf16_f32 v{P+j}, v{E+2*j}, v{E+2*j+1}")
        return [vl[0:6], vl[6:12], vl[12:18], vl[18:24]]

    sM0Ag, sM0Agp = 68, 50
    sM0Bg, sM0Bgp = 52, 53
    sKB0, sKB1 = 52, 53
    sDG = 54

    def period(u, beta, cls):
        A0 = A
        if "p2nobeta" in DBG:
            beta = False if True else beta
        def A_(x):
            if "p2nolds" in DBG and (x.startswith("ds_read") or x.startswith("s_waitcnt lgkmcnt") or x.startswith("s_mov_b64 exec")):
                return
            if "p2nomfma" in DBG and x.startswith("v_mfma"):
                return
            if "p2novm" in DBG and (x.startswith("buffer_load") or x.startswith("s_add_u32 m0") or x.startswith("s_mov_b32 m0") or x.startswith(f"s_add_u32 s{sWsA},") or x.startswith(f"s_add_u32 s{sWsB},") or x.startswith(f"s_add_u32 s{sActS},")):
                return
            A0(x)
        return period_(u, beta, cls, A_)

    def period_(u, beta, cls, A):
        kofs = (u + 1) * KVSLOT if u < 3 else 0
        g = valu_groups(S[0])
        tr = []
        if beta:
            for c in range(5):
                tr.append(f"ds_read_b64_tr_b16 {v(WF+4*c,2)}, v{vWr} offset:{u*WPER+32*c}")
                tr.append(f"ds_read_b64_tr_b16 {v(WF+4*c+2,2)}, v{vWr} offset:{u*WPER+32*c+8*160}")
        if "noprio" not in DBG: A(f"s_setprio {(3 if u % 2 == 0 else 1) if 'prioB' not in DBG else 1}")
        if "prioC" in DBG: A("s_setprio 3")
        A(mfma32(S[1], K0, Q0[1], "0"))
        A(rdK0(kofs))
        if beta:
            A(f"buffer_load_dwordx4 {v(ACT+4*((u+3)%4),4)}, v{vAct}, {W}, s{sActS} offen{SC1}")
        for x in g[0][:3]: A(x)
        if beta:
            A(f"s_add_u32 s{sActS}, s{sActS}, 4096")
        for x in tr[:3]: A(x)
        for x in g[0][3:]: A(x)
        A(mfma32(O[1], V1, P + 4))
        for x in rdV(u * KVSLOT): A(x)
        for x in g[1][:3]: A(x)
        for x in tr[3:6]: A(x)
        for x in g[1][3:]: A(x)
        if "prioC" in DBG: A("s_setprio 2")
        A(mfma32(S[1], K1, Q1[1]))
        A(rdK1(kofs))
        for x in g[2][:3]: A(x)
        for x in tr[6:10]: A(x)
        for x in g[2][3:]: A(x)
        A(f"s_waitcnt lgkmcnt({2 + (7 if beta else 0)})")
        A(mfma32(O[0], V0, P))
        def wm0(bg, bgp):
            if not beta:
                return f"s_add_u32 m0, s{bg}, {u*WPER}"
            if u < 2:
                return f"s_add_u32 m0, s{bgp}, {(u+2)*WPER}"
            return f"s_add_u32 m0, s{bg}, {(u-2)*WPER}"
        A(wm0(sM0Ag, sM0Agp))
        for x in g[3][:3]: A(x)
        A(f"buffer_load_dwordx4 v{vWA}, s[{SPA}:{SPA+3}], s{sWsA} offen lds")
        for x in g[3][3:]: A(x)
        A(f"s_add_u32 s{sWsA}, s{sWsA}, s{sStepA}")
        g = valu_groups(S[1])
        m16 = [mfma16(DACC + 4 * c, WF + 4 * c, ACT + 4 * u) for c in range(5)] if beta else []
        A("s_waitcnt lgkmcnt(0)")
        if "noprio" not in DBG: A(f"s_setprio {(2 if u % 2 == 0 else 0) if 'prioB' not in DBG else 0}")
        if "prioC" in DBG: A("s_setprio 1")
        A(mfma32(S[0], K0, Q0[0], "0"))
        for x in g[0][:3]: A(x)
        if beta: A(m16[0])
        for x in g[0][3:]: A(x)
        A(mfma32(O[0], V1, P + 4))
        for x in g[1][:3]: A(x)
        if beta: A(m16[1])
        for x in g[1][3:]: A(x)
        if "prioC" in DBG: A("s_setprio 0")
        A(mfma32(S[0], K1, Q1[0]))
        for x in g[2][:3]: A(x)
        if beta: A(m16[2])
        for x in g[2][3:]: A(x)
        A(mfma32(O[1], V0, P))
        if cls == "W":
            A(wm0(sM0Bg, sM0Bgp))
        elif u < 2:
            A(f"s_add_u32 m0, s{sKB0}, {(u+2)*KVSLOT}")
        else:
            A(f"s_add_u32 m0, s{sKB1}, {(u-2)*KVSLOT}")
        for x in g[3][:2]: A(x)
        if beta: A(m16[3])
        for x in g[3][2:3]: A(x)
        A(f"buffer_load_dwordx4 v{vPB}, s[{SPB}:{SPB+3}], s{sWsB} offen{SC1} lds")
        for x in g[3][3:]: A(x)
        A(f"s_add_u32 s{sWsB}, s{sWsB}, s{sStepB}")
        if beta: A(m16[4])
        if u == 2:
            A(f"v_add_u32 v{vK0}, s{sKd}, v{vK0}")
            A(f"v_add_u32 v{vK1}, s{sKd}, v{vK1}")

    def cond(val, body, wave0=False):
        if "nocond" in DBG and val not in (24,):
            return
        def b(lb):
            if wave0:
                A("s_cmp_eq_u32 s3, 0")
                A(f"s_cbranch_scc0 {lb}")
            body()
        A.rare([f"s_cmp_eq_u32 s{sP}, {val}"], b)

    def f2_issue():
        A(f"s_lshr_b32 s62, s{sTB64}, 1")
        A("s_lshl_b32 s62, s62, 6")
        A(f"s_add_u32 s62, s62, {F2_OFF}")
        A("v_and_b32 v56, 15, v1")
        A("v_lshlrev_b32 v56, 2, v56")
        A(f"buffer_load_dword v57, v56, {W}, s62 offen sc1")

    def f2_check():
        A(f"v_cmp_ne_u32 vcc, s{sNonce}, v57")
        A("s_nop 0")
        A("s_cmp_eq_u64 vcc, 0")

    def poll_f2():
        poll_pre(A, "f2", f2_issue, f2_check)

    def first_acts():
        for i in range(3):
            A(f"buffer_load_dwordx4 {v(ACT+4*i,4)}, v{vAct}, {W}, s{sActS} offen{SC1}")
            A(f"s_add_u32 s{sActS}, s{sActS}, 4096")

    def signal_f2():
        A(f"s_lshl_b32 s61, s{sTB}, 4")
        A(f"s_add_u32 s61, s61, s{sCG}")
        A("s_lshl_b32 s61, s61, 2")
        A(f"s_add_u32 s61, s61, {F2_OFF}")
        A(f"v_mov_b32 v2, s{sNonce}")
        A("v_mov_b32 v3, 0")
        A("s_mov_b64 exec, 1")
        A(f"buffer_store_dword v2, v3, {W}, s61 offen sc1")
        A("s_mov_b64 exec, -1")

    def switch_kind(cls):
        A(f"v_mov_b32 v{vWA}, v{vWAm}")
        for k in range(4):
            A(f"s_mov_b32 s{SPA+k}, s{SWO+k}")
        A(f"s_mul_i32 s{sWsA}, s{sParA}, {40*1280}")
        A(f"s_add_u32 s{sWsA}, s{sWsA}, s{sColb}")
        A(f"s_mov_b32 s{sStepA}, {80*1280}")
        if cls == "W":
            A(f"v_mov_b32 v{vPB}, v{vWBm}")
            for k in range(4):
                A(f"s_mov_b32 s{SPB+k}, s{SWO+k}")
            A(f"s_add_u32 s{sWsB}, s{sColb}, {40*1280}")
            A(f"s_mov_b32 s{sStepB}, {80*1280}")

    def iteration(lbl, beta, cls):
        A.label(lbl)
        for u in range(4):
            if beta and u == 2:
                cond(24, lambda: switch_kind(cls))
            period(u, beta, cls)
            bar = (u % 2 == 1)
            if "p2novm" not in DBG and (beta or bar):
                A(f"s_waitcnt vmcnt({7 if beta else 6})")
            if not beta and u == 1 and cls == "W":
                cond(PB - 4, poll_f2, wave0=True)
            if bar and "p2nobar" not in DBG:
                A("s_barrier")
            if not beta:
                if u == 1:
                    cond(PB - 4, first_acts)
                    if cls == "W":
                        cond(PB - 8, f2_issue, wave0=True)
                if u == 3 and cls == "W":
                    cond(0, signal_f2, wave0=True)
        A(f"s_add_u32 s{sP}, s{sP}, 4")
        A(f"s_mov_b32 s{sGp}, s{sG}")
        A(f"s_add_u32 s{sG}, s{sG}, {4*WPER}")
        A(f"s_cmp_eq_u32 s{sG}, {12*WPER}")
        A(f"s_cselect_b32 s{sG}, 0, s{sG}")
        A(f"s_add_u32 s{sM0Ag}, s{sM0A}, s{sG}")
        A(f"s_add_u32 s{sM0Agp}, s{sM0A}, s{sGp}")
        if cls == "W":
            A(f"s_add_u32 s{sM0Bg}, s{sM0B}, s{sG}")
            A(f"s_add_u32 s{sM0Bgp}, s{sM0B}, s{sGp}")
        else:
            A(f"s_sub_u32 s{sKB0}, s{sKB0}, s{sKd}")
            A(f"s_add_u32 s{sKB1}, s{sKB1}, s{sKd}")
        A(f"v_add_u32 v{vV}, s{sKd}, v{vV}")
        A(f"s_sub_u32 s{sKd}, 0, s{sKd}")
        if beta:
            A(f"s_sub_u32 s{sDG}, s{sG}, s{sGp}")
            A(f"v_add_u32 v{vWr}, s{sDG}, v{vWr}")

    def p2_loops(cls):
        A(f"s_mov_b32 s{sM0Ag}, s{sM0A}")
        A(f"s_mov_b32 s{sM0Agp}, s{sM0A}")
        if cls == "W":
            A(f"s_mov_b32 s{sM0Bg}, s{sM0B}")
            A(f"s_mov_b32 s{sM0Bgp}, s{sM0B}")
        else:
            A(f"s_mov_b32 s{sKB0}, s{sM0B}")
            A(f"s_add_u32 s{sKB1}, s{sM0B}, {4*KVSLOT}")
        iteration(f"L_alpha{cls}", False, cls)
        A(f"s_cmp_lt_u32 s{sP}, {PB}")
        A(f"s_cbranch_scc1 L_alpha{cls}")
        A(f"s_lshl_b32 s61, s{sStepA}, 1")
        A(f"s_sub_u32 s{sWsA}, s{sWsA}, s61")
        if cls == "W":
            A(f"s_lshl_b32 s61, s{sStepB}, 1")
            A(f"s_sub_u32 s{sWsB}, s{sWsB}, s61")
        iteration(f"L_beta{cls}", True, cls)
        A(f"s_cmp_lt_u32 s{sP}, 32")
        A(f"s_cbranch_scc1 L_beta{cls}")

    A("s_nop 7\ns_nop 7")
    A("s_cmp_lt_u32 s3, 2")
    A("s_cbranch_scc1 L_p2W")
    p2_loops("K")
    A("s_branch L_p2end")
    A.label("L_p2W")
    p2_loops("W")
    A.label("L_p2end")
    A("s_setprio 0")
    stamp(A, 7)
    A(f"v_cvt_pk_bf16_f32 v{P+7}, v{E+14}, v{E+15}")
    A(f"buffer_load_dwordx4 {v(ACT+12,4)}, v{vAct}, {W}, s{sActS} offen{SC1}")
    A(mfma32(O[1], V1, P + 4))
    A("s_nop 7\ns_nop 7")
    A("s_mul_i32 s61, s3, 3072")
    A(f"s_add_u32 s61, s61, {XCH}")
    A(f"v_add_u32 v2, s61, v{vL16p}")
    A(f"s_cmp_eq_u32 s{sKH}, 0")
    A("s_cbranch_scc1 L_x0")
    for i in range(3):
        A(f"ds_write_b128 v2, {v(O[0]+4*i,4)} offset:{1024*i}")
    A("s_waitcnt lgkmcnt(0)")
    for r in range(12):
        A(f"v_mov_b32 v{O[0]+r}, v{O[1]+r}")
    A("s_branch L_x1")
    A.label("L_x0")
    for i in range(3):
        A(f"ds_write_b128 v2, {v(O[1]+4*i,4)} offset:{1024*i}")
    A("s_waitcnt lgkmcnt(0)")
    A.label("L_x1")
    A("s_barrier")
    A("s_xor_b32 s61, s3, 4")
    A("s_mul_i32 s61, s61, 3072")
    A(f"s_add_u32 s61, s61, {XCH}")
    A(f"v_add_u32 v2, s61, v{vL16p}")
    for i in range(3):
        A(f"ds_read_b128 {v(64+4*i,4)}, v2 offset:{1024*i}")
    A("s_waitcnt lgkmcnt(0)")
    OO = O[0]
    A("s_mov_b64 s[100:101], -1")
    for r in range(12):
        A(f"v_add_f32 v{OO+r}, v{OO+r}, v{64+r}")
    A.label("L_norm")
    A(f"v_mov_b32 v80, v{OO+8}")
    A(f"v_mov_b32 v81, v{OO+8}")
    A("v_mov_b32 v82, 0")
    A("s_nop 1")
    A("v_permlane32_swap_b32 v80, v81")
    for r in range(12):
        A(f"v_fma_f32 v82, v{OO+r}, 0, v82")
    A(f"s_mov_b32 s61, {hx(f2u(2.0**-80))}")
    A(f"s_mov_b32 s62, {hx(f2u(2.0**100))}")
    A("v_add_f32 v82, v82, v81")
    A("v_cmp_nle_f32 vcc, s61, v82")
    A("v_cmp_nge_f32 s[62:63], s62, v82") if False else None
    A(f"v_mov_b32 v83, {hx(f2u(2.0**100))}")
    A("v_cmp_nle_f32 s[62:63], v82, v83")
    A("s_or_b64 vcc, vcc, s[62:63]")
    A("s_and_b64 vcc, vcc, s[100:101]")
    A("s_cmp_lg_u64 vcc, 0")
    A("s_cbranch_scc1 L_fallback")

    def fallback():
        A.label("L_fallback")
        A("s_mov_b64 s[100:101], 0")
        QA, QB = 56, 60
        lk1, lk2 = A.newlabel("L_fq"), A.newlabel("L_fq")
        A(f"s_cmp_eq_u32 s{sKH}, 0")
        A(f"s_cbranch_scc0 {lk1}")
        for r in range(4):
            A(f"v_mov_b32 v{QA+r}, v{Q0[0]+r}")
            A(f"v_mov_b32 v{QB+r}, v{Q1[0]+r}")
        A(f"s_branch {lk2}")
        A.label(lk1)
        for r in range(4):
            A(f"v_mov_b32 v{QA+r}, v{Q0[1]+r}")
            A(f"v_mov_b32 v{QB+r}, v{Q1[1]+r}")
        A.label(lk2)
        SKs = f"s[{SK}:{SK+3}]"
        vVa, vM = 96, 97
        A("v_lshrrev_b32 v98, 5, v1")
        A("v_mul_u32_u24 v98, 320, v98")
        A("v_and_b32 v99, 31, v1")
        A(f"v_lshl_add_u32 v{vVa}, v99, 4, v98")
        A(f"v_mov_b32 v{vM}, 0xff800000")
        A(f"s_mul_i32 s61, s{sHead}, 163840")
        A("s_mov_b32 s62, 0")
        A.label("L_fb1")
        A(f"buffer_load_dwordx4 {v(K0,4)}, v{vL16p}, {SKs}, s61 offen sc1")
        A(f"buffer_load_dwordx2 {v(K1,2)}, v{vT8p}, {SKs}, s61 offen offset:1024 sc1")
        A("s_waitcnt vmcnt(0)")
        A(mfma32(64, K0, QA, "0"))
        A(mfma32(64, K1, QB))
        A("s_nop 7\ns_nop 7")
        for r in range(0, 16, 2):
            A(f"v_max3_f32 v{vM}, v{vM}, v{64+r}, v{65+r}")
        A("s_add_u32 s61, s61, 2560")
        A("s_add_u32 s62, s62, 1")
        A("s_cmp_lt_u32 s62, 64")
        A("s_cbranch_scc1 L_fb1")
        A(f"v_mov_b32 v98, v{vM}")
        A(f"v_mov_b32 v99, v{vM}")
        A("s_nop 1")
        A("v_permlane32_swap_b32 v98, v99")
        A("s_nop 1")
        A("v_max3_f32 v98, v98, v99, v97")
        A("v_sub_f32 v98, 0, v98")
        A("v_and_b32 v99, 0xffff0000, v98")
        A("v_sub_f32 v98, v98, v99")
        A("v_and_b32 v100, 0xffff0000, v98")
        A("v_sub_f32 v98, v98, v100")
        A("v_lshrrev_b32 v99, 16, v99")
        A("v_or_b32 v99, v99, v100")
        A("v_cvt_pk_bf16_f32 v100, v98, 0")
        A("v_cmp_gt_u32 vcc, 32, v1")
        A("s_nop 1")
        A(f"v_cndmask_b32 v{QB+2}, 0, v99, vcc")
        A(f"v_cndmask_b32 v{QB+3}, 0, v100, vcc")
        for r in range(16):
            A(f"v_mov_b32 v{O[1]+r}, 0")
        A(f"s_mul_i32 s61, s{sHead}, 163840")
        A("s_mov_b32 s62, 0")
        A.label("L_fb2")
        A(f"buffer_load_dwordx4 {v(K0,4)}, v{vL16p}, {SKs}, s61 offen sc1")
        A(f"buffer_load_dwordx2 {v(K1,2)}, v{vT8p}, {SKs}, s61 offen offset:1024 sc1")
        A(f"s_mov_b64 exec, s[{sVm}:{sVm+1}]")
        A(f"buffer_load_dwordx4 {v(V0,4)}, v{vVa}, {SKs}, s61 offen offset:1280 sc1")
        A(f"buffer_load_dwordx4 {v(V1,4)}, v{vVa}, {SKs}, s61 offen offset:1920 sc1")
        A("s_mov_b64 exec, -1")
        A("s_waitcnt vmcnt(0)")
        A(mfma32(64, K0, QA, "0"))
        A(mfma32(64, K1, QB))
        A("s_nop 7\ns_nop 7")
        for r in range(16):
            A(f"v_exp_f32 v{100+r}, v{64+r}") if 100 + r < 112 else A(f"v_exp_f32 v{80+r-12}, v{64+r}")
        A("s_nop 0")
        ex = [100 + r if r < 12 else 80 + r - 12 for r in range(16)]
        for p_ in range(8):
            A(f"v_cvt_pk_bf16_f32 v{P+p_}, v{ex[2*p_]}, v{ex[2*p_+1]}")
        A("s_nop 1")
        A(mfma32(O[1], V0, P))
        A(mfma32(O[1], V1, P + 4))
        A("s_add_u32 s61, s61, 2560")
        A("s_add_u32 s62, s62, 1")
        A("s_cmp_lt_u32 s62, 64")
        A("s_cbranch_scc1 L_fb2")
        A("s_nop 7\ns_nop 7")
        for r in range(12):
            A(f"v_mov_b32 v{OO+r}, v{O[1]+r}")
        A("s_branch L_norm")
    A.defer(fallback)
    A("v_rcp_f32 v81, v81")
    A("s_nop 0")
    A(f"v_mul_f32 v81, v81, v{vGt}")
    for r in range(12):
        A(f"v_mul_f32 v{OO+r}, v81, v{OO+r}")
    for p in range(6):
        A(f"v_cvt_pk_bf16_f32 v{84+p}, v{OO+2*p}, v{OO+2*p+1}")
    A("v_mov_b32 v90, 0\nv_mov_b32 v91, 0")
    sTq = 61
    A(f"s_add_u32 s{sTq}, s{sQT}, s{sKH}")
    A(f"s_mul_i32 s62, s{sTq}, 48")
    A(f"s_add_u32 s63, s62, s{sHead}")
    A("s_lshl_b32 s63, s63, 10")
    A(f"s_add_u32 s63, s63, {O_OFF}")
    A(f"buffer_store_dwordx4 {v(84,4)}, v{vL16p}, {W}, s63 offen{SC1}")
    A(f"s_lshr_b32 s63, s{sHead}, 1")
    A("s_add_u32 s63, s63, 32")
    A("s_add_u32 s63, s63, s62")
    A("s_lshl_b32 s63, s63, 10")
    A(f"s_and_b32 s62, s{sHead}, 1")
    A("s_lshl_b32 s62, s62, 9")
    A("s_add_u32 s63, s63, s62")
    A(f"s_add_u32 s63, s63, {O_OFF}")
    A("s_mov_b32 exec_hi, 0")
    A(f"buffer_store_dwordx4 {v(88,4)}, v{vL16p}, {W}, s63 offen{SC1}")
    A("s_mov_b32 exec_hi, -1")
    sF3 = 35
    A(f"s_lshl_b32 s{sF3}, s{sTq}, 5")
    A(f"s_add_u32 s{sF3}, s{sF3}, s{sHead}")
    A(f"s_lshl_b32 s{sF3}, s{sF3}, 2")
    A(f"s_add_u32 s{sF3}, s{sF3}, {F3_OFF}")
    def consume(qs, actreg):
        n = len(qs)

        def rd(i):
            base = WF2[i % 2]
            o = (qs[i] % 12) * WPER
            out = []
            for c in range(5):
                for hf in range(2):
                    oo = o + 32 * c + 1280 * hf
                    a, oo = (vW0, oo) if oo < 65536 else (vW1, oo - 61440)
                    out.append(f"ds_read_b64_tr_b16 {v(base+4*c+2*hf,2)}, v{a} offset:{oo}")
            return out
        for x in rd(0): A(x)
        for i in range(n):
            if i + 1 < n:
                for x in rd(i + 1): A(x)
                A("s_waitcnt lgkmcnt(10)")
            else:
                A("s_waitcnt lgkmcnt(0)")
            vm = actreg(i)
            if vm[1] is not None:
                A(f"s_waitcnt vmcnt({vm[1]})")
            for c in range(5):
                A(mfma16(DACC + 4 * c, WF2[i % 2] + 4 * c, vm[0]))

    for q in (30, 31):
        A(f"s_add_u32 m0, s{sM0A}, {(q%12)*WPER}")
        A("s_nop 0")
        A(f"buffer_load_dwordx4 v{vWA}, s[{SPA}:{SPA+3}], s{sWsA} offen lds")
        A(f"s_add_u32 s{sWsA}, s{sWsA}, s{sStepA}")
    l, l2 = A.newlabel("L_w31"), A.newlabel("L_w32")
    A(f"v_mov_b32 v2, s{sNonce}")
    A("v_mov_b32 v3, 0")
    A(f"s_cmp_eq_u32 s{sIsW}, 0")
    A(f"s_cbranch_scc1 {l}")
    for q in (30, 31):
        A(f"s_add_u32 m0, s{sM0B}, {(q%12)*WPER}")
        A("s_nop 0")
        A(f"buffer_load_dwordx4 v{vPB}, s[{SPB}:{SPB+3}], s{sWsB} offen lds")
        A(f"s_add_u32 s{sWsB}, s{sWsB}, s{sStepB}")
    A("s_waitcnt vmcnt(6)")
    A(f"s_branch {l2}")
    A.label(l)
    A("s_waitcnt vmcnt(4)")
    A.label(l2)
    consume(list(range(NB, 24)), lambda i: (ACT + 4 * i, None))
    l, l2 = A.newlabel("L_w33"), A.newlabel("L_w34")
    A(f"s_cmp_eq_u32 s{sIsW}, 0")
    A(f"s_cbranch_scc1 {l}")
    A("s_waitcnt vmcnt(4)")
    A(f"s_branch {l2}")
    A.label(l)
    A("s_waitcnt vmcnt(2)")
    A.label(l2)
    A("s_mov_b64 exec, 1")
    A(f"buffer_store_dword v2, v3, {W}, s{sF3} offen sc1")
    A("s_mov_b64 exec, -1")
    stamp(A, 8)

    A("s_waitcnt vmcnt(1)")
    A(f"v_sub_f32 v56, 1.0, v{vG2}")
    A("s_nop 7")
    for r in range(20):
        A(f"v_mul_f32 v{DACC+r}, v56, v{DACC+r}")
    A("s_barrier")
    for i in range(4):
        q = 32 + i
        A(f"s_mul_i32 s61, s{sParA}, {80*1280}")
        A(f"s_add_u32 s61, s61, {i*160*1280}")
        A(f"s_add_u32 s61, s61, s{sColb}")
        A(f"s_add_u32 m0, s{sM0A}, {(q%12)*WPER}")
        A("s_nop 0")
        A(f"buffer_load_dwordx4 v{vWAr}, s[{SWO}:{SWO+3}], s61 offen lds")
    l = A.newlabel("L_rb")
    A(f"s_cmp_eq_u32 s{sIsW}, 0")
    A(f"s_cbranch_scc1 {l}")
    for i in range(4):
        q = 32 + i
        A(f"s_add_u32 s61, s{sColb}, {(80 + i*160)*1280}")
        A(f"s_add_u32 m0, s{sM0B}, {(q%12)*WPER}")
        A("s_nop 0")
        A(f"buffer_load_dwordx4 v{vWBr}, s[{SWO}:{SWO+3}], s61 offen lds")
    A.label(l)
    l = A.newlabel("L_f3")
    A("s_cmp_eq_u32 s3, 0")
    A(f"s_cbranch_scc0 {l}")
    A("v_lshlrev_b32 v2, 2, v1")
    A(f"s_lshl_b32 s63, s{sTB64}, 8")
    A(f"s_add_u32 s63, s63, {F3_OFF}")
    A(f"s_mov_b32 s{sSpin}, 0")
    A("s_waitcnt vmcnt(0)")
    lp, ld = A.newlabel("L_f3p"), A.newlabel("L_f3d")
    A(f"buffer_load_dword v3, v2, {W}, s63 offen sc1")
    A("s_sleep 3")
    A(f"buffer_load_dword v56, v2, {W}, s63 offen sc1")
    A("s_sleep 3")
    A.label(lp)
    A(f"buffer_load_dword v57, v2, {W}, s63 offen sc1")
    A("s_waitcnt vmcnt(2)")
    A(f"v_cmp_ne_u32 vcc, s{sNonce}, v3")
    A("s_nop 0")
    A("s_cmp_eq_u64 vcc, 0")
    A(f"s_cbranch_scc1 {ld}")
    A(f"buffer_load_dword v3, v2, {W}, s63 offen sc1")
    A("s_waitcnt vmcnt(2)")
    A(f"v_cmp_ne_u32 vcc, s{sNonce}, v56")
    A("s_nop 0")
    A("s_cmp_eq_u64 vcc, 0")
    A(f"s_cbranch_scc1 {ld}")
    A(f"buffer_load_dword v56, v2, {W}, s63 offen sc1")
    A("s_waitcnt vmcnt(2)")
    A(f"v_cmp_ne_u32 vcc, s{sNonce}, v57")
    A("s_nop 0")
    A("s_cmp_eq_u64 vcc, 0")
    A(f"s_cbranch_scc1 {ld}")
    A(f"s_add_u32 s{sSpin}, s{sSpin}, 1")
    A(f"s_cmp_lt_u32 s{sSpin}, {SPIN_MAX}")
    A(f"s_cbranch_scc1 {lp}")
    A.label(ld)
    A.label(l)
    A("s_barrier")
    stamp(A, 9)
    A(f"s_mul_i32 s61, s{sTile3}, {48*1024}")
    A(f"s_lshl_b32 s62, s{sPar}, 11")
    A("s_add_u32 s61, s61, s62")
    A(f"s_add_u32 s61, s61, {O_OFF}")
    for i in range(12):
        A(f"buffer_load_dwordx4 {v(ACTX+4*i,4)}, v{vActReal}, {W}, s61 offen{SC1}")
        A("s_add_u32 s61, s61, 4096")
    consume(list(range(24, 32)), lambda i: (ACTX + 4 * i, 11 - i))
    A("s_waitcnt vmcnt(0)")
    A("s_barrier")
    consume(list(range(32, 36)), lambda i: (ACTX + 4 * (8 + i), None))
    stamp(A, 10)
    A("s_nop 7")
    A(f"s_mul_i32 s61, s{sT16}, 5120")
    A(f"s_add_u32 s61, s61, {XCH}")
    A(f"v_add_u32 v56, s61, v{vL16p}")
    A(f"s_cmp_eq_u32 s{sPar}, 0")
    A("s_cbranch_scc1 L_red")
    for t in range(5):
        A(f"ds_write_b128 v56, {v(DACC+4*t,4)} offset:{1024*t}")
    A("s_waitcnt lgkmcnt(0)")
    A("s_barrier")
    prof_end(A)
    A("s_endpgm")
    A.label("L_red")
    A("s_barrier")
    for t in range(5):
        A(f"ds_read_b128 {v(32+4*t,4)}, v56 offset:{1024*t}")
    A("s_waitcnt lgkmcnt(0)")
    for r in range(20):
        A(f"v_add_f32 v{DACC+r}, v{DACC+r}, v{32+r}")
    A("v_and_b32 v57, 15, v1")
    A("v_mul_u32_u24 v57, 1280, v57")
    A("v_lshrrev_b32 v2, 4, v1")
    A("v_lshl_add_u32 v57, v2, 3, v57")
    A(f"s_lshl_b32 s61, s{sTB64}, 6")
    A(f"s_lshl_b32 s62, s{sT16}, 4")
    A("s_add_u32 s61, s61, s62")
    A("s_mul_i32 s61, s61, 1280")
    A(f"s_add_u32 s61, s61, s{sColb}")
    for t in range(5):
        A(f"v_cvt_pk_bf16_f32 v{64+2*t}, v{DACC+4*t}, v{DACC+4*t+1}")
        A(f"v_cvt_pk_bf16_f32 v{64+2*t+1}, v{DACC+4*t+2}, v{DACC+4*t+3}")
        A(f"buffer_store_dwordx2 {v(64+2*t,2)}, v57, s[{SOUT}:{SOUT+3}], s61 offen offset:{32*t}{OUTF}")
    prof_end(A)
    A("s_endpgm")
    return A.text()


HEADER = """; gated mix of MHA block and GEGLU FFN -- single persistent kernel, 256 workgroups x 512 threads
"""


def build():
    out = HEADER
    out += f"; @launch grid=(256,1,1) block=(512,1,1) lds={LDS_SZ}\n"
    out += '.amdgcn_target "amdgcn-amd-amdhsa--gfx950"\n.text\n'
    out += f".globl {KNAME}\n" + gen()
    out += kernel_desc(KNAME, 256)
    return out


if __name__ == "__main__":
    if "--prof" in sys.argv:
        PROF = True
        sys.argv.remove("--prof")
    dst = sys.argv[1] if len(sys.argv) > 1 else f"cdna_kernels/{NAME}.s"
    open(dst, "w").write(build())
    print("wrote", dst)
```

```python
import sys, os, struct
from asmlib import *

NAME = "gated_mix__mha_block__glu_gated_geglu__prompt"
KNAME = NAME + "_kernel"

QF_OFF = 0
QF_SZ = 32 * 64 * 1280
KV_OFF = QF_OFF + QF_SZ
KV_SZ = 32 * 64 * 2560
H_OFF = KV_OFF + KV_SZ
H_SZ = 64 * 96 * 1024
O_OFF = H_OFF + H_SZ
O_SZ = 64 * 40 * 1024
G_OFF = O_OFF + O_SZ
G_SZ = 8192
F1_OFF = G_OFF + G_SZ
F2_OFF = F1_OFF + 1024
F3_OFF = F2_OFF + 1024
F_END = F3_OFF + 8192
PROF_OFF = F_END
PROF_SZ = 256 * 8 * 64
WS_USED = PROF_OFF + PROF_SZ
PROF = False
DBG = set(os.environ.get("DBG", "").split(","))
SC1 = " sc1"
OUTF = " sc1" if "outsc1" in DBG else (" nt" if "outnt" in DBG else (" sc0 sc1" if "outsc01" in DBG else ""))

LOG2E = 1.4426950408889634
QSCALE = LOG2E * (20 ** -0.5)
SPIN_MAX = 1 << 14


def f2u(x):
    return struct.unpack("<I", struct.pack("<f", x))[0]


def hx(x):
    return hex(x & 0xffffffff)


P_AX, P_WQKV, P_WO, P_BX, P_WG, P_WU, P_WD, P_GW = 36, 38, 40, 42, 44, 46, 48, 50
P_OUT, P_WS, P_DBG = 52, 54, 34
SX, SWQ, SWG, SWU, SW1, SWS, SDB = 4, 8, 12, 16, 20, 24, 28
SWD, SWO, SOUT, SPA, SPB = 4, 8, 12, 16, 20
SK = 40
sTB, sCG, sTT, sWC, sNonce = 56, 57, 58, 59, 60
T0, T1, T2, T3 = 61, 62, 63, 64
sSpin = 75
NSTAMP = 12
STAMP0 = 76

XRING = 0
WRING = 49152
WSLOT = 24640
UPOFF = 12288 + 32
KVB = 122880
KVSLOT = 5120
XCH = KVB + 2 * KVSLOT
LDS_SZ = 163840
WPER = 10240
PB, NB = 12, 20

vLane = 1
vXo, vWoQ, vWo0, vWo1, vWo2 = 4, 5, 6, 7, 14
vXa, vWaQ, vWaG = 8, 12, 15
XA, XB = 32, 40
ACC = 64
WA, WB = 112, 136
vN = 62
K0, K1, V0, V1 = 16, 20, 24, 28
P = 48
S = [64, 80]
E = 96
DACC = 112
WF = 132
Q0 = [160, 168]
Q1 = [164, 172]
vGt, vL16p, vT8p, vK0, vK1, vV = 176, 177, 178, 179, 180, 181
vActReal, vAct, vWr, vWA, vPB, vG2 = 182, 183, 184, 185, 186, 187
vWAm, vWBm, vWAr, vWBr, vKVo, vW0, vW1 = 188, 189, 190, 191, 192, 193, 194
vWB = 195
ACT = 200
O = [216, 232]
ACTX = 64
WF2 = [132, 16]
XCL = [16, 20, 24, 28, 48, 52, 160, 164, 168, 172] + list(range(200, 256, 4))
NXC = 0 if 'noxc' in DBG else 6


def XC(k, j):
    return XCL[4 * k + j]


CLK = "s_memtime" if "clk" in DBG else "s_memrealtime"


def stamp(A, idx, alt=False):
    if alt == "st":
        if "stst" not in DBG:
            return
    else:
        if ("gust" in DBG or "stst" in DBG) and idx in (8, 9, 10) and not alt:
            return
        if "gust" not in DBG and alt:
            return
    if PROF:
        A(f"{CLK} s[{STAMP0+2*idx}:{STAMP0+2*idx+1}]")


def prof_end(A):
    if not PROF:
        return
    A(f"{CLK} s[{STAMP0+2*(NSTAMP-1)}:{STAMP0+2*(NSTAMP-1)+1}]")
    A("s_waitcnt lgkmcnt(0)")
    A("s_lshl_b32 s61, s2, 3")
    A("s_add_u32 s61, s61, s3")
    A("s_lshl_b32 s61, s61, 6")
    A(f"s_add_u32 s61, s61, {PROF_OFF}")
    for i in range(NSTAMP):
        A(f"v_mov_b32 v{4+i}, s{STAMP0+2*i}")
    A("v_mov_b32 v0, 0")
    A("s_mov_b64 exec, 1")
    for i in range(3):
        A(f"buffer_store_dwordx4 v[{4+4*i}:{7+4*i}], v0, s[{SWS}:{SWS+3}], s61 offen offset:{16*i}")


def spin(A, name, issue, check):
    l0, l1 = A.newlabel("L_sp" + name), A.newlabel("L_spd" + name)
    A(f"s_mov_b32 s{sSpin}, 0")
    A.label(l0)
    issue()
    A("s_waitcnt vmcnt(0)")
    check()
    A(f"s_cbranch_scc1 {l1}")
    A(f"s_add_u32 s{sSpin}, s{sSpin}, 1")
    A(f"s_cmp_ge_u32 s{sSpin}, {SPIN_MAX}")
    A(f"s_cbranch_scc1 {l1}")
    A("s_sleep 2")
    A(f"s_branch {l0}")
    A.label(l1)


def poll_pre(A, name, issue, check):
    l = A.newlabel("L_pp" + name)
    check()
    A(f"s_cbranch_scc1 {l}")
    spin(A, name, issue, check)
    A.label(l)


W = f"s[{SWS}:{SWS+3}]"


def gen():
    A = Asm("k_")
    A(f".p2align 8\n.type {KNAME},@function")
    A.label(KNAME)
    stamp(A, 0)
    A("s_cmp_ge_u32 s2, 256")
    A("s_cbranch_scc0 L_go")
    A("s_endpgm")
    A.label("L_go")
    A("s_load_dwordx16 s[36:51], s[0:1], 0")
    A("s_load_dwordx2 s[52:53], s[0:1], 64")
    A("s_load_dwordx2 s[34:35], s[0:1], 72")
    A("s_load_dwordx2 s[54:55], s[0:1], 80")
    A("v_lshrrev_b32 v2, 6, v0")
    A("v_and_b32 v1, 63, v0")
    A("s_nop 0")
    A("v_readfirstlane_b32 s3, v2")
    A("s_and_b32 s61, s2, 7")
    A("s_lshr_b32 s62, s2, 3")
    A(f"s_lshr_b32 s{sTB}, s61, 1")
    A(f"s_lshl_b32 s{sTB}, s{sTB}, 2")
    A("s_and_b32 s63, s62, 3")
    A(f"s_add_u32 s{sTB}, s{sTB}, s63")
    A(f"s_and_b32 s{sCG}, s61, 1")
    A(f"s_lshl_b32 s{sCG}, s{sCG}, 3")
    A("s_lshr_b32 s63, s62, 2")
    A(f"s_add_u32 s{sCG}, s{sCG}, s63")
    A(f"s_and_b32 s{sTT}, s3, 3")
    A(f"s_lshr_b32 s{sWC}, s3, 2")
    A("v_lshrrev_b32 v16, 3, v1")
    A("s_lshl_b32 s61, s3, 3")
    A("v_add_u32 v16, s61, v16")
    A("v_lshrrev_b32 v17, 1, v16")
    A("v_and_b32 v17, 7, v17")
    A("v_and_b32 v18, 7, v1")
    A("v_xor_b32 v17, v17, v18")
    A("v_lshlrev_b32 v17, 4, v17")
    A("v_mul_u32_u24 v16, 1280, v16")
    A(f"v_add_u32 v{vXo}, v16, v17")
    A("v_lshrrev_b32 v16, 4, v1")
    A("v_lshlrev_b32 v17, 2, v16")
    A("v_and_b32 v18, 15, v1")
    A("v_xor_b32 v17, v17, v18")
    A("v_lshlrev_b32 v17, 4, v17")
    A("s_lshl_b32 s61, s3, 2")
    A("v_add_u32 v16, s61, v16")
    A("v_mul_u32_u24 v16, 3840, v16")
    A(f"v_add_u32 v{vWoQ}, v16, v17")
    sXs, sXs2, sWs, sWs2, sGs, sGx = 32, 33, 66, 67, 72, 73
    sM0x, sM0q, sM0g0, sM0g1, sM0g2 = 74, 65, 100, 101, 71
    sStage, sSlot = 69, 70
    sXslot, sWslot, sDX, sDW = 44, 45, 46, 47
    A(f"s_mul_i32 s{sXs}, s{sTB}, {128*1280}")
    A(f"s_mul_i32 s61, s{sCG}, 240")
    A(f"s_sub_u32 s62, s{sCG}, 11")
    A("s_lshl_b32 s62, s62, 8")
    A("s_add_u32 s62, s62, 2560")
    A(f"s_cmp_lt_u32 s{sCG}, 11")
    A(f"s_cselect_b32 s{sWs}, s61, s62")
    A(f"s_lshl_b32 s{sM0x}, s3, 10")
    A(f"s_add_u32 s{sM0q}, s{sM0x}, {WRING}")
    A("v_lshlrev_b32 v2, 2, v1")
    A("s_waitcnt lgkmcnt(0)")
    stamp(A, 8, "st")
    srd(A, SX, P_AX, 2048 * 1280)
    srd(A, SWQ, P_WQKV, 640 * 3840)

    def dma_groups(g):
        slot = g % 3
        k = g if g < 10 else g - 10
        out = []
        xs = slot * 16384
        ws_ = slot * WSLOT
        for half in range(2):
            if g >= 10 and k < NXC:
                continue
            out.append([f"s_add_u32 m0, s{sM0x}, {xs + 8192*half}",
                        f"s_add_u32 s{sXs2}, s{sXs}, {k*128 + 81920*half}",
                        f"buffer_load_dwordx4 v{vXo}, s[{SX}:{SX+3}], s{sXs2} offen lds"])
        if g < 10:
            for half in range(2):
                out.append([f"s_add_u32 m0, s{sM0q}, {ws_ + 8192*half}",
                            f"s_add_u32 s{sWs2}, s{sWs}, {(k*64 + 32*half)*3840}",
                            f"buffer_load_dwordx4 v{vWoQ}, s[{SWQ}:{SWQ+3}], s{sWs2} offen lds"])
        else:
            for (sm, vo, sr) in ((sM0g0, vWo0, SWG), (sM0g1, vWo1, SW1), (sM0g2, vWo2, SWU)):
                out.append([f"s_add_u32 m0, s{sm}, {ws_}",
                            f"s_add_u32 s{sWs2}, s{sGs}, {k*64*3072}",
                            f"buffer_load_dwordx4 v{vo}, s[{sr}:{sr+3}], s{sWs2} offen lds"])
        if "p1nodma" in DBG and g >= 3:
            return [[] for _ in out]
        return out

    srd(A, SDB, P_DBG, 256)
    A("s_or_b32 s61, s2, s3")
    A("s_cmp_eq_u32 s61, 0")

    def pub(lb):
        A("s_memrealtime s[62:63]")
        A("s_waitcnt lgkmcnt(0)")
        A("s_or_b32 s62, s62, 1")
        A("v_mov_b32 v16, s62")
        A("v_mov_b32 v17, 0")
        A("s_mov_b64 exec, 1")
        A(f"buffer_store_dword v16, v17, s[{SDB}:{SDB+3}], 0 offen sc1")
        A("s_mov_b64 exec, -1")
    A.rare([], pub)
    def prefetch():
        A("s_mov_b32 s60, s4\ns_mov_b32 s61, s5")
        A(f"s_mov_b32 s62, {2048*1280}")
        A("s_mov_b32 s64, 10240")
        for (wmin, lo, hi, sz, ch) in ((2, 8, 9, 640*3840, 9600), (4, 12, 13, 640*3072, 7680), (5, 16, 17, 640*3072, 7680),
                                       (6, 48, 49, 1536*1280, 7680), (7, 40, 41, 640*1280, 3200)):
            A(f"s_cmp_ge_u32 s3, {wmin}")
            A(f"s_cselect_b32 s60, s{lo}, s60")
            A(f"s_cselect_b32 s61, s{hi}, s61")
            A(f"s_cselect_b32 s62, {sz}, s62")
            A(f"s_cselect_b32 s64, {ch}, s64")
        A("s_and_b32 s61, s61, 0xffff")
        A("s_mov_b32 s63, 0x20000")
        A("s_cmp_lt_u32 s3, 4")
        A("s_cselect_b32 s75, 1, 0")
        A("s_and_b32 s75, s75, s3")
        A("s_lshl_b32 s75, s75, 13")
        A("v_lshlrev_b32 v3, 7, v1")
        A("v_add_u32 v3, s75, v3")
        A("v_cmp_gt_u32 vcc, s64, v3")
        A("s_mul_i32 s64, s64, s2")
        A("s_mov_b64 exec, vcc")
        A("buffer_load_dword v59, v3, s[60:63], s64 offen")
        A("s_mov_b64 exec, -1")
    def issue_stage(st):
        for grp in dma_groups(st):
            for x in grp:
                A(x)
    if "pffirst" in DBG:
        srd(A, SWG, P_WG, 640 * 3072)
        srd(A, SWU, P_WU, 640 * 3072)
        prefetch()
    issue_stage(0)
    if "st012" in DBG:
        issue_stage(1)
        issue_stage(2)
    SGW = 68
    srd(A, SGW, P_GW, 1280)
    vGX, vGW = 100, 106
    sTOK = 33
    sGoff = 0
    A(f"s_lshl_b32 s{sTOK}, s{sTB}, 7")
    A(f"s_lshl_b32 s61, s{sCG}, 3")
    A(f"s_add_u32 s{sTOK}, s{sTOK}, s61")
    A(f"s_add_u32 s{sTOK}, s{sTOK}, s3")
    A(f"s_lshl_b32 s{sGoff}, s{sTOK}, 2")
    A(f"s_add_u32 s{sGoff}, s{sGoff}, {G_OFF}")
    srd(A, SWG, P_WG, 640 * 3072)
    srd(A, SWU, P_WU, 640 * 3072)
    srd(A, SWS, P_WS, WS_USED)
    A("s_cmp_lt_u32 s3, 4")
    for k in range(4):
        A(f"s_cselect_b32 s{SW1+k}, s{SWG+k}, s{SWU+k}")
    A(f"s_mul_i32 s75, s{sTOK}, 1280")
    if "st012" not in DBG:
        issue_stage(1)
        issue_stage(2)
    for m in range(5):
        A(f"buffer_load_dword v{vGX+m}, v2, s[{SX}:{SX+3}], s75 offen offset:{256*m}")
    for m in range(5):
        A(f"buffer_load_dword v{vGW+m}, v2, s[{SGW}:{SGW+3}], 0 offen offset:{256*m}")
    NPF = 0 if "nopf" in DBG else 1

    if NPF and "pflate" not in DBG and "pffirst" not in DBG:
        prefetch()

    A("v_and_b32 v16, 31, v1")
    A("v_lshrrev_b32 v17, 5, v1")
    A("v_lshrrev_b32 v18, 1, v16")
    A("v_and_b32 v18, 7, v18")
    A(f"s_lshl_b32 s61, s{sTT}, 5")
    A("v_add_u32 v19, s61, v16")
    A("v_lshlrev_b32 v19, 7, v19")
    for j in range(4):
        A(f"v_add_u32 v20, {2*j}, v17")
        A("v_xor_b32 v20, v20, v18")
        A("v_lshlrev_b32 v20, 4, v20")
        A(f"v_add_u32 v{vXa+j}, v19, v20")
    A("v_and_b32 v18, 15, v1")
    A("v_lshrrev_b32 v19, 2, v18")
    A("v_lshrrev_b32 v20, 4, v1")
    A(f"s_cmp_lt_u32 s{sCG}, 11")
    A("s_cselect_b32 s61, 8, 0")
    A("s_sub_u32 s61, 128, s61")
    A(f"s_mul_i32 s61, s61, s{sWC}")
    A("v_lshrrev_b32 v21, 1, v20")
    A("v_lshl_add_u32 v21, v21, 3, v19")
    A("v_lshlrev_b32 v27, 8, v21")
    A(f"v_add_u32 v27, {WRING}, v27")
    A("v_and_b32 v22, 1, v20")
    A("v_lshlrev_b32 v22, 5, v22")
    A("v_and_b32 v23, 3, v1")
    A("v_lshl_add_u32 v22, v23, 3, v22")
    A("v_add_u32 v22, s61, v22")
    A("v_and_b32 v24, 3, v19")
    A("v_lshlrev_b32 v24, 2, v24")
    for t in range(2):
        A(f"v_add_u32 v25, {64*t}, v22")
        A("v_lshrrev_b32 v26, 4, v25")
        A("v_xor_b32 v26, v26, v24")
        A("v_lshlrev_b32 v26, 4, v26")
        A("v_and_b32 v25, 15, v25")
        A(f"v_add3_u32 v{vWaQ+t}, v27, v26, v25")
    A("v_mul_u32_u24 v21, 192, v21")
    A("v_and_b32 v22, 1, v20")
    A(f"v_mul_u32_u24 v22, {UPOFF}, v22")
    A("v_lshlrev_b32 v23, 3, v23")
    A("v_add3_u32 v21, v21, v22, v23")
    A(f"s_mul_i32 s61, s{sWC}, 96")
    A(f"s_add_u32 s61, s61, {WRING}")
    A(f"v_add_u32 v{vWaG}, s61, v21")
    A("s_add_u32 s61, s3, 8")
    A("s_sub_u32 s62, s3, 4")
    A("s_cmp_lt_u32 s3, 4")
    A("s_cselect_b32 s63, s61, s62")
    A(f"s_cselect_b32 s64, 0, {UPOFF}")
    A(f"s_lshl_b32 s{sM0g1}, s63, 10")
    A(f"s_add_u32 s{sM0g1}, s{sM0g1}, s64")
    A(f"s_add_u32 s{sM0g1}, s{sM0g1}, {WRING}")
    A("s_add_u32 s64, s3, 4")
    A(f"s_lshl_b32 s{sM0g2}, s64, 10")
    A(f"s_add_u32 s{sM0g2}, s{sM0g2}, {WRING + UPOFF}")
    A(f"s_lshl_b32 s{sM0g0}, s3, 10")
    A(f"s_add_u32 s{sM0g0}, s{sM0g0}, {WRING}")
    for (vd, sj) in ((vWo0, 3), (vWo1, 63), (vWo2, 64)):
        A(f"s_lshl_b32 s61, s{sj}, 6")
        A("v_add_u32 v21, s61, v1")
        magic_div(A, 22, 21, 12, 768, 62)
        A("v_mul_u32_u24 v23, 12, v22")
        A("v_sub_u32 v23, v21, v23")
        A("v_lshlrev_b32 v23, 4, v23")
        A("v_mul_u32_u24 v22, 3072, v22")
        A(f"v_add_u32 v{vd}, v22, v23")
    A(f"s_mul_i32 s{sGs}, s{sCG}, 192")

    A(f"v_lshlrev_b32 v{vL16p}, 4, v1")
    A(f"v_and_b32 v16, 31, v1")
    A(f"v_lshlrev_b32 v{vT8p}, 3, v16")
    A(f"v_lshlrev_b32 v{vGt}, 2, v16")
    A(f"s_mul_i32 s61, s{sWC}, 2560")
    A(f"s_add_u32 s61, s61, {KVB + 4*KVSLOT}")
    A(f"v_add_u32 v{vK0}, s61, v{vL16p}")
    A(f"v_add_u32 v{vK1}, s61, v{vT8p}")
    A(f"v_add_u32 v{vK1}, 1024, v{vK1}")
    A("v_lshrrev_b32 v17, 5, v1")
    A("v_mul_u32_u24 v17, 320, v17")
    A("v_lshlrev_b32 v18, 4, v16")
    A("v_add3_u32 v17, v17, v18, s61")
    A(f"v_add_u32 v{vV}, 1280, v17")
    A("s_sub_i32 s61, s3, 2")
    A("s_max_i32 s61, s61, 0")
    A("s_min_i32 s61, s61, 4")
    A("s_lshl_b32 s62, s61, 10")
    A(f"v_add_u32 v{vKVo}, s62, v{vL16p}")
    A(f"v_cmp_le_u32 vcc, 2560, v{vKVo}")
    A(f"v_add_u32 v17, {32*2560-2560}, v{vKVo}")
    A("s_nop 0")
    A(f"v_cndmask_b32 v{vKVo}, v{vKVo}, v17, vcc")
    A("v_lshrrev_b32 v17, 4, v1")
    A("v_lshrrev_b32 v18, 1, v17")
    A("v_lshlrev_b32 v18, 10, v18")
    A("v_and_b32 v19, 1, v17")
    A("v_lshlrev_b32 v19, 9, v19")
    A("v_and_b32 v20, 15, v1")
    A(f"s_and_b32 s61, s{sTT}, 1")
    A("s_lshl_b32 s61, s61, 4")
    A("v_add_u32 v20, s61, v20")
    A("v_lshlrev_b32 v21, 4, v20")
    A(f"v_add3_u32 v{vActReal}, v18, v19, v21")
    A(f"v_mov_b32 v{vAct}, v{vActReal}")
    A(f"v_lshlrev_b32 v{vG2}, 2, v20")
    A("v_lshrrev_b32 v18, 1, v17")
    A("v_lshlrev_b32 v18, 4, v18")
    A("v_and_b32 v19, 1, v17")
    A("v_lshl_add_u32 v18, v19, 2, v18")
    A("v_and_b32 v19, 15, v1")
    A("v_lshrrev_b32 v19, 2, v19")
    A("v_add_u32 v18, v18, v19")
    A("v_mul_u32_u24 v18, 160, v18")
    A("v_and_b32 v19, 3, v1")
    A("v_lshl_add_u32 v18, v19, 3, v18")
    A(f"s_mul_i32 s61, s{sWC}, 5120")
    A(f"v_add_u32 v{vWr}, s61, v18")
    A(f"v_mov_b32 v{vW0}, v{vWr}")
    A(f"v_add_u32 v{vW1}, 61440, v{vWr}")
    A("s_cmp_ge_u32 s3, 5")
    A("s_cselect_b32 s63, 5, 0")
    A("s_sub_u32 s63, s3, s63")
    A("s_add_u32 s64, s3, 3")
    A("s_min_u32 s64, s64, 4")
    for (sj, vh, vm, vr) in ((63, vWA, vWAm, vWAr), (64, vWB, vWBm, vWBr)):
        A(f"s_lshl_b32 s61, s{sj}, 6")
        A("v_add_u32 v22, s61, v1")
        magic_div(A, 23, 22, 10, 320, 62)
        A("v_mul_u32_u24 v24, 10, v23")
        A("v_sub_u32 v24, v22, v24")
        A("v_lshlrev_b32 v24, 4, v24")
        A("v_mul_u32_u24 v25, 1280, v23")
        A(f"v_add_u32 v{vh}, v25, v24")
        A("v_lshrrev_b32 v25, 4, v23")
        A("v_mul_u32_u24 v25, 20, v25")
        A("v_and_b32 v26, 15, v23")
        A("v_add_u32 v25, v25, v26")
        A("v_mul_u32_u24 v25, 1280, v25")
        A(f"v_add_u32 v{vm}, v25, v24")
        A("v_lshrrev_b32 v25, 4, v23")
        A("v_lshlrev_b32 v25, 2, v25")
        A("v_bfe_u32 v26, v23, 2, 1")
        A("v_lshl_add_u32 v25, v26, 1, v25")
        A("v_bfe_u32 v26, v23, 3, 1")
        A("v_add_u32 v25, v25, v26")
        A("v_mul_u32_u24 v25, 20, v25")
        A("v_and_b32 v26, 3, v23")
        A("v_add3_u32 v25, v25, v26, 16")
        A("v_mul_u32_u24 v25, 1280, v25")
        A(f"v_add_u32 v{vr}, v25, v24")
    A("s_cmp_lt_u32 s3, 2")
    A("s_cselect_b64 vcc, -1, 0")
    A("s_nop 1")
    A(f"v_cndmask_b32 v{vPB}, v{vKVo}, v{vWB}, vcc")
    ONE2 = 0x3f803f80

    def p2_inits(part):
        if part == 0:
            A("v_and_b32 v56, 31, v1")
            A("v_cmp_eq_u32 vcc, 20, v56")
            A(f"v_mov_b32 v57, {hx(ONE2)}")
            A("s_nop 0")
            A("v_cndmask_b32 v58, 0, v57, vcc")
            for r in range(8):
                A(f"v_mov_b32 v{V0+r}, v58")
            A(f"v_mov_b32 v{K1+2}, {hx(ONE2)}")
            A(f"v_mov_b32 v{K1+3}, 0x3f80")
            for r in range(8):
                A(f"v_mov_b32 v{P+r}, 0")
        else:
            for r in range(32):
                A(f"v_mov_b32 v{O[0]+r}, 0")


    def gate_compute():
        A("v_mov_b32 v56, 0")
        for m in range(5):
            A(f"v_dot2_f32_bf16 v56, v{vGX+m}, v{vGW+m}, v56")
        A("s_nop 3")
        for sh in (1, 2, 4, 8):
            A(f"v_add_f32_dpp v56, v56, v56 row_shr:{sh} row_mask:0xf bank_mask:0xf bound_ctrl:0")
            A("s_nop 1")
        A("v_add_f32_dpp v56, v56, v56 row_bcast:15 row_mask:0xa bank_mask:0xf")
        A("s_nop 1")
        A("v_add_f32_dpp v56, v56, v56 row_bcast:31 row_mask:0xc bank_mask:0xf")
        A("s_nop 1")
        A(f"v_mul_f32 v56, {hx(f2u(-LOG2E))}, v56")
        A("v_exp_f32 v56, v56")
        A("s_nop 0")
        A("v_add_f32 v56, 1.0, v56")
        A("v_rcp_f32 v63, v56")

    if NPF and "pflate" in DBG:
        prefetch()
    stamp(A, 9, "st")
    NPY = 0 if "pffirst" in DBG else NPF
    A(f"s_waitcnt vmcnt({8+10+NPY})")
    stamp(A, 10, "st")
    A("s_barrier")
    stamp(A, 1)

    def xoff(g):
        return (g % 3) * 16384

    def woff(g):
        return (g % 3) * WSLOT

    def xreg(setX, g, half, jj):
        k = g if g < 10 else g - 10
        return XC(k, 2 * half + jj) if k < NXC else setX + 4 * jj

    def qkv_reads(setX, setW, g, half):
        r = []
        for jj in range(2):
            j = 2 * half + jj
            r.append(f"ds_read_b128 {v(xreg(setX, g, half, jj),4)}, v{vXa+j} offset:{xoff(g)}")
            for t in range(2):
                d = setW + 8 * jj + 4 * t
                o = woff(g) + j * 4096
                r.append(f"ds_read_b64_tr_b16 {v(d,2)}, v{vWaQ+t} offset:{o}")
                r.append(f"ds_read_b64_tr_b16 {v(d+2,2)}, v{vWaQ+t} offset:{o+1024}")
        return r

    def qkv_mfmas(setX, setW, g, half, vtype):
        m = []
        for jj in range(2):
            for t in range(2):
                a, b = setW + 8 * jj + 4 * t, xreg(setX, g, half, jj)
                if vtype:
                    a, b = b, a
                m.append(mfma32(ACC + 16 * t, a, b, "0" if (g == 0 and half == 0 and jj == 0) else None))
        return m

    def gu_reads(setX, setW, g, half):
        r = []
        for jj in range(2):
            j = 2 * half + jj
            if g - 10 >= NXC:
                r.append(f"ds_read_b128 {v(setX+4*jj,4)}, v{vXa+j} offset:{xoff(g)}")
            for t in range(3):
                d = setW + 12 * jj + 4 * t
                o = woff(g) + j * 3072 + 32 * t
                a = vWaG
                assert o + 768 < 65536
                r.append(f"ds_read_b64_tr_b16 {v(d,2)}, v{a} offset:{o}")
                r.append(f"ds_read_b64_tr_b16 {v(d+2,2)}, v{a} offset:{o+768}")
        return r

    def gu_mfmas(setX, setW, g, half):
        m = []
        for jj in range(2):
            for t in range(3):
                m.append(mfma32(ACC + 16 * t, setW + 12 * jj + 4 * t, xreg(setX, g, half, jj), "0" if (g == 10 and half == 0 and jj == 0) else None))
        return m

    def emit_half(mm, rr, dd, fill=()):
        if "p1noreads" in DBG: rr = []
        if "p1nomfma" in DBG: mm = ["s_nop 0"] * len(mm)
        n = len(mm)
        ng = n - 1
        if 'nghalf' in DBG: ng = max(1, n // 2)
        if 'ngm2' in DBG: ng = max(1, n - 2)
        if 'ngall' in DBG: ng = n
        per = (len(rr) + ng - 1) // ng
        pos = {}
        for i, grp in enumerate(dd):
            p_ = min(n - 1, (i * n) // max(1, len(dd)) + (0 if len(dd) > 2 else 1))
            pos.setdefault(p_, []).append(grp)
        load = [0] * n
        ri = 0
        for i in range(n):
            load[i] += len(rr[ri:ri + per]); ri += per
            load[i] += sum(len(g_) for g_ in pos.get(i, []))
        total = sum(load) + sum(len(g_) for g_ in fill)
        target = total / n
        fpos = [[] for _ in range(n)]
        gi = 0
        for g_ in fill:
            while gi < n - 1 and load[gi] >= target:
                gi += 1
            fpos[gi].append(g_); load[gi] += len(g_)
        ri = 0
        for i, m in enumerate(mm):
            A(m)
            for r in rr[ri:ri + per]:
                A(r)
            ri += per
            for grp in pos.get(i, []):
                for x in grp:
                    A(x)
            for grp in fpos[i]:
                for x in grp:
                    A(x)
        for r in rr[ri:]:
            A(r)

    def stage(g, reads, mfmas, wait, pre=None, post=None, fill0=(), fill1=()):
        d2 = dma_groups(g + 2)[2:] if (3 <= g + 2 <= 19 and g + 2 != 12) else []
        d3 = dma_groups(g + 3)[:2] if g + 3 <= 19 else []
        if "dmaearly" in DBG:
            d2 = []
            d3 = dma_groups(g + 3) if g + 3 <= 19 else []
        if g + 3 == 12:
            d3 = dma_groups(12)
        A("s_waitcnt lgkmcnt(0)")
        if "p1prio" in DBG: A("s_setprio 0")
        if "p1prio2" in DBG: A("s_setprio 1")
        emit_half(mfmas(XA, WA, g, 0), reads(XB, WB, g, 1), d2, fill0)
        if pre: pre()
        if g == 12: stamp(A, 8, True)
        if g == 18: stamp(A, 9, True)
        wait()
        A("s_barrier")
        if g == 18: stamp(A, 10, True)
        nr = reads(XA, WA, g + 1, 0) if g not in (9, 19) else []
        if "p1prio" in DBG: A("s_setprio 1")
        if "p1prio2" in DBG: A("s_setprio 0")
        emit_half(mfmas(XB, WB, g, 1), nr, d3, fill1)
        if post: post()

    def qkv_phase(vtype):
        for r in qkv_reads(XA, WA, 0, 0):
            A(r)
        for g in range(10):
            n = len(dma_groups(g + 2)) + (10 + NPY if g < 2 else 0)
            f0 = [capture(A, gate_compute)] if g == 3 else ()
            stage(g, qkv_reads, lambda x, w, g_, h_: qkv_mfmas(x, w, g_, h_, vtype), lambda n=n: A(f"s_waitcnt vmcnt({n}) lgkmcnt(0)"), fill0=atomic_groups(f0[0]) if f0 else ())

    sCls = 35
    A(f"s_cmp_ge_u32 s{sCG}, 11")
    A("s_cbranch_scc1 L_vtype")
    qkv_phase(False)
    stamp(A, 2)
    A("s_waitcnt lgkmcnt(0)")
    A("s_nop 7\ns_nop 7")
    PK = 32
    sU, sTile, sD = 65, 66, 67
    A(f"s_mul_i32 s{sU}, s{sCG}, 6")
    A(f"s_mul_i32 s61, s{sWC}, 3")
    A(f"s_add_u32 s{sU}, s{sU}, s61")
    A(f"s_lshl_b32 s{sTile}, s{sTB}, 2")
    A(f"s_add_u32 s{sTile}, s{sTile}, s{sTT}")
    A(f"s_add_u32 s61, s{sU}, 1")
    A("s_cmp_lt_u32 s61, 32")
    A(f"s_cselect_b32 s62, {hx(f2u(QSCALE))}, 1.0")
    A(f"s_add_u32 s61, s{sU}, 2")
    A("s_cmp_lt_u32 s61, 32")
    A(f"s_cselect_b32 s63, {hx(f2u(QSCALE))}, 1.0")
    for r in range(32):
        G = r // 4
        A(f"v_mul_f32 v{ACC+r}, s{62 if G < 5 else 63}, v{ACC+r}")
    for p in range(16):
        A(f"v_cvt_pk_bf16_f32 v{PK+p}, v{ACC+2*p}, v{ACC+2*p+1}")
    vL16x = 58
    A(f"v_xor_b32 v{vL16x}, 512, v{vL16p}")

    def dest(a):
        A(f"s_add_u32 s61, s{sU}, {a}")
        A("s_lshl_b32 s62, s61, 6")
        A(f"s_add_u32 s62, s62, s{sTile}")
        A("s_mul_i32 s63, s62, 1280")
        A(f"s_sub_u32 s62, s62, {32*64}")
        A("s_mul_i32 s62, s62, 2560")
        A(f"s_add_u32 s62, s62, {KV_OFF}")
        A("s_cmp_lt_u32 s61, 32")
        A(f"s_cselect_b32 s{sD}, s63, s62")
    dest(0)
    A(f"buffer_store_dwordx4 {v(PK,4)}, v{vL16p}, {W}, s{sD} offen{SC1}")
    A("s_mov_b32 exec_hi, 0")
    A(f"buffer_store_dwordx2 {v(PK+4,2)}, v{vT8p}, {W}, s{sD} offen offset:1024{SC1}")
    A("s_mov_b32 exec_hi, -1")
    A(f"s_mov_b32 s{sCls}, 2")
    A(f"s_cmp_ge_u32 s{sU}, 63")
    A("s_cbranch_scc1 L_qkv_done")
    A(f"s_mov_b32 s{sCls}, 0")
    dest(1)
    A("s_mov_b32 exec_hi, 0")
    A(f"buffer_store_dwordx4 {v(PK+6,4)}, v{vL16x}, {W}, s{sD} offen{SC1}")
    A("s_mov_b32 exec_lo, 0\ns_mov_b32 exec_hi, -1")
    A(f"buffer_store_dwordx4 {v(PK+4,4)}, v{vL16x}, {W}, s{sD} offen{SC1}")
    A(f"buffer_store_dwordx2 {v(PK+8,2)}, v{vT8p}, {W}, s{sD} offen offset:1024{SC1}")
    A("s_mov_b32 exec_lo, -1")
    dest(2)
    A(f"buffer_store_dwordx4 {v(PK+10,4)}, v{vL16p}, {W}, s{sD} offen{SC1}")
    A("s_mov_b32 exec_hi, 0")
    A(f"buffer_store_dwordx2 {v(PK+14,2)}, v{vT8p}, {W}, s{sD} offen offset:1024{SC1}")
    A("s_mov_b32 exec_hi, -1")
    A("s_branch L_qkv_done")

    A.label("L_vtype")
    qkv_phase(True)
    stamp(A, 2)
    A("s_waitcnt lgkmcnt(0)")
    A("s_nop 7\ns_nop 7")
    A(f"s_mov_b32 s{sCls}, 1")
    A(f"s_lshl_b32 s{sTile}, s{sTB}, 2")
    A(f"s_add_u32 s{sTile}, s{sTile}, s{sTT}")
    A(f"s_mul_i32 s{sD}, s{sTile}, 2560")
    A(f"s_add_u32 s{sD}, s{sD}, {KV_OFF + 1280}")
    A(f"s_sub_u32 s61, s{sCG}, 11")
    A("s_lshl_b32 s61, s61, 7")
    A(f"s_lshl_b32 s62, s{sWC}, 6")
    A("s_add_u32 s61, s61, s62")
    A("v_and_b32 v56, 31, v1")
    A("v_lshrrev_b32 v57, 5, v1")
    A("v_mul_u32_u24 v57, 320, v57")
    for t in range(2):
        A("v_add_u32 v58, s61, v56")
        if t:
            A("v_add_u32 v58, 32, v58")
        magic_div(A, 59, 58, 20, 640, 62)
        A("v_mul_u32_u24 v60, 20, v59")
        A("v_sub_u32 v60, v58, v60")
        A("v_lshlrev_b32 v60, 4, v60")
        A("s_mov_b32 s62, 163840")
        A("v_mul_lo_u32 v59, v59, s62")
        A(f"v_add3_u32 v{2+t}, v59, v60, v57")
    for t in range(2):
        for hf in range(2):
            base = ACC + 16 * t + 8 * hf
            dst = 32 + 8 * t + 4 * hf
            for p in range(4):
                A(f"v_cvt_pk_bf16_f32 v{dst+p}, v{base+2*p}, v{base+2*p+1}")
            A(f"buffer_store_dwordx4 {v(dst,4)}, v{2+t}, {W}, s{sD} offen offset:{640*hf}{SC1}")
    A.label("L_qkv_done")
    A("v_mov_b32 v3, 0")
    A("s_mov_b32 exec_lo, 0")
    A("s_mov_b32 exec_hi, 0x80000000")
    A(f"buffer_store_dword v63, v3, {W}, s{sGoff} offen{SC1}")
    A("s_mov_b64 exec, -1")
    stamp(A, 3)

    sHead, sQT, sKVs, sM0kv = 48, 49, 51, 65
    A("v_mov_b32 v3, 0")
    A(f"buffer_load_dword v{vN}, v3, s[{SDB}:{SDB+3}], 0 offen sc1")

    def gu_setup():
        A("s_mov_b32 s0, s48")
        A("s_mov_b32 s1, s49")
        A("s_and_b32 s61, s2, 7")
        A("s_lshr_b32 s62, s2, 3")
        A("s_lshl_b32 s61, s61, 2")
        A(f"s_lshr_b32 s{sHead}, s62, 3")
        A(f"s_add_u32 s{sHead}, s{sHead}, s61")
        A("s_and_b32 s62, s62, 7")
        A("s_lshl_b32 s62, s62, 3")
        A(f"s_lshl_b32 s61, s{sTT}, 1")
        A(f"s_add_u32 s{sQT}, s62, s61")
        A("s_mov_b32 s38, s40")
        A("s_mov_b32 s39, s41")
        srd(A, SK, P_WS, KV_SZ, add=KV_OFF)
        A("s_sub_i32 s61, s3, 2")
        A("s_max_i32 s61, s61, 0")
        A("s_min_i32 s61, s61, 4")
        A("s_lshl_b32 s62, s61, 10")
        A(f"s_add_u32 s{sM0kv}, s62, {KVB}")
        A(f"s_mul_i32 s{sKVs}, s{sHead}, 163840")

    def kv_dma(tile):
        A(f"s_add_u32 m0, s{sM0kv}, {((tile+4)%8)*KVSLOT}")
        A("s_nop 0")
        A(f"buffer_load_dwordx4 v{vKVo}, s[{SK}:{SK+3}], s{sKVs} offen{SC1} lds")
        A(f"s_add_u32 s{sKVs}, s{sKVs}, 2560")

    def p2_prologue():
        for a in range(2):
            A(f"s_lshl_b32 s61, s{sHead}, 6")
            A(f"s_add_u32 s61, s61, s{sQT}")
            A(f"s_add_u32 s61, s61, {a}")
            A("s_mul_i32 s61, s61, 1280")
            A(f"buffer_load_dwordx4 {v(Q0[a],4)}, v{vL16p}, {W}, s61 offen{SC1}")
            A(f"buffer_load_dwordx2 {v(Q1[a],2)}, v{vT8p}, {W}, s61 offen offset:1024{SC1}")
        A(f"s_add_u32 s61, s{sQT}, s{sWC}")
        A("s_lshl_b32 s61, s61, 7")
        A(f"s_add_u32 s61, s61, {G_OFF}")
        A(f"buffer_load_dword v{vGt}, v{vGt}, {W}, s61 offen{SC1}")
        for t in range(6):
            kv_dma(t)
        A(f"s_lshl_b32 s61, s{sTile3}, 7")
        A(f"s_add_u32 s61, s61, {G_OFF}")
        A(f"buffer_load_dword v{vG2}, v{vG2}, {W}, s61 offen{SC1}")

    def nonce_get():
        lk = A.newlabel("L_nk")
        A(f"v_readfirstlane_b32 s{sNonce}, v{vN}")
        A("s_nop 3")
        A(f"s_cmp_lg_u32 s{sNonce}, 0")
        A(f"s_cbranch_scc1 {lk}")

        def issue():
            A(f"buffer_load_dword v{vN}, v3, s[{SDB}:{SDB+3}], 0 offen sc1")

        def check():
            A(f"v_readfirstlane_b32 s{sNonce}, v{vN}")
            A("s_nop 3")
            A(f"s_cmp_lg_u32 s{sNonce}, 0")
        spin(A, "n", issue, check)
        A.label(lk)

    def f1_issue():
        A(f"s_mov_b32 s62, {F1_OFF}")
        A(f"buffer_load_dwordx4 v[56:59], v{vL16p}, {W}, s62 offen sc1")

    def f1_check():
        A(f"v_cmp_ne_u32 vcc, s{sNonce}, v56")
        A(f"v_cmp_ne_u32 s[62:63], s{sNonce}, v57")
        A("s_or_b64 vcc, vcc, s[62:63]")
        A(f"v_cmp_ne_u32 s[62:63], s{sNonce}, v58")
        A("s_or_b64 vcc, vcc, s[62:63]")
        A(f"v_cmp_ne_u32 s[62:63], s{sNonce}, v59")
        A("s_or_b64 vcc, vcc, s[62:63]")
        A("s_cmp_eq_u64 vcc, 0")

    sTB64, sCB, sT16, sPar, sTile3 = 44, 45, sTT, sWC, 32
    sKH = sWC
    sIsW = 38
    sM0A, sM0B, sWsA, sWsB, sStepA, sStepB = 33, 66, 67, 69, 74, 70
    sActS, sColb, sParA = 71, 72, 73
    sP, sG, sGp, sKd, sRrg, sHH = 64, 46, 47, 36, 37, 34
    sOffB = [52, 53, 54, 55]
    sVm = 0

    def p2_scal1():
        A("s_and_b32 s61, s2, 7")
        A("s_lshr_b32 s62, s2, 3")
        A(f"s_lshr_b32 s{sTB64}, s61, 1")
        A(f"s_lshl_b32 s{sTB64}, s{sTB64}, 3")
        A("s_and_b32 s63, s62, 7")
        A(f"s_add_u32 s{sTB64}, s{sTB64}, s63")
        A(f"s_and_b32 s{sCB}, s61, 1")
        A(f"s_lshl_b32 s{sCB}, s{sCB}, 2")
        A("s_lshr_b32 s63, s62, 3")
        A(f"s_add_u32 s{sCB}, s{sCB}, s63")
        A(f"s_lshl_b32 s{sTile3}, s{sTB64}, 1")
        A(f"s_lshr_b32 s61, s{sT16}, 1")
        A(f"s_add_u32 s{sTile3}, s{sTile3}, s61")
        srd(A, SWD, 0, 1536 * 1280)
        srd(A, SWO, 38, 640 * 1280)
        srd(A, SOUT, P_OUT, 2048 * 1280)
        for k in range(4):
            A(f"s_mov_b32 s{SPA+k}, s{SWD+k}")
        A("s_cmp_lt_u32 s3, 2")
        for k in range(4):
            A(f"s_cselect_b32 s{SPB+k}, s{SWD+k}, s{SK+k}")
        A(f"s_cselect_b32 s{sIsW}, 1, 0")

    def p2_scal2():
        A(f"s_mul_i32 s{sColb}, s{sCB}, 160")
        A("s_cmp_ge_u32 s3, 5")
        A(f"s_cselect_b32 s{sParA}, 1, 0")
        A(f"s_mul_i32 s61, s{sParA}, 5")
        A("s_sub_u32 s61, s3, s61")
        A(f"s_mul_i32 s{sM0A}, s{sParA}, 5120")
        A("s_lshl_b32 s61, s61, 10")
        A(f"s_add_u32 s{sM0A}, s{sM0A}, s61")
        A(f"s_mul_i32 s{sWsA}, s{sParA}, {32*1280}")
        A(f"s_add_u32 s{sWsA}, s{sWsA}, s{sColb}")
        A(f"s_mov_b32 s{sStepA}, {64*1280}")
        A(f"s_mul_i32 s{sActS}, s{sTile3}, {96*1024}")
        A(f"s_lshl_b32 s61, s{sPar}, 11")
        A(f"s_add_u32 s{sActS}, s{sActS}, s61")
        A(f"s_add_u32 s{sActS}, s{sActS}, {H_OFF}")
        A(f"s_mov_b32 s{sVm}, 0xfffff")
        A(f"s_mov_b32 s{sVm+1}, 0xfffff")
        A(f"s_mov_b32 s{sG}, 0")
        A(f"s_mov_b32 s{sGp}, 0")
        A(f"s_mov_b32 s{sRrg}, 0")
        A(f"s_mov_b32 s{sHH}, 0")
        A(f"s_mov_b32 s{sKd}, {hx(-4*KVSLOT)}")

    def p2_scal3():
        A("s_add_u32 s61, s3, 3")
        A("s_min_u32 s61, s61, 4")
        A("s_lshl_b32 s61, s61, 10")
        A("s_add_u32 s61, s61, 5120")
        A("s_cmp_lt_u32 s3, 2")
        A(f"s_cselect_b32 s{sM0B}, s61, s{sM0kv}")
        A(f"s_add_u32 s61, s{sColb}, {32*1280}")
        A("s_cmp_lt_u32 s3, 2")
        A(f"s_cselect_b32 s{sWsB}, s61, s{sKVs}")
        A(f"s_mov_b32 s61, {64*1280}")
        A("s_cmp_lt_u32 s3, 2")
        A(f"s_cselect_b32 s{sStepB}, s61, 2560")
        A(f"s_mov_b32 s{sP}, 0")
        if "outwarm" in DBG:
            A("v_and_b32 v255, 15, v1")
            A("v_mul_u32_u24 v255, 1280, v255")
            A(f"s_lshl_b32 s61, s{sTB64}, 6")
            A(f"s_lshl_b32 s62, s{sT16}, 4")
            A("s_add_u32 s61, s61, s62")
            A("s_mul_i32 s61, s61, 1280")
            A(f"s_mul_i32 s62, s{sCB}, 160")
            A("s_add_u32 s61, s61, s62")
            A(f"buffer_load_dword v255, v255, s[{SOUT}:{SOUT+3}], s61 offen")

    def gu_wait(g):
        def w():
            if g in (10, 11):
                nb = len(dma_groups(g + 2))
                lE, lc1, lc2 = [A.newlabel("L_gw") for _ in range(3)]
                A(f"s_cmp_eq_u32 s{sCls}, 0")

                def body(lb):
                    A(f"s_cmp_eq_u32 s{sCls}, 1")
                    A(f"s_cbranch_scc0 {lc2}")
                    A(f"s_waitcnt vmcnt({nb+6})")
                    A(f"s_branch {lE}")
                    A.label(lc2)
                    A(f"s_waitcnt vmcnt({nb+4})")
                    A(f"s_branch {lE}")
                A.rare([], body, branch="s_cbranch_scc0")
                A(f"s_waitcnt vmcnt({nb+9})")
                A.label(lE)
                A("s_waitcnt lgkmcnt(0)")
            elif g <= 17:
                A(f"s_waitcnt vmcnt({len(dma_groups(g + 2))}) lgkmcnt(0)")
            elif g == 18:
                A("s_waitcnt vmcnt(0) lgkmcnt(0)")

                def body(lb):
                    poll_pre(A, "f1", f1_issue, f1_check)
                A.rare(["s_cmp_eq_u32 s3, 0"], body)
            else:
                A("s_waitcnt lgkmcnt(0)")
        return w

    def sig_f1():
        def body(lb):
            A("v_mov_b32 v3, 0")
            nonce_get()
            A(f"s_lshl_b32 s61, s{sTB}, 4")
            A(f"s_add_u32 s61, s61, s{sCG}")
            A("s_lshl_b32 s61, s61, 2")
            A(f"s_add_u32 s61, s61, {F1_OFF}")
            A(f"v_mov_b32 v2, s{sNonce}")
            A("s_mov_b64 exec, 1")
            A(f"buffer_store_dword v2, v3, {W}, s61 offen sc1")
            A("s_mov_b64 exec, -1")
        A.rare(["s_cmp_eq_u32 s3, 0"], body)

    def f1_pre():
        A.rare(["s_cmp_eq_u32 s3, 0"], lambda lb: f1_issue())

    for r in gu_reads(XA, WA, 10, 0):
        A(r)
    def F(*fns):
        out = []
        for fn in fns:
            out += atomic_groups(capture(A, fn))
        return out
    fills = {
        (13, 0): F(gu_setup),
        (16, 0): F(lambda: p2_inits(0)),
        (16, 1): F(lambda: p2_inits(1)),
        (17, 1): F(p2_scal1),
        (18, 0): F(p2_scal2),
        (18, 1): F(p2_prologue),
        (19, 0): F(p2_scal3),
    }
    for g in range(10, 20):
        post = {12: sig_f1, 17: f1_pre}.get(g)
        stage(g, gu_reads, gu_mfmas, gu_wait(g), post=post, fill0=fills.get((g, 0), ()), fill1=fills.get((g, 1), ()))
    stamp(A, 4)
    A("s_waitcnt lgkmcnt(0)")
    A("s_nop 7")
    A("s_nop 7")
    ca = -2.0 * LOG2E * (2.0 / 3.141592653589793) ** 0.5
    cb = ca * 0.044715
    sTile, sD = 100, 101
    A(f"s_mov_b32 s61, {hx(f2u(ca))}")
    A(f"s_mov_b32 s62, {hx(f2u(cb))}")
    A(f"s_lshl_b32 s{sTile}, s{sTB}, 2")
    A(f"s_add_u32 s{sTile}, s{sTile}, s{sTT}")
    A(f"s_mul_i32 s{sD}, s{sTile}, 96")
    A(f"s_mul_i32 s63, s{sCG}, 6")
    A(f"s_add_u32 s{sD}, s{sD}, s63")
    A(f"s_mul_i32 s63, s{sWC}, 3")
    A(f"s_add_u32 s{sD}, s{sD}, s63")
    A(f"s_lshl_b32 s{sD}, s{sD}, 10")
    A(f"s_add_u32 s{sD}, s{sD}, {H_OFF}")
    A("v_mov_b32 v61, s61")
    for t in range(3):
        g0 = ACC + 16 * t
        u0 = g0 + 8
        T = 32
        for j in range(8):
            A(f"v_mul_f32 v{T+j}, v{g0+j}, v{g0+j}")
        for j in range(8):
            A(f"v_fma_f32 v{T+j}, v{T+j}, s62, v61")
        for j in range(8):
            A(f"v_mul_f32 v{T+j}, v{T+j}, v{g0+j}")
        for j in range(8):
            A(f"v_exp_f32 v{T+j}, v{T+j}")
        for j in range(8):
            A(f"v_mul_f32 v{u0+j}, v{g0+j}, v{u0+j}")
        for j in range(8):
            A(f"v_add_f32 v{T+j}, 1.0, v{T+j}")
        for j in range(8):
            A(f"v_rcp_f32 v{T+j}, v{T+j}")
        A("s_nop 0")
        for j in range(8):
            A(f"v_mul_f32 v{u0+j}, v{u0+j}, v{T+j}")
        dst = 40 + 4 * t if t < 2 else 56
        for p in range(4):
            A(f"v_cvt_pk_bf16_f32 v{dst+p}, v{u0+2*p}, v{u0+2*p+1}")
        A(f"buffer_store_dwordx4 {v(dst,4)}, v{vL16p}, {W}, s{sD} offen offset:{1024*t}{SC1}")
    stamp(A, 5)

    A("v_mov_b32 v3, 0")
    nonce_get()
    for r in range(20):
        A(f"v_mov_b32 v{DACC+r}, 0")
    A(f"v_mov_b32 v{E+14}, 0")
    A(f"v_mov_b32 v{E+15}, 0")
    A("s_waitcnt vmcnt(3)")
    A("v_cmp_gt_u32 vcc, 32, v1")
    A("s_nop 1")
    for a in range(2):
        A(f"v_cndmask_b32 v{Q1[a]}, 0, v{Q1[a]}, vcc")
        A(f"v_cndmask_b32 v{Q1[a]+1}, 0, v{Q1[a]+1}, vcc")
        A(f"v_mov_b32 v{Q1[a]+2}, 0")
        A(f"v_mov_b32 v{Q1[a]+3}, 0")
    A("s_barrier")
    stamp(A, 6)

    def rdK0(o): return f"ds_read_b128 {v(K0,4)}, v{vK0} offset:{o}"
    def rdK1(o): return f"ds_read_b64 {v(K1,2)}, v{vK1} offset:{o}"
    def rdV(o):
        if "p2noexec" in DBG:
            return [f"ds_read_b128 {v(V0,4)}, v{vV} offset:{o}", f"ds_read_b128 {v(V1,4)}, v{vV} offset:{o+640}"]
        return [f"s_mov_b64 exec, s[{sVm}:{sVm+1}]",
                f"ds_read_b128 {v(V0,4)}, v{vV} offset:{o}",
                f"ds_read_b128 {v(V1,4)}, v{vV} offset:{o+640}",
                "s_mov_b64 exec, -1"]

    A(rdK0(0)); A(rdK1(0))
    A("s_waitcnt lgkmcnt(0)")
    A(mfma32(S[0], K0, Q0[0], "0"))
    A(mfma32(S[0], K1, Q1[0]))

    def valu_groups(cur):
        vl = []
        for i in range(8):
            vl.append(f"v_exp_f32 v{E+2*i}, v{cur+2*i}")
            vl.append(f"v_exp_f32 v{E+2*i+1}, v{cur+2*i+1}")
            j = (i - 1) % 8
            vl.append(f"v_cvt_pk_bf16_f32 v{P+j}, v{E+2*j}, v{E+2*j+1}")
        return [vl[0:6], vl[6:12], vl[12:18], vl[18:24]]

    sM0Ag, sM0Agp = 68, 50
    sM0Bg, sM0Bgp = 52, 53
    sKB0, sKB1 = 52, 53
    sDG = 54

    def period(u, beta, cls):
        A0 = A
        if "p2nobeta" in DBG:
            beta = False if True else beta
        def A_(x):
            if "p2nolds" in DBG and (x.startswith("ds_read") or x.startswith("s_waitcnt lgkmcnt") or x.startswith("s_mov_b64 exec")):
                return
            if "p2nomfma" in DBG and x.startswith("v_mfma"):
                return
            if "p2novm" in DBG and (x.startswith("buffer_load") or x.startswith("s_add_u32 m0") or x.startswith("s_mov_b32 m0") or x.startswith(f"s_add_u32 s{sWsA},") or x.startswith(f"s_add_u32 s{sWsB},") or x.startswith(f"s_add_u32 s{sActS},")):
                return
            A0(x)
        return period_(u, beta, cls, A_)

    def period_(u, beta, cls, A):
        kofs = (u + 1) * KVSLOT if u < 3 else 0
        g = valu_groups(S[0])
        tr = []
        if beta:
            for c in range(5):
                tr.append(f"ds_read_b64_tr_b16 {v(WF+4*c,2)}, v{vWr} offset:{u*WPER+32*c}")
                tr.append(f"ds_read_b64_tr_b16 {v(WF+4*c+2,2)}, v{vWr} offset:{u*WPER+32*c+8*160}")
        if "noprio" not in DBG: A(f"s_setprio {(3 if u % 2 == 0 else 1) if 'prioB' not in DBG else 1}")
        if "prioC" in DBG: A("s_setprio 3")
        A(mfma32(S[1], K0, Q0[1], "0"))
        A(rdK0(kofs))
        if beta:
            A(f"buffer_load_dwordx4 {v(ACT+4*((u+3)%4),4)}, v{vAct}, {W}, s{sActS} offen{SC1}")
        for x in g[0][:3]: A(x)
        if beta:
            A(f"s_add_u32 s{sActS}, s{sActS}, 4096")
        for x in tr[:3]: A(x)
        for x in g[0][3:]: A(x)
        A(mfma32(O[1], V1, P + 4))
        for x in rdV(u * KVSLOT): A(x)
        for x in g[1][:3]: A(x)
        for x in tr[3:6]: A(x)
        for x in g[1][3:]: A(x)
        if "prioC" in DBG: A("s_setprio 2")
        A(mfma32(S[1], K1, Q1[1]))
        A(rdK1(kofs))
        for x in g[2][:3]: A(x)
        for x in tr[6:10]: A(x)
        for x in g[2][3:]: A(x)
        A(f"s_waitcnt lgkmcnt({2 + (7 if beta else 0)})")
        A(mfma32(O[0], V0, P))
        def wm0(bg, bgp):
            if not beta:
                return f"s_add_u32 m0, s{bg}, {u*WPER}"
            if u < 2:
                return f"s_add_u32 m0, s{bgp}, {(u+2)*WPER}"
            return f"s_add_u32 m0, s{bg}, {(u-2)*WPER}"
        A(wm0(sM0Ag, sM0Agp))
        for x in g[3][:3]: A(x)
        A(f"buffer_load_dwordx4 v{vWA}, s[{SPA}:{SPA+3}], s{sWsA} offen lds")
        for x in g[3][3:]: A(x)
        A(f"s_add_u32 s{sWsA}, s{sWsA}, s{sStepA}")
        g = valu_groups(S[1])
        m16 = [mfma16(DACC + 4 * c, WF + 4 * c, ACT + 4 * u) for c in range(5)] if beta else []
        A("s_waitcnt lgkmcnt(0)")
        if "noprio" not in DBG: A(f"s_setprio {(2 if u % 2 == 0 else 0) if 'prioB' not in DBG else 0}")
        if "prioC" in DBG: A("s_setprio 1")
        A(mfma32(S[0], K0, Q0[0], "0"))
        for x in g[0][:3]: A(x)
        if beta: A(m16[0])
        for x in g[0][3:]: A(x)
        A(mfma32(O[0], V1, P + 4))
        for x in g[1][:3]: A(x)
        if beta: A(m16[1])
        for x in g[1][3:]: A(x)
        if "prioC" in DBG: A("s_setprio 0")
        A(mfma32(S[0], K1, Q1[0]))
        for x in g[2][:3]: A(x)
        if beta: A(m16[2])
        for x in g[2][3:]: A(x)
        A(mfma32(O[1], V0, P))
        if cls == "W":
            A(wm0(sM0Bg, sM0Bgp))
        elif u < 2:
            A(f"s_add_u32 m0, s{sKB0}, {(u+2)*KVSLOT}")
        else:
            A(f"s_add_u32 m0, s{sKB1}, {(u-2)*KVSLOT}")
        for x in g[3][:2]: A(x)
        if beta: A(m16[3])
        for x in g[3][2:3]: A(x)
        A(f"buffer_load_dwordx4 v{vPB}, s[{SPB}:{SPB+3}], s{sWsB} offen{SC1} lds")
        for x in g[3][3:]: A(x)
        A(f"s_add_u32 s{sWsB}, s{sWsB}, s{sStepB}")
        if beta: A(m16[4])
        if u == 2:
            A(f"v_add_u32 v{vK0}, s{sKd}, v{vK0}")
            A(f"v_add_u32 v{vK1}, s{sKd}, v{vK1}")

    def cond(val, body, wave0=False):
        if "nocond" in DBG and val not in (24,):
            return
        def b(lb):
            if wave0:
                A("s_cmp_eq_u32 s3, 0")
                A(f"s_cbranch_scc0 {lb}")
            body()
        A.rare([f"s_cmp_eq_u32 s{sP}, {val}"], b)

    def f2_issue():
        A(f"s_lshr_b32 s62, s{sTB64}, 1")
        A("s_lshl_b32 s62, s62, 6")
        A(f"s_add_u32 s62, s62, {F2_OFF}")
        A("v_and_b32 v56, 15, v1")
        A("v_lshlrev_b32 v56, 2, v56")
        A(f"buffer_load_dword v57, v56, {W}, s62 offen sc1")

    def f2_check():
        A(f"v_cmp_ne_u32 vcc, s{sNonce}, v57")
        A("s_nop 0")
        A("s_cmp_eq_u64 vcc, 0")

    def poll_f2():
        poll_pre(A, "f2", f2_issue, f2_check)

    def first_acts():
        for i in range(3):
            A(f"buffer_load_dwordx4 {v(ACT+4*i,4)}, v{vAct}, {W}, s{sActS} offen{SC1}")
            A(f"s_add_u32 s{sActS}, s{sActS}, 4096")

    def signal_f2():
        A(f"s_lshl_b32 s61, s{sTB}, 4")
        A(f"s_add_u32 s61, s61, s{sCG}")
        A("s_lshl_b32 s61, s61, 2")
        A(f"s_add_u32 s61, s61, {F2_OFF}")
        A(f"v_mov_b32 v2, s{sNonce}")
        A("v_mov_b32 v3, 0")
        A("s_mov_b64 exec, 1")
        A(f"buffer_store_dword v2, v3, {W}, s61 offen sc1")
        A("s_mov_b64 exec, -1")

    def switch_kind(cls):
        A(f"v_mov_b32 v{vWA}, v{vWAm}")
        for k in range(4):
            A(f"s_mov_b32 s{SPA+k}, s{SWO+k}")
        A(f"s_mul_i32 s{sWsA}, s{sParA}, {40*1280}")
        A(f"s_add_u32 s{sWsA}, s{sWsA}, s{sColb}")
        A(f"s_mov_b32 s{sStepA}, {80*1280}")
        if cls == "W":
            A(f"v_mov_b32 v{vPB}, v{vWBm}")
            for k in range(4):
                A(f"s_mov_b32 s{SPB+k}, s{SWO+k}")
            A(f"s_add_u32 s{sWsB}, s{sColb}, {40*1280}")
            A(f"s_mov_b32 s{sStepB}, {80*1280}")

    def iteration(lbl, beta, cls):
        A.label(lbl)
        for u in range(4):
            if beta and u == 2:
                cond(24, lambda: switch_kind(cls))
            period(u, beta, cls)
            bar = (u % 2 == 1)
            if "p2novm" not in DBG and (beta or bar):
                A(f"s_waitcnt vmcnt({7 if beta else 6})")
            if not beta and u == 1 and cls == "W":
                cond(PB - 4, poll_f2, wave0=True)
            if bar and "p2nobar" not in DBG:
                A("s_barrier")
            if not beta:
                if u == 1:
                    cond(PB - 4, first_acts)
                    if cls == "W":
                        cond(PB - 8, f2_issue, wave0=True)
                if u == 3 and cls == "W":
                    cond(0, signal_f2, wave0=True)
        A(f"s_add_u32 s{sP}, s{sP}, 4")
        A(f"s_mov_b32 s{sGp}, s{sG}")
        A(f"s_add_u32 s{sG}, s{sG}, {4*WPER}")
        A(f"s_cmp_eq_u32 s{sG}, {12*WPER}")
        A(f"s_cselect_b32 s{sG}, 0, s{sG}")
        A(f"s_add_u32 s{sM0Ag}, s{sM0A}, s{sG}")
        A(f"s_add_u32 s{sM0Agp}, s{sM0A}, s{sGp}")
        if cls == "W":
            A(f"s_add_u32 s{sM0Bg}, s{sM0B}, s{sG}")
            A(f"s_add_u32 s{sM0Bgp}, s{sM0B}, s{sGp}")
        else:
            A(f"s_sub_u32 s{sKB0}, s{sKB0}, s{sKd}")
            A(f"s_add_u32 s{sKB1}, s{sKB1}, s{sKd}")
        A(f"v_add_u32 v{vV}, s{sKd}, v{vV}")
        A(f"s_sub_u32 s{sKd}, 0, s{sKd}")
        if beta:
            A(f"s_sub_u32 s{sDG}, s{sG}, s{sGp}")
            A(f"v_add_u32 v{vWr}, s{sDG}, v{vWr}")

    def p2_loops(cls):
        A(f"s_mov_b32 s{sM0Ag}, s{sM0A}")
        A(f"s_mov_b32 s{sM0Agp}, s{sM0A}")
        if cls == "W":
            A(f"s_mov_b32 s{sM0Bg}, s{sM0B}")
            A(f"s_mov_b32 s{sM0Bgp}, s{sM0B}")
        else:
            A(f"s_mov_b32 s{sKB0}, s{sM0B}")
            A(f"s_add_u32 s{sKB1}, s{sM0B}, {4*KVSLOT}")
        iteration(f"L_alpha{cls}", False, cls)
        A(f"s_cmp_lt_u32 s{sP}, {PB}")
        A(f"s_cbranch_scc1 L_alpha{cls}")
        A(f"s_lshl_b32 s61, s{sStepA}, 1")
        A(f"s_sub_u32 s{sWsA}, s{sWsA}, s61")
        if cls == "W":
            A(f"s_lshl_b32 s61, s{sStepB}, 1")
            A(f"s_sub_u32 s{sWsB}, s{sWsB}, s61")
        iteration(f"L_beta{cls}", True, cls)
        A(f"s_cmp_lt_u32 s{sP}, 32")
        A(f"s_cbranch_scc1 L_beta{cls}")

    A("s_nop 7\ns_nop 7")
    A("s_cmp_lt_u32 s3, 2")
    A("s_cbranch_scc1 L_p2W")
    p2_loops("K")
    A("s_branch L_p2end")
    A.label("L_p2W")
    p2_loops("W")
    A.label("L_p2end")
    A("s_setprio 0")
    stamp(A, 7)
    A(f"v_cvt_pk_bf16_f32 v{P+7}, v{E+14}, v{E+15}")
    A(f"buffer_load_dwordx4 {v(ACT+12,4)}, v{vAct}, {W}, s{sActS} offen{SC1}")
    A("s_nop 0")
    A(mfma32(O[1], V1, P + 4))
    A("s_nop 7\ns_nop 7")
    A("s_mul_i32 s61, s3, 3072")
    A(f"s_add_u32 s61, s61, {XCH}")
    A(f"v_add_u32 v2, s61, v{vL16p}")
    A(f"s_cmp_eq_u32 s{sKH}, 0")
    A("s_cbranch_scc1 L_x0")
    for i in range(3):
        A(f"ds_write_b128 v2, {v(O[0]+4*i,4)} offset:{1024*i}")
    A("s_waitcnt lgkmcnt(0)")
    for r in range(12):
        A(f"v_mov_b32 v{O[0]+r}, v{O[1]+r}")
    A("s_branch L_x1")
    A.label("L_x0")
    for i in range(3):
        A(f"ds_write_b128 v2, {v(O[1]+4*i,4)} offset:{1024*i}")
    A("s_waitcnt lgkmcnt(0)")
    A.label("L_x1")
    A("s_barrier")
    A("s_xor_b32 s61, s3, 4")
    A("s_mul_i32 s61, s61, 3072")
    A(f"s_add_u32 s61, s61, {XCH}")
    A(f"v_add_u32 v2, s61, v{vL16p}")
    for i in range(3):
        A(f"ds_read_b128 {v(64+4*i,4)}, v2 offset:{1024*i}")
    A("s_waitcnt lgkmcnt(0)")
    OO = O[0]
    A("s_mov_b64 s[100:101], -1")
    for r in range(12):
        A(f"v_add_f32 v{OO+r}, v{OO+r}, v{64+r}")
    A.label("L_norm")
    A(f"v_mov_b32 v80, v{OO+8}")
    A(f"v_mov_b32 v81, v{OO+8}")
    A("v_mov_b32 v82, 0")
    A("s_nop 1")
    A("v_permlane32_swap_b32 v80, v81")
    for r in range(12):
        A(f"v_fma_f32 v82, v{OO+r}, 0, v82")
    A(f"s_mov_b32 s61, {hx(f2u(2.0**-80))}")
    A(f"s_mov_b32 s62, {hx(f2u(2.0**100))}")
    A("v_add_f32 v82, v82, v81")
    A("v_cmp_nle_f32 vcc, s61, v82")
    A("v_cmp_nge_f32 s[62:63], s62, v82") if False else None
    A(f"v_mov_b32 v83, {hx(f2u(2.0**100))}")
    A("v_cmp_nle_f32 s[62:63], v82, v83")
    A("s_or_b64 vcc, vcc, s[62:63]")
    A("s_and_b64 vcc, vcc, s[100:101]")
    A("s_cmp_lg_u64 vcc, 0")
    A("s_cbranch_scc1 L_fallback")

    def fallback():
        A.label("L_fallback")
        A("s_mov_b64 s[100:101], 0")
        QA, QB = 56, 60
        lk1, lk2 = A.newlabel("L_fq"), A.newlabel("L_fq")
        A(f"s_cmp_eq_u32 s{sKH}, 0")
        A(f"s_cbranch_scc0 {lk1}")
        for r in range(4):
            A(f"v_mov_b32 v{QA+r}, v{Q0[0]+r}")
            A(f"v_mov_b32 v{QB+r}, v{Q1[0]+r}")
        A(f"s_branch {lk2}")
        A.label(lk1)
        for r in range(4):
            A(f"v_mov_b32 v{QA+r}, v{Q0[1]+r}")
            A(f"v_mov_b32 v{QB+r}, v{Q1[1]+r}")
        A.label(lk2)
        SKs = f"s[{SK}:{SK+3}]"
        vVa, vM = 96, 97
        A("v_lshrrev_b32 v98, 5, v1")
        A("v_mul_u32_u24 v98, 320, v98")
        A("v_and_b32 v99, 31, v1")
        A(f"v_lshl_add_u32 v{vVa}, v99, 4, v98")
        A(f"v_mov_b32 v{vM}, 0xff800000")
        A(f"s_mul_i32 s61, s{sHead}, 163840")
        A("s_mov_b32 s62, 0")
        A.label("L_fb1")
        A(f"buffer_load_dwordx4 {v(K0,4)}, v{vL16p}, {SKs}, s61 offen sc1")
        A(f"buffer_load_dwordx2 {v(K1,2)}, v{vT8p}, {SKs}, s61 offen offset:1024 sc1")
        A("s_waitcnt vmcnt(0)")
        A(mfma32(64, K0, QA, "0"))
        A(mfma32(64, K1, QB))
        A("s_nop 7\ns_nop 7")
        for r in range(0, 16, 2):
            A(f"v_max3_f32 v{vM}, v{vM}, v{64+r}, v{65+r}")
        A("s_add_u32 s61, s61, 2560")
        A("s_add_u32 s62, s62, 1")
        A("s_cmp_lt_u32 s62, 64")
        A("s_cbranch_scc1 L_fb1")
        A(f"v_mov_b32 v98, v{vM}")
        A(f"v_mov_b32 v99, v{vM}")
        A("s_nop 1")
        A("v_permlane32_swap_b32 v98, v99")
        A("s_nop 1")
        A("v_max3_f32 v98, v98, v99, v97")
        A("v_sub_f32 v98, 0, v98")
        A("v_and_b32 v99, 0xffff0000, v98")
        A("v_sub_f32 v98, v98, v99")
        A("v_and_b32 v100, 0xffff0000, v98")
        A("v_sub_f32 v98, v98, v100")
        A("v_lshrrev_b32 v99, 16, v99")
        A("v_or_b32 v99, v99, v100")
        A("v_cvt_pk_bf16_f32 v100, v98, 0")
        A("v_cmp_gt_u32 vcc, 32, v1")
        A("s_nop 1")
        A(f"v_cndmask_b32 v{QB+2}, 0, v99, vcc")
        A(f"v_cndmask_b32 v{QB+3}, 0, v100, vcc")
        for r in range(16):
            A(f"v_mov_b32 v{O[1]+r}, 0")
        A(f"s_mul_i32 s61, s{sHead}, 163840")
        A("s_mov_b32 s62, 0")
        A.label("L_fb2")
        A(f"buffer_load_dwordx4 {v(K0,4)}, v{vL16p}, {SKs}, s61 offen sc1")
        A(f"buffer_load_dwordx2 {v(K1,2)}, v{vT8p}, {SKs}, s61 offen offset:1024 sc1")
        A(f"s_mov_b64 exec, s[{sVm}:{sVm+1}]")
        A(f"buffer_load_dwordx4 {v(V0,4)}, v{vVa}, {SKs}, s61 offen offset:1280 sc1")
        A(f"buffer_load_dwordx4 {v(V1,4)}, v{vVa}, {SKs}, s61 offen offset:1920 sc1")
        A("s_mov_b64 exec, -1")
        A("s_waitcnt vmcnt(0)")
        A(mfma32(64, K0, QA, "0"))
        A(mfma32(64, K1, QB))
        A("s_nop 7\ns_nop 7")
        for r in range(16):
            A(f"v_exp_f32 v{100+r}, v{64+r}") if 100 + r < 112 else A(f"v_exp_f32 v{80+r-12}, v{64+r}")
        A("s_nop 0")
        ex = [100 + r if r < 12 else 80 + r - 12 for r in range(16)]
        for p_ in range(8):
            A(f"v_cvt_pk_bf16_f32 v{P+p_}, v{ex[2*p_]}, v{ex[2*p_+1]}")
        A("s_nop 1")
        A(mfma32(O[1], V0, P))
        A(mfma32(O[1], V1, P + 4))
        A("s_add_u32 s61, s61, 2560")
        A("s_add_u32 s62, s62, 1")
        A("s_cmp_lt_u32 s62, 64")
        A("s_cbranch_scc1 L_fb2")
        A("s_nop 7\ns_nop 7")
        for r in range(12):
            A(f"v_mov_b32 v{OO+r}, v{O[1]+r}")
        A("s_branch L_norm")
    A.defer(fallback)
    A("v_rcp_f32 v81, v81")
    A("s_nop 0")
    A(f"v_mul_f32 v81, v81, v{vGt}")
    for r in range(12):
        A(f"v_mul_f32 v{OO+r}, v81, v{OO+r}")
    for p in range(6):
        A(f"v_cvt_pk_bf16_f32 v{84+p}, v{OO+2*p}, v{OO+2*p+1}")
    sTq = 61
    A(f"s_add_u32 s{sTq}, s{sQT}, s{sKH}")
    A(f"s_mul_i32 s62, s{sTq}, 40")
    A(f"s_add_u32 s63, s62, s{sHead}")
    A("s_lshl_b32 s63, s63, 10")
    A(f"s_add_u32 s63, s63, {O_OFF}")
    A(f"buffer_store_dwordx4 {v(84,4)}, v{vL16p}, {W}, s63 offen{SC1}")
    A(f"s_lshr_b32 s63, s{sHead}, 2")
    A("s_add_u32 s63, s63, 32")
    A("s_add_u32 s63, s63, s62")
    A("s_lshl_b32 s63, s63, 10")
    A(f"s_bfe_u32 s62, s{sHead}, 0x10001")
    A("s_lshl_b32 s62, s62, 9")
    A("s_add_u32 s63, s63, s62")
    A(f"s_and_b32 s62, s{sHead}, 1")
    A("s_lshl_b32 s62, s62, 3")
    A("s_add_u32 s63, s63, s62")
    A(f"s_add_u32 s63, s63, {O_OFF}")
    A("s_mov_b32 exec_hi, 0")
    A(f"buffer_store_dwordx2 {v(88,2)}, v{vL16p}, {W}, s63 offen{SC1}")
    A("s_mov_b32 exec_hi, -1")
    sF3 = 35
    A(f"s_lshl_b32 s{sF3}, s{sTq}, 5")
    A(f"s_add_u32 s{sF3}, s{sF3}, s{sHead}")
    A(f"s_lshl_b32 s{sF3}, s{sF3}, 2")
    A(f"s_add_u32 s{sF3}, s{sF3}, {F3_OFF}")
    def consume(qs, actreg):
        n = len(qs)

        def rd(i):
            base = WF2[i % 2]
            o = (qs[i] % 12) * WPER
            out = []
            for c in range(5):
                for hf in range(2):
                    oo = o + 32 * c + 1280 * hf
                    a, oo = (vW0, oo) if oo < 65536 else (vW1, oo - 61440)
                    out.append(f"ds_read_b64_tr_b16 {v(base+4*c+2*hf,2)}, v{a} offset:{oo}")
            return out
        for x in rd(0): A(x)
        for i in range(n):
            if i + 1 < n:
                for x in rd(i + 1): A(x)
                A("s_waitcnt lgkmcnt(10)")
            else:
                A("s_waitcnt lgkmcnt(0)")
            vm = actreg(i)
            if vm[1] is not None:
                A(f"s_waitcnt vmcnt({vm[1]})")
            for c in range(5):
                A(mfma16(DACC + 4 * c, WF2[i % 2] + 4 * c, vm[0]))

    for q in (30, 31):
        A(f"s_add_u32 m0, s{sM0A}, {(q%12)*WPER}")
        A("s_nop 0")
        A(f"buffer_load_dwordx4 v{vWA}, s[{SPA}:{SPA+3}], s{sWsA} offen lds")
        A(f"s_add_u32 s{sWsA}, s{sWsA}, s{sStepA}")
    l, l2 = A.newlabel("L_w31"), A.newlabel("L_w32")
    A(f"v_mov_b32 v2, s{sNonce}")
    A("v_mov_b32 v3, 0")
    A(f"s_cmp_eq_u32 s{sIsW}, 0")
    A(f"s_cbranch_scc1 {l}")
    for q in (30, 31):
        A(f"s_add_u32 m0, s{sM0B}, {(q%12)*WPER}")
        A("s_nop 0")
        A(f"buffer_load_dwordx4 v{vPB}, s[{SPB}:{SPB+3}], s{sWsB} offen lds")
        A(f"s_add_u32 s{sWsB}, s{sWsB}, s{sStepB}")
    A("s_waitcnt vmcnt(6)")
    A(f"s_branch {l2}")
    A.label(l)
    A("s_waitcnt vmcnt(4)")
    A.label(l2)
    consume(list(range(NB, 24)), lambda i: (ACT + 4 * i, None))
    l, l2 = A.newlabel("L_w33"), A.newlabel("L_w34")
    A(f"s_cmp_eq_u32 s{sIsW}, 0")
    A(f"s_cbranch_scc1 {l}")
    A("s_waitcnt vmcnt(4)")
    A(f"s_branch {l2}")
    A.label(l)
    A("s_waitcnt vmcnt(2)")
    A.label(l2)
    A("s_mov_b64 exec, 1")
    A(f"buffer_store_dword v2, v3, {W}, s{sF3} offen sc1")
    A("s_mov_b64 exec, -1")
    stamp(A, 8)

    A("s_waitcnt vmcnt(1)")
    A(f"v_sub_f32 v56, 1.0, v{vG2}")
    A("s_nop 7")
    for r in range(20):
        A(f"v_mul_f32 v{DACC+r}, v56, v{DACC+r}")
    A("s_barrier")
    for i in range(2):
        q = 32 + i
        A(f"s_mul_i32 s61, s{sParA}, {160*1280}")
        A(f"s_add_u32 s61, s61, {i*320*1280}")
        A(f"s_add_u32 s61, s61, s{sColb}")
        A(f"s_add_u32 m0, s{sM0A}, {(q%12)*WPER}")
        A("s_nop 0")
        A(f"buffer_load_dwordx4 v{vWAr}, s[{SWO}:{SWO+3}], s61 offen lds")
    l = A.newlabel("L_rb")
    A(f"s_cmp_eq_u32 s{sIsW}, 0")
    A(f"s_cbranch_scc1 {l}")
    for i in range(2):
        q = 32 + i
        A(f"s_add_u32 s61, s{sColb}, {(160 + i*320)*1280}")
        A(f"s_add_u32 m0, s{sM0B}, {(q%12)*WPER}")
        A("s_nop 0")
        A(f"buffer_load_dwordx4 v{vWBr}, s[{SWO}:{SWO+3}], s61 offen lds")
    A.label(l)
    l = A.newlabel("L_f3")
    A("s_cmp_eq_u32 s3, 0")
    A(f"s_cbranch_scc0 {l}")
    A("v_lshlrev_b32 v2, 2, v1")
    A(f"s_lshl_b32 s63, s{sTB64}, 8")
    A(f"s_add_u32 s63, s63, {F3_OFF}")
    A(f"s_mov_b32 s{sSpin}, 0")
    A("s_waitcnt vmcnt(0)")
    lp, ld = A.newlabel("L_f3p"), A.newlabel("L_f3d")
    A(f"buffer_load_dword v3, v2, {W}, s63 offen sc1")
    A("s_sleep 3")
    A(f"buffer_load_dword v56, v2, {W}, s63 offen sc1")
    A("s_sleep 3")
    A.label(lp)
    A(f"buffer_load_dword v57, v2, {W}, s63 offen sc1")
    A("s_waitcnt vmcnt(2)")
    A(f"v_cmp_ne_u32 vcc, s{sNonce}, v3")
    A("s_nop 0")
    A("s_cmp_eq_u64 vcc, 0")
    A(f"s_cbranch_scc1 {ld}")
    A(f"buffer_load_dword v3, v2, {W}, s63 offen sc1")
    A("s_waitcnt vmcnt(2)")
    A(f"v_cmp_ne_u32 vcc, s{sNonce}, v56")
    A("s_nop 0")
    A("s_cmp_eq_u64 vcc, 0")
    A(f"s_cbranch_scc1 {ld}")
    A(f"buffer_load_dword v56, v2, {W}, s63 offen sc1")
    A("s_waitcnt vmcnt(2)")
    A(f"v_cmp_ne_u32 vcc, s{sNonce}, v57")
    A("s_nop 0")
    A("s_cmp_eq_u64 vcc, 0")
    A(f"s_cbranch_scc1 {ld}")
    A(f"s_add_u32 s{sSpin}, s{sSpin}, 1")
    A(f"s_cmp_lt_u32 s{sSpin}, {SPIN_MAX}")
    A(f"s_cbranch_scc1 {lp}")
    A.label(ld)
    A.label(l)
    A("s_barrier")
    stamp(A, 9)
    A(f"s_mul_i32 s61, s{sTile3}, {40*1024}")
    A(f"s_lshl_b32 s62, s{sPar}, 11")
    A("s_add_u32 s61, s61, s62")
    A(f"s_add_u32 s61, s61, {O_OFF}")
    for i in range(10):
        A(f"buffer_load_dwordx4 {v(ACTX+4*i,4)}, v{vActReal}, {W}, s61 offen{SC1}")
        A("s_add_u32 s61, s61, 4096")
    consume(list(range(24, 32)), lambda i: (ACTX + 4 * i, 9 - i))
    A("s_waitcnt vmcnt(0)")
    A("s_barrier")
    consume(list(range(32, 34)), lambda i: (ACTX + 4 * (8 + i), None))
    stamp(A, 10)
    A("s_nop 7")
    A(f"s_mul_i32 s61, s{sT16}, 5120")
    A(f"s_add_u32 s61, s61, {XCH}")
    A(f"v_add_u32 v56, s61, v{vL16p}")
    A(f"s_cmp_eq_u32 s{sPar}, 0")
    A("s_cbranch_scc1 L_red")
    for t in range(5):
        A(f"ds_write_b128 v56, {v(DACC+4*t,4)} offset:{1024*t}")
    A("s_waitcnt lgkmcnt(0)")
    A("s_barrier")
    prof_end(A)
    A("s_endpgm")
    A.label("L_red")
    A("s_barrier")
    for t in range(5):
        A(f"ds_read_b128 {v(32+4*t,4)}, v56 offset:{1024*t}")
    A("s_waitcnt lgkmcnt(0)")
    for r in range(20):
        A(f"v_add_f32 v{DACC+r}, v{DACC+r}, v{32+r}")
    A("v_and_b32 v57, 15, v1")
    A("v_mul_u32_u24 v57, 1280, v57")
    A("v_lshrrev_b32 v2, 4, v1")
    A("v_lshl_add_u32 v57, v2, 3, v57")
    A(f"s_lshl_b32 s61, s{sTB64}, 6")
    A(f"s_lshl_b32 s62, s{sT16}, 4")
    A("s_add_u32 s61, s61, s62")
    A("s_mul_i32 s61, s61, 1280")
    A(f"s_add_u32 s61, s61, s{sColb}")
    for t in range(5):
        A(f"v_cvt_pk_bf16_f32 v{64+2*t}, v{DACC+4*t}, v{DACC+4*t+1}")
        A(f"v_cvt_pk_bf16_f32 v{64+2*t+1}, v{DACC+4*t+2}, v{DACC+4*t+3}")
        A(f"buffer_store_dwordx2 {v(64+2*t,2)}, v57, s[{SOUT}:{SOUT+3}], s61 offen offset:{32*t}{OUTF}")
    prof_end(A)
    A("s_endpgm")
    return A.text()


HEADER = """; gated mix of MHA block and GEGLU FFN -- single persistent kernel, 256 workgroups x 512 threads
"""


def build():
    out = HEADER
    out += f"; @launch grid=(256,1,1) block=(512,1,1) lds={LDS_SZ}\n"
    out += '.amdgcn_target "amdgcn-amd-amdhsa--gfx950"\n.text\n'
    out += f".globl {KNAME}\n" + gen()
    out += kernel_desc(KNAME, 256)
    return out


if __name__ == "__main__":
    if "--prof" in sys.argv:
        PROF = True
        sys.argv.remove("--prof")
    dst = sys.argv[1] if len(sys.argv) > 1 else f"cdna_kernels/{NAME}.s"
    open(dst, "w").write(build())
    print("wrote", dst)
```

```python
import sys, os, struct
from asmlib import *

NAME = "gated_mix__mha_block__glu_gated_geglu__prompt"
KNAME = NAME + "_kernel"

QF_OFF = 0
QF_SZ = 32 * 64 * 1280
KV_OFF = QF_OFF + QF_SZ
KV_SZ = 32 * 64 * 2560
H_OFF = KV_OFF + KV_SZ
H_SZ = 64 * 96 * 1024
O_OFF = H_OFF + H_SZ
O_SZ = 64 * 40 * 1024
G_OFF = O_OFF + O_SZ
G_SZ = 8192
F1_OFF = G_OFF + G_SZ
F2_OFF = F1_OFF + 1024
F3_OFF = F2_OFF + 1024
F_END = F3_OFF + 8192
PROF_OFF = F_END
PROF_SZ = 256 * 8 * 64
WS_USED = PROF_OFF + PROF_SZ
PROF = False
DBG = set(os.environ.get("DBG", "").split(","))
SC1 = " sc1"
OUTF = " sc1" if "outsc1" in DBG else (" nt" if "outnt" in DBG else (" sc0 sc1" if "outsc01" in DBG else ""))

LOG2E = 1.4426950408889634
QSCALE = LOG2E * (20 ** -0.5)
SPIN_MAX = 1 << 14


def f2u(x):
    return struct.unpack("<I", struct.pack("<f", x))[0]


def hx(x):
    return hex(x & 0xffffffff)


P_AX, P_WQKV, P_WO, P_BX, P_WG, P_WU, P_WD, P_GW = 36, 38, 40, 42, 44, 46, 48, 50
P_OUT, P_WS, P_DBG = 52, 54, 34
SX, SWQ, SWG, SWU, SW1, SWS, SDB = 4, 8, 12, 16, 20, 24, 28
SWD, SWO, SOUT, SPA, SPB = 4, 8, 12, 16, 20
SK = 40
sTB, sCG, sTT, sWC, sNonce = 56, 57, 58, 59, 60
T0, T1, T2, T3 = 61, 62, 63, 64
sSpin = 75
NSTAMP = 12
STAMP0 = 76

XRING = 0
WRING = 49152
WSLOT = 24640
UPOFF = 12288 + 32
KVB = 122880
KVSLOT = 5120
XCH = KVB + 2 * KVSLOT
LDS_SZ = 163840
WPER = 10240
PB, NB = 12, 20

vLane = 1
vXo, vWoQ, vWo0, vWo1, vWo2 = 4, 5, 6, 7, 14
vXa, vWaQ, vWaG = 8, 12, 15
XA, XB = 32, 40
ACC = 64
WA, WB = 112, 136
vN = 62
K0, K1, V0, V1 = 16, 20, 24, 28
P = 48
S = [64, 80]
E = 96
DACC = 112
WF = 132
Q0 = [160, 168]
Q1 = [164, 172]
vGt, vL16p, vT8p, vK0, vK1, vV = 176, 177, 178, 179, 180, 181
vActReal, vAct, vWr, vWA, vPB, vG2 = 182, 183, 184, 185, 186, 187
vWAm, vWBm, vWAr, vWBr, vKVo, vW0, vW1 = 188, 189, 190, 191, 192, 193, 194
vWB = 195
ACT = 200
O = [216, 232]
ACTX = 64
WF2 = [132, 16]
XCL = [16, 20, 24, 28, 48, 52, 160, 164, 168, 172] + list(range(200, 256, 4))
NXC = 0 if 'noxc' in DBG else 6


def XC(k, j):
    return XCL[4 * k + j]


CLK = "s_memtime" if "clk" in DBG else "s_memrealtime"


def stamp(A, idx, alt=False):
    if alt == "st":
        if "stst" not in DBG:
            return
    else:
        if ("gust" in DBG or "stst" in DBG) and idx in (8, 9, 10) and not alt:
            return
        if "gust" not in DBG and alt:
            return
    if PROF:
        A(f"{CLK} s[{STAMP0+2*idx}:{STAMP0+2*idx+1}]")


def prof_end(A):
    if not PROF:
        return
    A(f"{CLK} s[{STAMP0+2*(NSTAMP-1)}:{STAMP0+2*(NSTAMP-1)+1}]")
    A("s_waitcnt lgkmcnt(0)")
    if "dbgst" in DBG:
        A("v_mov_b32 v0, 0")
        A("s_mov_b64 exec, 1")
        A(f"s_not_b32 s61, s{STAMP0}")
        A("v_mov_b32 v4, s61")
        A(f"buffer_atomic_umax v4, v0, s[{SDB}:{SDB+3}], 0 offen offset:4 sc1")
        for i in range(NSTAMP):
            A(f"v_mov_b32 v{5+i}, s{STAMP0+2*i}")
            A(f"buffer_atomic_umax v{5+i}, v0, s[{SDB}:{SDB+3}], 0 offen offset:{8+4*i} sc1")
        return
    A("s_lshl_b32 s61, s2, 3")
    A("s_add_u32 s61, s61, s3")
    A("s_lshl_b32 s61, s61, 6")
    A(f"s_add_u32 s61, s61, {PROF_OFF}")
    for i in range(NSTAMP):
        A(f"v_mov_b32 v{4+i}, s{STAMP0+2*i}")
    A("v_mov_b32 v0, 0")
    A("s_mov_b64 exec, 1")
    for i in range(3):
        A(f"buffer_store_dwordx4 v[{4+4*i}:{7+4*i}], v0, s[{SWS}:{SWS+3}], s61 offen offset:{16*i}")


def spin(A, name, issue, check):
    l0, l1 = A.newlabel("L_sp" + name), A.newlabel("L_spd" + name)
    A(f"s_mov_b32 s{sSpin}, 0")
    A.label(l0)
    issue()
    A("s_waitcnt vmcnt(0)")
    check()
    A(f"s_cbranch_scc1 {l1}")
    A(f"s_add_u32 s{sSpin}, s{sSpin}, 1")
    A(f"s_cmp_ge_u32 s{sSpin}, {SPIN_MAX}")
    A(f"s_cbranch_scc1 {l1}")
    A("s_sleep 2")
    A(f"s_branch {l0}")
    A.label(l1)


def poll_pre(A, name, issue, check):
    l = A.newlabel("L_pp" + name)
    check()
    A(f"s_cbranch_scc1 {l}")
    spin(A, name, issue, check)
    A.label(l)


W = f"s[{SWS}:{SWS+3}]"


def gen():
    A = Asm("k_")
    A(f".p2align 8\n.type {KNAME},@function")
    A.label(KNAME)
    stamp(A, 0)
    A("s_cmp_ge_u32 s2, 256")
    A("s_cbranch_scc0 L_go")
    A("s_endpgm")
    A.label("L_go")
    A("s_load_dwordx16 s[36:51], s[0:1], 0")
    A("s_load_dwordx2 s[52:53], s[0:1], 64")
    A("s_load_dwordx2 s[34:35], s[0:1], 72")
    A("s_load_dwordx2 s[54:55], s[0:1], 80")
    A("v_lshrrev_b32 v2, 6, v0")
    A("v_and_b32 v1, 63, v0")
    A("s_nop 0")
    A("v_readfirstlane_b32 s3, v2")
    A("s_and_b32 s61, s2, 7")
    A("s_lshr_b32 s62, s2, 3")
    A(f"s_lshr_b32 s{sTB}, s61, 1")
    A(f"s_lshl_b32 s{sTB}, s{sTB}, 2")
    A("s_and_b32 s63, s62, 3")
    A(f"s_add_u32 s{sTB}, s{sTB}, s63")
    A(f"s_and_b32 s{sCG}, s61, 1")
    A(f"s_lshl_b32 s{sCG}, s{sCG}, 3")
    A("s_lshr_b32 s63, s62, 2")
    A(f"s_add_u32 s{sCG}, s{sCG}, s63")
    A(f"s_and_b32 s{sTT}, s3, 3")
    A(f"s_lshr_b32 s{sWC}, s3, 2")
    A("v_lshrrev_b32 v16, 3, v1")
    A("s_lshl_b32 s61, s3, 3")
    A("v_add_u32 v16, s61, v16")
    A("v_lshrrev_b32 v17, 1, v16")
    A("v_and_b32 v17, 7, v17")
    A("v_and_b32 v18, 7, v1")
    A("v_xor_b32 v17, v17, v18")
    A("v_lshlrev_b32 v17, 4, v17")
    A("v_mul_u32_u24 v16, 1280, v16")
    A(f"v_add_u32 v{vXo}, v16, v17")
    A("v_lshrrev_b32 v16, 4, v1")
    A("v_lshlrev_b32 v17, 2, v16")
    A("v_and_b32 v18, 15, v1")
    A("v_xor_b32 v17, v17, v18")
    A("v_lshlrev_b32 v17, 4, v17")
    A("s_lshl_b32 s61, s3, 2")
    A("v_add_u32 v16, s61, v16")
    A("v_mul_u32_u24 v16, 3840, v16")
    A(f"v_add_u32 v{vWoQ}, v16, v17")
    sXs, sXs2, sWs, sWs2, sGs, sGx = 32, 33, 66, 67, 72, 73
    sM0x, sM0q, sM0g0, sM0g1, sM0g2 = 74, 65, 100, 101, 71
    sStage, sSlot = 69, 70
    sXslot, sWslot, sDX, sDW = 44, 45, 46, 47
    A(f"s_mul_i32 s{sXs}, s{sTB}, {128*1280}")
    A(f"s_mul_i32 s61, s{sCG}, 240")
    A(f"s_sub_u32 s62, s{sCG}, 11")
    A("s_lshl_b32 s62, s62, 8")
    A("s_add_u32 s62, s62, 2560")
    A(f"s_cmp_lt_u32 s{sCG}, 11")
    A(f"s_cselect_b32 s{sWs}, s61, s62")
    A(f"s_lshl_b32 s{sM0x}, s3, 10")
    A(f"s_add_u32 s{sM0q}, s{sM0x}, {WRING}")
    A("v_lshlrev_b32 v2, 2, v1")
    A("s_waitcnt lgkmcnt(0)")
    stamp(A, 8, "st")
    srd(A, SX, P_AX, 2048 * 1280)
    srd(A, SWQ, P_WQKV, 640 * 3840)

    def dma_groups(g):
        slot = g % 3
        k = g if g < 10 else g - 10
        out = []
        xs = slot * 16384
        ws_ = slot * WSLOT
        for half in range(2):
            if g >= 10 and k < NXC:
                continue
            out.append([f"s_add_u32 m0, s{sM0x}, {xs + 8192*half}",
                        f"s_add_u32 s{sXs2}, s{sXs}, {k*128 + 81920*half}",
                        f"buffer_load_dwordx4 v{vXo}, s[{SX}:{SX+3}], s{sXs2} offen lds"])
        if g < 10:
            for half in range(2):
                out.append([f"s_add_u32 m0, s{sM0q}, {ws_ + 8192*half}",
                            f"s_add_u32 s{sWs2}, s{sWs}, {(k*64 + 32*half)*3840}",
                            f"buffer_load_dwordx4 v{vWoQ}, s[{SWQ}:{SWQ+3}], s{sWs2} offen lds"])
        else:
            for (sm, vo, sr) in ((sM0g0, vWo0, SWG), (sM0g1, vWo1, SW1), (sM0g2, vWo2, SWU)):
                out.append([f"s_add_u32 m0, s{sm}, {ws_}",
                            f"s_add_u32 s{sWs2}, s{sGs}, {k*64*3072}",
                            f"buffer_load_dwordx4 v{vo}, s[{sr}:{sr+3}], s{sWs2} offen lds"])
        if "p1nodma" in DBG and g >= 3:
            return [[] for _ in out]
        return out

    srd(A, SDB, P_DBG, 256)
    A("s_or_b32 s61, s2, s3")
    A("s_cmp_eq_u32 s61, 0")

    def pub(lb):
        A("s_memrealtime s[62:63]")
        A("s_waitcnt lgkmcnt(0)")
        A("s_or_b32 s62, s62, 1")
        A("v_mov_b32 v16, s62")
        A("v_mov_b32 v17, 0")
        A("s_mov_b64 exec, 1")
        A(f"buffer_store_dword v16, v17, s[{SDB}:{SDB+3}], 0 offen sc1")
        A("s_mov_b64 exec, -1")
    A.rare([], pub)
    def prefetch():
        A("s_mov_b32 s60, s4\ns_mov_b32 s61, s5")
        A(f"s_mov_b32 s62, {2048*1280}")
        A("s_mov_b32 s64, 10240")
        for (wmin, lo, hi, sz, ch) in ((2, 8, 9, 640*3840, 9600), (4, 12, 13, 640*3072, 7680), (5, 16, 17, 640*3072, 7680),
                                       (6, 48, 49, 1536*1280, 7680), (7, 40, 41, 640*1280, 3200)):
            A(f"s_cmp_ge_u32 s3, {wmin}")
            A(f"s_cselect_b32 s60, s{lo}, s60")
            A(f"s_cselect_b32 s61, s{hi}, s61")
            A(f"s_cselect_b32 s62, {sz}, s62")
            A(f"s_cselect_b32 s64, {ch}, s64")
        A("s_and_b32 s61, s61, 0xffff")
        A("s_mov_b32 s63, 0x20000")
        A("s_cmp_lt_u32 s3, 4")
        A("s_cselect_b32 s75, 1, 0")
        A("s_and_b32 s75, s75, s3")
        A("s_lshl_b32 s75, s75, 13")
        A("v_lshlrev_b32 v3, 7, v1")
        A("v_add_u32 v3, s75, v3")
        A("v_cmp_gt_u32 vcc, s64, v3")
        A("s_mul_i32 s64, s64, s2")
        A("s_mov_b64 exec, vcc")
        A("buffer_load_dword v59, v3, s[60:63], s64 offen")
        A("s_mov_b64 exec, -1")
    def issue_stage(st):
        for grp in dma_groups(st):
            for x in grp:
                A(x)
    if "pffirst" in DBG:
        srd(A, SWG, P_WG, 640 * 3072)
        srd(A, SWU, P_WU, 640 * 3072)
        prefetch()
    issue_stage(0)
    if "st012" in DBG:
        issue_stage(1)
        issue_stage(2)
    SGW = 68
    srd(A, SGW, P_GW, 1280)
    vGX, vGW = 100, 106
    sTOK = 33
    sGoff = 0
    A(f"s_lshl_b32 s{sTOK}, s{sTB}, 7")
    A(f"s_lshl_b32 s61, s{sCG}, 3")
    A(f"s_add_u32 s{sTOK}, s{sTOK}, s61")
    A(f"s_add_u32 s{sTOK}, s{sTOK}, s3")
    A(f"s_lshl_b32 s{sGoff}, s{sTOK}, 2")
    A(f"s_add_u32 s{sGoff}, s{sGoff}, {G_OFF}")
    srd(A, SWG, P_WG, 640 * 3072)
    srd(A, SWU, P_WU, 640 * 3072)
    srd(A, SWS, P_WS, WS_USED)
    A("s_cmp_lt_u32 s3, 4")
    for k in range(4):
        A(f"s_cselect_b32 s{SW1+k}, s{SWG+k}, s{SWU+k}")
    A(f"s_mul_i32 s75, s{sTOK}, 1280")
    if "st012" not in DBG:
        issue_stage(1)
        issue_stage(2)
    for m in range(5):
        A(f"buffer_load_dword v{vGX+m}, v2, s[{SX}:{SX+3}], s75 offen offset:{256*m}")
    for m in range(5):
        A(f"buffer_load_dword v{vGW+m}, v2, s[{SGW}:{SGW+3}], 0 offen offset:{256*m}")
    NPF = 0 if "nopf" in DBG else 1

    if NPF and "pflate" not in DBG and "pffirst" not in DBG:
        prefetch()

    A("v_and_b32 v16, 31, v1")
    A("v_lshrrev_b32 v17, 5, v1")
    A("v_lshrrev_b32 v18, 1, v16")
    A("v_and_b32 v18, 7, v18")
    A(f"s_lshl_b32 s61, s{sTT}, 5")
    A("v_add_u32 v19, s61, v16")
    A("v_lshlrev_b32 v19, 7, v19")
    for j in range(4):
        A(f"v_add_u32 v20, {2*j}, v17")
        A("v_xor_b32 v20, v20, v18")
        A("v_lshlrev_b32 v20, 4, v20")
        A(f"v_add_u32 v{vXa+j}, v19, v20")
    A("v_and_b32 v18, 15, v1")
    A("v_lshrrev_b32 v19, 2, v18")
    A("v_lshrrev_b32 v20, 4, v1")
    A(f"s_cmp_lt_u32 s{sCG}, 11")
    A("s_cselect_b32 s61, 8, 0")
    A("s_sub_u32 s61, 128, s61")
    A(f"s_mul_i32 s61, s61, s{sWC}")
    A("v_lshrrev_b32 v21, 1, v20")
    A("v_lshl_add_u32 v21, v21, 3, v19")
    A("v_lshlrev_b32 v27, 8, v21")
    A(f"v_add_u32 v27, {WRING}, v27")
    A("v_and_b32 v22, 1, v20")
    A("v_lshlrev_b32 v22, 5, v22")
    A("v_and_b32 v23, 3, v1")
    A("v_lshl_add_u32 v22, v23, 3, v22")
    A("v_add_u32 v22, s61, v22")
    A("v_and_b32 v24, 3, v19")
    A("v_lshlrev_b32 v24, 2, v24")
    for t in range(2):
        A(f"v_add_u32 v25, {64*t}, v22")
        A("v_lshrrev_b32 v26, 4, v25")
        A("v_xor_b32 v26, v26, v24")
        A("v_lshlrev_b32 v26, 4, v26")
        A("v_and_b32 v25, 15, v25")
        A(f"v_add3_u32 v{vWaQ+t}, v27, v26, v25")
    A("v_mul_u32_u24 v21, 192, v21")
    A("v_and_b32 v22, 1, v20")
    A(f"v_mul_u32_u24 v22, {UPOFF}, v22")
    A("v_lshlrev_b32 v23, 3, v23")
    A("v_add3_u32 v21, v21, v22, v23")
    A(f"s_mul_i32 s61, s{sWC}, 96")
    A(f"s_add_u32 s61, s61, {WRING}")
    A(f"v_add_u32 v{vWaG}, s61, v21")
    A("s_add_u32 s61, s3, 8")
    A("s_sub_u32 s62, s3, 4")
    A("s_cmp_lt_u32 s3, 4")
    A("s_cselect_b32 s63, s61, s62")
    A(f"s_cselect_b32 s64, 0, {UPOFF}")
    A(f"s_lshl_b32 s{sM0g1}, s63, 10")
    A(f"s_add_u32 s{sM0g1}, s{sM0g1}, s64")
    A(f"s_add_u32 s{sM0g1}, s{sM0g1}, {WRING}")
    A("s_add_u32 s64, s3, 4")
    A(f"s_lshl_b32 s{sM0g2}, s64, 10")
    A(f"s_add_u32 s{sM0g2}, s{sM0g2}, {WRING + UPOFF}")
    A(f"s_lshl_b32 s{sM0g0}, s3, 10")
    A(f"s_add_u32 s{sM0g0}, s{sM0g0}, {WRING}")
    for (vd, sj) in ((vWo0, 3), (vWo1, 63), (vWo2, 64)):
        A(f"s_lshl_b32 s61, s{sj}, 6")
        A("v_add_u32 v21, s61, v1")
        magic_div(A, 22, 21, 12, 768, 62)
        A("v_mul_u32_u24 v23, 12, v22")
        A("v_sub_u32 v23, v21, v23")
        A("v_lshlrev_b32 v23, 4, v23")
        A("v_mul_u32_u24 v22, 3072, v22")
        A(f"v_add_u32 v{vd}, v22, v23")
    A(f"s_mul_i32 s{sGs}, s{sCG}, 192")

    A(f"v_lshlrev_b32 v{vL16p}, 4, v1")
    A(f"v_and_b32 v16, 31, v1")
    A(f"v_lshlrev_b32 v{vT8p}, 3, v16")
    A(f"v_lshlrev_b32 v{vGt}, 2, v16")
    A(f"s_mul_i32 s61, s{sWC}, 2560")
    A(f"s_add_u32 s61, s61, {KVB + 4*KVSLOT}")
    A(f"v_add_u32 v{vK0}, s61, v{vL16p}")
    A(f"v_add_u32 v{vK1}, s61, v{vT8p}")
    A(f"v_add_u32 v{vK1}, 1024, v{vK1}")
    A("v_lshrrev_b32 v17, 5, v1")
    A("v_mul_u32_u24 v17, 320, v17")
    A("v_lshlrev_b32 v18, 4, v16")
    A("v_add3_u32 v17, v17, v18, s61")
    A(f"v_add_u32 v{vV}, 1280, v17")
    A("s_sub_i32 s61, s3, 2")
    A("s_max_i32 s61, s61, 0")
    A("s_min_i32 s61, s61, 4")
    A("s_lshl_b32 s62, s61, 10")
    A(f"v_add_u32 v{vKVo}, s62, v{vL16p}")
    A(f"v_cmp_le_u32 vcc, 2560, v{vKVo}")
    A(f"v_add_u32 v17, {32*2560-2560}, v{vKVo}")
    A("s_nop 0")
    A(f"v_cndmask_b32 v{vKVo}, v{vKVo}, v17, vcc")
    A("v_lshrrev_b32 v17, 4, v1")
    A("v_lshrrev_b32 v18, 1, v17")
    A("v_lshlrev_b32 v18, 10, v18")
    A("v_and_b32 v19, 1, v17")
    A("v_lshlrev_b32 v19, 9, v19")
    A("v_and_b32 v20, 15, v1")
    A(f"s_and_b32 s61, s{sTT}, 1")
    A("s_lshl_b32 s61, s61, 4")
    A("v_add_u32 v20, s61, v20")
    A("v_lshlrev_b32 v21, 4, v20")
    A(f"v_add3_u32 v{vActReal}, v18, v19, v21")
    A(f"v_mov_b32 v{vAct}, v{vActReal}")
    A(f"v_lshlrev_b32 v{vG2}, 2, v20")
    A("v_lshrrev_b32 v18, 1, v17")
    A("v_lshlrev_b32 v18, 4, v18")
    A("v_and_b32 v19, 1, v17")
    A("v_lshl_add_u32 v18, v19, 2, v18")
    A("v_and_b32 v19, 15, v1")
    A("v_lshrrev_b32 v19, 2, v19")
    A("v_add_u32 v18, v18, v19")
    A("v_mul_u32_u24 v18, 160, v18")
    A("v_and_b32 v19, 3, v1")
    A("v_lshl_add_u32 v18, v19, 3, v18")
    A(f"s_mul_i32 s61, s{sWC}, 5120")
    A(f"v_add_u32 v{vWr}, s61, v18")
    A(f"v_mov_b32 v{vW0}, v{vWr}")
    A(f"v_add_u32 v{vW1}, 61440, v{vWr}")
    A("s_cmp_ge_u32 s3, 5")
    A("s_cselect_b32 s63, 5, 0")
    A("s_sub_u32 s63, s3, s63")
    A("s_add_u32 s64, s3, 3")
    A("s_min_u32 s64, s64, 4")
    for (sj, vh, vm, vr) in ((63, vWA, vWAm, vWAr), (64, vWB, vWBm, vWBr)):
        A(f"s_lshl_b32 s61, s{sj}, 6")
        A("v_add_u32 v22, s61, v1")
        magic_div(A, 23, 22, 10, 320, 62)
        A("v_mul_u32_u24 v24, 10, v23")
        A("v_sub_u32 v24, v22, v24")
        A("v_lshlrev_b32 v24, 4, v24")
        A("v_mul_u32_u24 v25, 1280, v23")
        A(f"v_add_u32 v{vh}, v25, v24")
        A("v_lshrrev_b32 v25, 4, v23")
        A("v_mul_u32_u24 v25, 20, v25")
        A("v_and_b32 v26, 15, v23")
        A("v_add_u32 v25, v25, v26")
        A("v_mul_u32_u24 v25, 1280, v25")
        A(f"v_add_u32 v{vm}, v25, v24")
        A("v_lshrrev_b32 v25, 4, v23")
        A("v_lshlrev_b32 v25, 2, v25")
        A("v_bfe_u32 v26, v23, 2, 1")
        A("v_lshl_add_u32 v25, v26, 1, v25")
        A("v_bfe_u32 v26, v23, 3, 1")
        A("v_add_u32 v25, v25, v26")
        A("v_mul_u32_u24 v25, 20, v25")
        A("v_and_b32 v26, 3, v23")
        A("v_add3_u32 v25, v25, v26, 16")
        A("v_mul_u32_u24 v25, 1280, v25")
        A(f"v_add_u32 v{vr}, v25, v24")
    A("s_cmp_lt_u32 s3, 2")
    A("s_cselect_b64 vcc, -1, 0")
    A("s_nop 1")
    A(f"v_cndmask_b32 v{vPB}, v{vKVo}, v{vWB}, vcc")
    ONE2 = 0x3f803f80

    def p2_inits(part):
        if part == 0:
            A("v_and_b32 v56, 31, v1")
            A("v_cmp_eq_u32 vcc, 20, v56")
            A(f"v_mov_b32 v57, {hx(ONE2)}")
            A("s_nop 0")
            A("v_cndmask_b32 v58, 0, v57, vcc")
            for r in range(8):
                A(f"v_mov_b32 v{V0+r}, v58")
            A(f"v_mov_b32 v{K1+2}, {hx(ONE2)}")
            A(f"v_mov_b32 v{K1+3}, 0x3f80")
            for r in range(8):
                A(f"v_mov_b32 v{P+r}, 0")
        else:
            for r in range(32):
                A(f"v_mov_b32 v{O[0]+r}, 0")


    def gate_compute():
        A("v_mov_b32 v56, 0")
        for m in range(5):
            A(f"v_dot2_f32_bf16 v56, v{vGX+m}, v{vGW+m}, v56")
        A("s_nop 3")
        for sh in (1, 2, 4, 8):
            A(f"v_add_f32_dpp v56, v56, v56 row_shr:{sh} row_mask:0xf bank_mask:0xf bound_ctrl:0")
            A("s_nop 1")
        A("v_add_f32_dpp v56, v56, v56 row_bcast:15 row_mask:0xa bank_mask:0xf")
        A("s_nop 1")
        A("v_add_f32_dpp v56, v56, v56 row_bcast:31 row_mask:0xc bank_mask:0xf")
        A("s_nop 1")
        A(f"v_mul_f32 v56, {hx(f2u(-LOG2E))}, v56")
        A("v_exp_f32 v56, v56")
        A("s_nop 0")
        A("v_add_f32 v56, 1.0, v56")
        A("v_rcp_f32 v63, v56")

    if NPF and "pflate" in DBG:
        prefetch()
    stamp(A, 9, "st")
    NPY = 0 if "pffirst" in DBG else NPF
    A(f"s_waitcnt vmcnt({8+10+NPY})")
    stamp(A, 10, "st")
    A("s_barrier")
    stamp(A, 1)

    def xoff(g):
        return (g % 3) * 16384

    def woff(g):
        return (g % 3) * WSLOT

    def xreg(setX, g, half, jj):
        k = g if g < 10 else g - 10
        return XC(k, 2 * half + jj) if k < NXC else setX + 4 * jj

    def qkv_reads(setX, setW, g, half):
        r = []
        for jj in range(2):
            j = 2 * half + jj
            r.append(f"ds_read_b128 {v(xreg(setX, g, half, jj),4)}, v{vXa+j} offset:{xoff(g)}")
            for t in range(2):
                d = setW + 8 * jj + 4 * t
                o = woff(g) + j * 4096
                r.append(f"ds_read_b64_tr_b16 {v(d,2)}, v{vWaQ+t} offset:{o}")
                r.append(f"ds_read_b64_tr_b16 {v(d+2,2)}, v{vWaQ+t} offset:{o+1024}")
        return r

    def qkv_mfmas(setX, setW, g, half, vtype):
        m = []
        for jj in range(2):
            for t in range(2):
                a, b = setW + 8 * jj + 4 * t, xreg(setX, g, half, jj)
                if vtype:
                    a, b = b, a
                m.append(mfma32(ACC + 16 * t, a, b, "0" if (g == 0 and half == 0 and jj == 0) else None))
        return m

    def gu_reads(setX, setW, g, half):
        r = []
        for jj in range(2):
            j = 2 * half + jj
            if g - 10 >= NXC:
                r.append(f"ds_read_b128 {v(setX+4*jj,4)}, v{vXa+j} offset:{xoff(g)}")
            for t in range(3):
                d = setW + 12 * jj + 4 * t
                o = woff(g) + j * 3072 + 32 * t
                a = vWaG
                assert o + 768 < 65536
                r.append(f"ds_read_b64_tr_b16 {v(d,2)}, v{a} offset:{o}")
                r.append(f"ds_read_b64_tr_b16 {v(d+2,2)}, v{a} offset:{o+768}")
        return r

    def gu_mfmas(setX, setW, g, half):
        m = []
        for jj in range(2):
            for t in range(3):
                m.append(mfma32(ACC + 16 * t, setW + 12 * jj + 4 * t, xreg(setX, g, half, jj), "0" if (g == 10 and half == 0 and jj == 0) else None))
        return m

    def emit_half(mm, rr, dd, fill=()):
        if "p1noreads" in DBG: rr = []
        if "p1nomfma" in DBG: mm = ["s_nop 0"] * len(mm)
        n = len(mm)
        ng = n - 1
        if 'nghalf' in DBG: ng = max(1, n // 2)
        if 'ngm2' in DBG: ng = max(1, n - 2)
        if 'ngall' in DBG: ng = n
        per = (len(rr) + ng - 1) // ng
        pos = {}
        for i, grp in enumerate(dd):
            p_ = min(n - 1, (i * n) // max(1, len(dd)) + (0 if len(dd) > 2 else 1))
            pos.setdefault(p_, []).append(grp)
        load = [0] * n
        ri = 0
        for i in range(n):
            load[i] += len(rr[ri:ri + per]); ri += per
            load[i] += sum(len(g_) for g_ in pos.get(i, []))
        total = sum(load) + sum(len(g_) for g_ in fill)
        target = total / n
        fpos = [[] for _ in range(n)]
        gi = 0
        for g_ in fill:
            while gi < n - 1 and load[gi] >= target:
                gi += 1
            fpos[gi].append(g_); load[gi] += len(g_)
        ri = 0
        for i, m in enumerate(mm):
            A(m)
            for r in rr[ri:ri + per]:
                A(r)
            ri += per
            for grp in pos.get(i, []):
                for x in grp:
                    A(x)
            for grp in fpos[i]:
                for x in grp:
                    A(x)
        for r in rr[ri:]:
            A(r)

    def stage(g, reads, mfmas, wait, pre=None, post=None, fill0=(), fill1=()):
        d2 = dma_groups(g + 2)[2:] if (3 <= g + 2 <= 19 and g + 2 != 12) else []
        d3 = dma_groups(g + 3)[:2] if g + 3 <= 19 else []
        if "dmaearly" in DBG:
            d2 = []
            d3 = dma_groups(g + 3) if g + 3 <= 19 else []
        if g + 3 == 12:
            d3 = dma_groups(12)
        A("s_waitcnt lgkmcnt(0)")
        if "p1prio" in DBG: A("s_setprio 0")
        if "p1prio2" in DBG: A("s_setprio 1")
        emit_half(mfmas(XA, WA, g, 0), reads(XB, WB, g, 1), d2, fill0)
        if pre: pre()
        if g == 12: stamp(A, 8, True)
        if g == 18: stamp(A, 9, True)
        wait()
        A("s_barrier")
        if g == 18: stamp(A, 10, True)
        nr = reads(XA, WA, g + 1, 0) if g not in (9, 19) else []
        if "p1prio" in DBG: A("s_setprio 1")
        if "p1prio2" in DBG: A("s_setprio 0")
        emit_half(mfmas(XB, WB, g, 1), nr, d3, fill1)
        if post: post()

    sU, sTile, sSc01, sSc2 = 69, 70, 47, 73
    sD3 = [44, 45, 46]
    vL16x = 58

    def qk_pre():
        A(f"s_mul_i32 s{sU}, s{sCG}, 6")
        A(f"s_mul_i32 s61, s{sWC}, 3")
        A(f"s_add_u32 s{sU}, s{sU}, s61")
        A(f"s_lshl_b32 s{sTile}, s{sTB}, 2")
        A(f"s_add_u32 s{sTile}, s{sTile}, s{sTT}")
        A(f"s_add_u32 s61, s{sU}, 1")
        A("s_cmp_lt_u32 s61, 32")
        A(f"s_cselect_b32 s{sSc01}, {hx(f2u(QSCALE))}, 1.0")
        A(f"s_add_u32 s61, s{sU}, 2")
        A("s_cmp_lt_u32 s61, 32")
        A(f"s_cselect_b32 s{sSc2}, {hx(f2u(QSCALE))}, 1.0")
        for a in range(3):
            A(f"s_add_u32 s61, s{sU}, {a}")
            A("s_lshl_b32 s62, s61, 6")
            A(f"s_add_u32 s62, s62, s{sTile}")
            A("s_mul_i32 s63, s62, 1280")
            A(f"s_sub_u32 s62, s62, {32*64}")
            A("s_mul_i32 s62, s62, 2560")
            A(f"s_add_u32 s62, s62, {KV_OFF}")
            A("s_cmp_lt_u32 s61, 32")
            A(f"s_cselect_b32 s{sD3[a]}, s63, s62")
        A(f"v_xor_b32 v{vL16x}, 512, v{vL16p}")
        A(f"s_cmp_ge_u32 s{sU}, 63")
        A("s_cselect_b32 s61, 0x80000000, 0")
        A(f"v_or_b32 v{vL16x}, s61, v{vL16x}")
        A(f"v_or_b32 v59, s61, v{vL16p}")
        A(f"v_or_b32 v60, s61, v{vT8p}")

    def v_pre():
        A(f"s_lshl_b32 s{sTile}, s{sTB}, 2")
        A(f"s_add_u32 s{sTile}, s{sTile}, s{sTT}")
        A(f"s_mul_i32 s{sD3[0]}, s{sTile}, 2560")
        A(f"s_add_u32 s{sD3[0]}, s{sD3[0]}, {KV_OFF + 1280}")
        A(f"s_sub_u32 s61, s{sCG}, 11")
        A("s_lshl_b32 s61, s61, 7")
        A(f"s_lshl_b32 s62, s{sWC}, 6")
        A("s_add_u32 s61, s61, s62")
        A("v_and_b32 v56, 31, v1")
        A("v_lshrrev_b32 v57, 5, v1")
        A("v_mul_u32_u24 v57, 320, v57")
        for t in range(2):
            A("v_add_u32 v58, s61, v56")
            if t:
                A("v_add_u32 v58, 32, v58")
            magic_div(A, 59, 58, 20, 640, 62)
            A("v_mul_u32_u24 v2, 20, v59")
            A("v_sub_u32 v2, v58, v2")
            A("v_lshlrev_b32 v2, 4, v2")
            A("s_mov_b32 s62, 163840")
            A("v_mul_lo_u32 v59, v59, s62")
            A(f"v_add3_u32 v{60+t}, v59, v2, v57")

    def qkv_phase(vtype):
        for r in qkv_reads(XA, WA, 0, 0):
            A(r)
        for g in range(10):
            n = len(dma_groups(g + 2)) + (10 + NPY if g < 2 else 0)
            f0 = atomic_groups(capture(A, gate_compute)) if g == 3 else ()
            if g == 8:
                f0 = atomic_groups(capture(A, v_pre if vtype else qk_pre))
            stage(g, qkv_reads, lambda x, w, g_, h_: qkv_mfmas(x, w, g_, h_, vtype), lambda n=n: A(f"s_waitcnt vmcnt({n}) lgkmcnt(0)"), fill0=f0)

    sCls = 35
    A(f"s_cmp_ge_u32 s{sCG}, 11")
    A("s_cbranch_scc1 L_vtype")
    qkv_phase(False)
    stamp(A, 2)
    A("s_waitcnt lgkmcnt(0)")
    A("s_nop 7\ns_nop 7")
    PK = 32
    for r in range(32):
        G = r // 4
        A(f"v_mul_f32 v{ACC+r}, s{sSc01 if G < 5 else sSc2}, v{ACC+r}")
    for p in range(16):
        A(f"v_cvt_pk_bf16_f32 v{PK+p}, v{ACC+2*p}, v{ACC+2*p+1}")

    def qk_stores():
        A(f"buffer_store_dwordx4 {v(PK,4)}, v{vL16p}, {W}, s{sD3[0]} offen{SC1}")
        A("s_mov_b32 exec_hi, 0")
        A(f"buffer_store_dwordx2 {v(PK+4,2)}, v{vT8p}, {W}, s{sD3[0]} offen offset:1024{SC1}")
        A(f"buffer_store_dwordx4 {v(PK+6,4)}, v{vL16x}, {W}, s{sD3[1]} offen{SC1}")
        A("s_mov_b64 exec, -1")
        A("s_mov_b32 exec_lo, 0")
        A(f"buffer_store_dwordx4 {v(PK+4,4)}, v{vL16x}, {W}, s{sD3[1]} offen{SC1}")
        A(f"buffer_store_dwordx2 {v(PK+8,2)}, v60, {W}, s{sD3[1]} offen offset:1024{SC1}")
        A("s_mov_b64 exec, -1")
        A(f"buffer_store_dwordx4 {v(PK+10,4)}, v59, {W}, s{sD3[2]} offen{SC1}")
        A("s_mov_b32 exec_hi, 0")
        A(f"buffer_store_dwordx2 {v(PK+14,2)}, v60, {W}, s{sD3[2]} offen offset:1024{SC1}")
        A("s_mov_b64 exec, -1")
    A(f"s_mov_b32 s{sCls}, 0")
    A("@@GU10_QK")
    A("s_branch L_gu11")

    A.label("L_vtype")
    qkv_phase(True)
    stamp(A, 2)
    A("s_waitcnt lgkmcnt(0)")
    A("s_nop 7\ns_nop 7")
    A(f"s_mov_b32 s{sCls}, 1")
    sD = sD3[0]
    for t in range(2):
        for hf in range(2):
            base = ACC + 16 * t + 8 * hf
            dst = 32 + 8 * t + 4 * hf
            for p in range(4):
                A(f"v_cvt_pk_bf16_f32 v{dst+p}, v{base+2*p}, v{base+2*p+1}")

    def v_stores():
        for t in range(2):
            for hf in range(2):
                dst = 32 + 8 * t + 4 * hf
                A(f"buffer_store_dwordx4 {v(dst,4)}, v{60+t}, {W}, s{sD3[0]} offen offset:{640*hf}{SC1}")
    A("@@GU10_V")
    sHead, sQT, sKVs, sM0kv = 48, 49, 51, 65

    def qkv_tail():
        A("v_mov_b32 v3, 0")
        A("s_mov_b32 exec_lo, 0")
        A("s_mov_b32 exec_hi, 0x80000000")
        A(f"buffer_store_dword v63, v3, {W}, s{sGoff} offen{SC1}")
        A("s_mov_b64 exec, -1")
        stamp(A, 3)
        A(f"buffer_load_dword v{vN}, v3, s[{SDB}:{SDB+3}], 0 offen sc1")

    def gu_setup():
        A("s_mov_b32 s0, s48")
        A("s_mov_b32 s1, s49")
        A("s_and_b32 s61, s2, 7")
        A("s_lshr_b32 s62, s2, 3")
        A("s_lshl_b32 s61, s61, 2")
        A(f"s_lshr_b32 s{sHead}, s62, 3")
        A(f"s_add_u32 s{sHead}, s{sHead}, s61")
        A("s_and_b32 s62, s62, 7")
        A("s_lshl_b32 s62, s62, 3")
        A(f"s_lshl_b32 s61, s{sTT}, 1")
        A(f"s_add_u32 s{sQT}, s62, s61")
        A("s_mov_b32 s38, s40")
        A("s_mov_b32 s39, s41")
        srd(A, SK, P_WS, KV_SZ, add=KV_OFF)
        A("s_sub_i32 s61, s3, 2")
        A("s_max_i32 s61, s61, 0")
        A("s_min_i32 s61, s61, 4")
        A("s_lshl_b32 s62, s61, 10")
        A(f"s_add_u32 s{sM0kv}, s62, {KVB}")
        A(f"s_mul_i32 s{sKVs}, s{sHead}, 163840")

    def kv_dma(tile):
        A(f"s_add_u32 m0, s{sM0kv}, {((tile+4)%8)*KVSLOT}")
        A("s_nop 0")
        A(f"buffer_load_dwordx4 v{vKVo}, s[{SK}:{SK+3}], s{sKVs} offen{SC1} lds")
        A(f"s_add_u32 s{sKVs}, s{sKVs}, 2560")

    def p2_prologue():
        for a in range(2):
            A(f"s_lshl_b32 s61, s{sHead}, 6")
            A(f"s_add_u32 s61, s61, s{sQT}")
            A(f"s_add_u32 s61, s61, {a}")
            A("s_mul_i32 s61, s61, 1280")
            A(f"buffer_load_dwordx4 {v(Q0[a],4)}, v{vL16p}, {W}, s61 offen{SC1}")
            A(f"buffer_load_dwordx2 {v(Q1[a],2)}, v{vT8p}, {W}, s61 offen offset:1024{SC1}")
        A(f"s_add_u32 s61, s{sQT}, s{sWC}")
        A("s_lshl_b32 s61, s61, 7")
        A(f"s_add_u32 s61, s61, {G_OFF}")
        A(f"buffer_load_dword v{vGt}, v{vGt}, {W}, s61 offen{SC1}")
        for t in range(6):
            kv_dma(t)
        A(f"s_lshl_b32 s61, s{sTile3}, 7")
        A(f"s_add_u32 s61, s61, {G_OFF}")
        A(f"buffer_load_dword v{vG2}, v{vG2}, {W}, s61 offen{SC1}")

    def nonce_get():
        lk = A.newlabel("L_nk")
        A(f"v_readfirstlane_b32 s{sNonce}, v{vN}")
        A("s_nop 3")
        A(f"s_cmp_lg_u32 s{sNonce}, 0")
        A(f"s_cbranch_scc1 {lk}")

        def issue():
            A(f"buffer_load_dword v{vN}, v3, s[{SDB}:{SDB+3}], 0 offen sc1")

        def check():
            A(f"v_readfirstlane_b32 s{sNonce}, v{vN}")
            A("s_nop 3")
            A(f"s_cmp_lg_u32 s{sNonce}, 0")
        spin(A, "n", issue, check)
        A.label(lk)

    def f1_issue():
        A(f"s_mov_b32 s62, {F1_OFF}")
        A(f"buffer_load_dwordx4 v[56:59], v{vL16p}, {W}, s62 offen sc1")

    def f1_check():
        A(f"v_cmp_ne_u32 vcc, s{sNonce}, v56")
        A(f"v_cmp_ne_u32 s[62:63], s{sNonce}, v57")
        A("s_or_b64 vcc, vcc, s[62:63]")
        A(f"v_cmp_ne_u32 s[62:63], s{sNonce}, v58")
        A("s_or_b64 vcc, vcc, s[62:63]")
        A(f"v_cmp_ne_u32 s[62:63], s{sNonce}, v59")
        A("s_or_b64 vcc, vcc, s[62:63]")
        A("s_cmp_eq_u64 vcc, 0")

    sTB64, sCB, sT16, sPar, sTile3 = 44, 45, sTT, sWC, 32
    sKH = sWC
    sIsW = 38
    sM0A, sM0B, sWsA, sWsB, sStepA, sStepB = 33, 66, 67, 69, 74, 70
    sActS, sColb, sParA = 71, 72, 73
    sP, sG, sGp, sKd, sRrg, sHH = 64, 46, 47, 36, 37, 34
    sOffB = [52, 53, 54, 55]
    sVm = 0

    def p2_scal1():
        A("s_and_b32 s61, s2, 7")
        A("s_lshr_b32 s62, s2, 3")
        A(f"s_lshr_b32 s{sTB64}, s61, 1")
        A(f"s_lshl_b32 s{sTB64}, s{sTB64}, 3")
        A("s_and_b32 s63, s62, 7")
        A(f"s_add_u32 s{sTB64}, s{sTB64}, s63")
        A(f"s_and_b32 s{sCB}, s61, 1")
        A(f"s_lshl_b32 s{sCB}, s{sCB}, 2")
        A("s_lshr_b32 s63, s62, 3")
        A(f"s_add_u32 s{sCB}, s{sCB}, s63")
        A(f"s_lshl_b32 s{sTile3}, s{sTB64}, 1")
        A(f"s_lshr_b32 s61, s{sT16}, 1")
        A(f"s_add_u32 s{sTile3}, s{sTile3}, s61")
        srd(A, SWD, 0, 1536 * 1280)
        srd(A, SWO, 38, 640 * 1280)
        srd(A, SOUT, P_OUT, 2048 * 1280)
        for k in range(4):
            A(f"s_mov_b32 s{SPA+k}, s{SWD+k}")
        A("s_cmp_lt_u32 s3, 2")
        for k in range(4):
            A(f"s_cselect_b32 s{SPB+k}, s{SWD+k}, s{SK+k}")
        A(f"s_cselect_b32 s{sIsW}, 1, 0")

    def p2_scal2():
        A(f"s_mul_i32 s{sColb}, s{sCB}, 160")
        A("s_cmp_ge_u32 s3, 5")
        A(f"s_cselect_b32 s{sParA}, 1, 0")
        A(f"s_mul_i32 s61, s{sParA}, 5")
        A("s_sub_u32 s61, s3, s61")
        A(f"s_mul_i32 s{sM0A}, s{sParA}, 5120")
        A("s_lshl_b32 s61, s61, 10")
        A(f"s_add_u32 s{sM0A}, s{sM0A}, s61")
        A(f"s_mul_i32 s{sWsA}, s{sParA}, {32*1280}")
        A(f"s_add_u32 s{sWsA}, s{sWsA}, s{sColb}")
        A(f"s_mov_b32 s{sStepA}, {64*1280}")
        A(f"s_mul_i32 s{sActS}, s{sTile3}, {96*1024}")
        A(f"s_lshl_b32 s61, s{sPar}, 11")
        A(f"s_add_u32 s{sActS}, s{sActS}, s61")
        A(f"s_add_u32 s{sActS}, s{sActS}, {H_OFF}")
        A(f"s_mov_b32 s{sVm}, 0xfffff")
        A(f"s_mov_b32 s{sVm+1}, 0xfffff")
        A(f"s_mov_b32 s{sG}, 0")
        A(f"s_mov_b32 s{sGp}, 0")
        A(f"s_mov_b32 s{sRrg}, 0")
        A(f"s_mov_b32 s{sHH}, 0")
        A(f"s_mov_b32 s{sKd}, {hx(-4*KVSLOT)}")

    def p2_scal3():
        A("s_add_u32 s61, s3, 3")
        A("s_min_u32 s61, s61, 4")
        A("s_lshl_b32 s61, s61, 10")
        A("s_add_u32 s61, s61, 5120")
        A("s_cmp_lt_u32 s3, 2")
        A(f"s_cselect_b32 s{sM0B}, s61, s{sM0kv}")
        A(f"s_add_u32 s61, s{sColb}, {32*1280}")
        A("s_cmp_lt_u32 s3, 2")
        A(f"s_cselect_b32 s{sWsB}, s61, s{sKVs}")
        A(f"s_mov_b32 s61, {64*1280}")
        A("s_cmp_lt_u32 s3, 2")
        A(f"s_cselect_b32 s{sStepB}, s61, 2560")
        A(f"s_mov_b32 s{sP}, 0")
        if "outwarm" in DBG:
            A("v_and_b32 v255, 15, v1")
            A("v_mul_u32_u24 v255, 1280, v255")
            A(f"s_lshl_b32 s61, s{sTB64}, 6")
            A(f"s_lshl_b32 s62, s{sT16}, 4")
            A("s_add_u32 s61, s61, s62")
            A("s_mul_i32 s61, s61, 1280")
            A(f"s_mul_i32 s62, s{sCB}, 160")
            A("s_add_u32 s61, s61, s62")
            A(f"buffer_load_dword v255, v255, s[{SOUT}:{SOUT+3}], s61 offen")

    def gu_wait(g):
        def w():
            if g in (10, 11):
                nb = len(dma_groups(g + 2))
                lE, lc1, lc2 = [A.newlabel("L_gw") for _ in range(3)]
                A(f"s_cmp_eq_u32 s{sCls}, 0")

                def body(lb):
                    A(f"s_cmp_eq_u32 s{sCls}, 1")
                    A(f"s_cbranch_scc0 {lc2}")
                    A(f"s_waitcnt vmcnt({nb+6})")
                    A(f"s_branch {lE}")
                    A.label(lc2)
                    A(f"s_waitcnt vmcnt({nb+4})")
                    A(f"s_branch {lE}")
                A.rare([], body, branch="s_cbranch_scc0")
                A(f"s_waitcnt vmcnt({nb+9})")
                A.label(lE)
                A("s_waitcnt lgkmcnt(0)")
            elif g <= 17:
                A(f"s_waitcnt vmcnt({len(dma_groups(g + 2))}) lgkmcnt(0)")
            elif g == 18:
                A("s_waitcnt vmcnt(0) lgkmcnt(0)")

                def body(lb):
                    poll_pre(A, "f1", f1_issue, f1_check)
                A.rare(["s_cmp_eq_u32 s3, 0"], body)
            else:
                A("s_waitcnt lgkmcnt(0)")
        return w

    def sig_f1():
        def body(lb):
            A("v_mov_b32 v3, 0")
            nonce_get()
            A(f"s_lshl_b32 s61, s{sTB}, 4")
            A(f"s_add_u32 s61, s61, s{sCG}")
            A("s_lshl_b32 s61, s61, 2")
            A(f"s_add_u32 s61, s61, {F1_OFF}")
            A(f"v_mov_b32 v2, s{sNonce}")
            A("s_mov_b64 exec, 1")
            A(f"buffer_store_dword v2, v3, {W}, s61 offen sc1")
            A("s_mov_b64 exec, -1")
        A.rare(["s_cmp_eq_u32 s3, 0"], body)

    def f1_pre():
        A.rare(["s_cmp_eq_u32 s3, 0"], lambda lb: f1_issue())

    def F(*fns):
        out = []
        for fn in fns:
            out += atomic_groups(capture(A, fn))
        return out
    fills = {
        (13, 0): F(gu_setup),
        (16, 0): F(lambda: p2_inits(0)),
        (16, 1): F(lambda: p2_inits(1)),
        (17, 1): F(p2_scal1),
        (18, 0): F(p2_scal2),
        (18, 1): F(p2_prologue),
        (19, 0): F(p2_scal3),
    }
    def gu10(stores):
        qkv_tail()
        for r in gu_reads(XA, WA, 10, 0):
            A(r)
        stage(10, gu_reads, gu_mfmas, gu_wait(10), fill0=F(stores))
    for marker, fn in (("@@GU10_QK", qk_stores), ("@@GU10_V", v_stores)):
        code = capture(A, lambda: gu10(fn))
        i = [k for k, ln in enumerate(A.lines) if ln.strip() == marker]
        assert len(i) == 1
        A.lines[i[0]:i[0] + 1] = [ln if ln.endswith(":") else "    " + ln for ln in code]
    A.label("L_gu11")
    for g in range(11, 20):
        post = {12: sig_f1, 17: f1_pre}.get(g)
        stage(g, gu_reads, gu_mfmas, gu_wait(g), post=post, fill0=fills.get((g, 0), ()), fill1=fills.get((g, 1), ()))
    stamp(A, 4)
    A("s_waitcnt lgkmcnt(0)")
    A("s_nop 7")
    A("s_nop 7")
    ca = -2.0 * LOG2E * (2.0 / 3.141592653589793) ** 0.5
    cb = ca * 0.044715
    sTile, sD = 100, 101
    A(f"s_mov_b32 s61, {hx(f2u(ca))}")
    A(f"s_mov_b32 s62, {hx(f2u(cb))}")
    A(f"s_lshl_b32 s{sTile}, s{sTB}, 2")
    A(f"s_add_u32 s{sTile}, s{sTile}, s{sTT}")
    A(f"s_mul_i32 s{sD}, s{sTile}, 96")
    A(f"s_mul_i32 s63, s{sCG}, 6")
    A(f"s_add_u32 s{sD}, s{sD}, s63")
    A(f"s_mul_i32 s63, s{sWC}, 3")
    A(f"s_add_u32 s{sD}, s{sD}, s63")
    A(f"s_lshl_b32 s{sD}, s{sD}, 10")
    A(f"s_add_u32 s{sD}, s{sD}, {H_OFF}")
    A("v_mov_b32 v61, s61")
    for t in range(3):
        g0 = ACC + 16 * t
        u0 = g0 + 8
        T = 32
        for j in range(8):
            A(f"v_mul_f32 v{T+j}, v{g0+j}, v{g0+j}")
        for j in range(8):
            A(f"v_fma_f32 v{T+j}, v{T+j}, s62, v61")
        for j in range(8):
            A(f"v_mul_f32 v{T+j}, v{T+j}, v{g0+j}")
        for j in range(8):
            A(f"v_exp_f32 v{T+j}, v{T+j}")
        for j in range(8):
            A(f"v_mul_f32 v{u0+j}, v{g0+j}, v{u0+j}")
        for j in range(8):
            A(f"v_add_f32 v{T+j}, 1.0, v{T+j}")
        for j in range(8):
            A(f"v_rcp_f32 v{T+j}, v{T+j}")
        A("s_nop 0")
        for j in range(8):
            A(f"v_mul_f32 v{u0+j}, v{u0+j}, v{T+j}")
        dst = 40 + 4 * t if t < 2 else 56
        for p in range(4):
            A(f"v_cvt_pk_bf16_f32 v{dst+p}, v{u0+2*p}, v{u0+2*p+1}")
        A(f"buffer_store_dwordx4 {v(dst,4)}, v{vL16p}, {W}, s{sD} offen offset:{1024*t}{SC1}")
    stamp(A, 5)

    A("v_mov_b32 v3, 0")
    nonce_get()
    for r in range(20):
        A(f"v_mov_b32 v{DACC+r}, 0")
    A(f"v_mov_b32 v{E+14}, 0")
    A(f"v_mov_b32 v{E+15}, 0")
    A("s_waitcnt vmcnt(3)")
    A("v_cmp_gt_u32 vcc, 32, v1")
    A("s_nop 1")
    for a in range(2):
        A(f"v_cndmask_b32 v{Q1[a]}, 0, v{Q1[a]}, vcc")
        A(f"v_cndmask_b32 v{Q1[a]+1}, 0, v{Q1[a]+1}, vcc")
        A(f"v_mov_b32 v{Q1[a]+2}, 0")
        A(f"v_mov_b32 v{Q1[a]+3}, 0")
    A("s_barrier")
    stamp(A, 6)

    def rdK0(o): return f"ds_read_b128 {v(K0,4)}, v{vK0} offset:{o}"
    def rdK1(o): return f"ds_read_b64 {v(K1,2)}, v{vK1} offset:{o}"
    def rdV(o):
        if "p2noexec" in DBG:
            return [f"ds_read_b128 {v(V0,4)}, v{vV} offset:{o}", f"ds_read_b128 {v(V1,4)}, v{vV} offset:{o+640}"]
        return [f"s_mov_b64 exec, s[{sVm}:{sVm+1}]",
                f"ds_read_b128 {v(V0,4)}, v{vV} offset:{o}",
                f"ds_read_b128 {v(V1,4)}, v{vV} offset:{o+640}",
                "s_mov_b64 exec, -1"]

    A(rdK0(0)); A(rdK1(0))
    A("s_waitcnt lgkmcnt(0)")
    A(mfma32(S[0], K0, Q0[0], "0"))
    A(mfma32(S[0], K1, Q1[0]))

    def valu_groups(cur):
        vl = []
        for i in range(8):
            vl.append(f"v_exp_f32 v{E+2*i}, v{cur+2*i}")
            vl.append(f"v_exp_f32 v{E+2*i+1}, v{cur+2*i+1}")
            j = (i - 1) % 8
            vl.append(f"v_cvt_pk_bf16_f32 v{P+j}, v{E+2*j}, v{E+2*j+1}")
        return [vl[0:6], vl[6:12], vl[12:18], vl[18:24]]

    sM0Ag, sM0Agp = 68, 50
    sM0Bg, sM0Bgp = 52, 53
    sKB0, sKB1 = 52, 53
    sDG = 54

    def period(u, beta, cls):
        A0 = A
        if "p2nobeta" in DBG:
            beta = False if True else beta
        def A_(x):
            if "p2nolds" in DBG and (x.startswith("ds_read") or x.startswith("s_waitcnt lgkmcnt") or x.startswith("s_mov_b64 exec")):
                return
            if "p2nomfma" in DBG and x.startswith("v_mfma"):
                return
            if "p2novm" in DBG and (x.startswith("buffer_load") or x.startswith("s_add_u32 m0") or x.startswith("s_mov_b32 m0") or x.startswith(f"s_add_u32 s{sWsA},") or x.startswith(f"s_add_u32 s{sWsB},") or x.startswith(f"s_add_u32 s{sActS},")):
                return
            A0(x)
        return period_(u, beta, cls, A_)

    def period_(u, beta, cls, A):
        kofs = (u + 1) * KVSLOT if u < 3 else 0
        g = valu_groups(S[0])
        tr = []
        if beta:
            for c in range(5):
                tr.append(f"ds_read_b64_tr_b16 {v(WF+4*c,2)}, v{vWr} offset:{u*WPER+32*c}")
                tr.append(f"ds_read_b64_tr_b16 {v(WF+4*c+2,2)}, v{vWr} offset:{u*WPER+32*c+8*160}")
        if "noprio" not in DBG: A(f"s_setprio {(3 if u % 2 == 0 else 1) if 'prioB' not in DBG else 1}")
        if "prioC" in DBG: A("s_setprio 3")
        A(mfma32(S[1], K0, Q0[1], "0"))
        A(rdK0(kofs))
        if beta:
            A(f"buffer_load_dwordx4 {v(ACT+4*((u+3)%4),4)}, v{vAct}, {W}, s{sActS} offen{SC1}")
        for x in g[0][:3]: A(x)
        if beta:
            A(f"s_add_u32 s{sActS}, s{sActS}, 4096")
        for x in tr[:3]: A(x)
        for x in g[0][3:]: A(x)
        A(mfma32(O[1], V1, P + 4))
        for x in rdV(u * KVSLOT): A(x)
        for x in g[1][:3]: A(x)
        for x in tr[3:6]: A(x)
        for x in g[1][3:]: A(x)
        if "prioC" in DBG: A("s_setprio 2")
        A(mfma32(S[1], K1, Q1[1]))
        A(rdK1(kofs))
        for x in g[2][:3]: A(x)
        for x in tr[6:10]: A(x)
        for x in g[2][3:]: A(x)
        A(f"s_waitcnt lgkmcnt({2 + (7 if beta else 0)})")
        A(mfma32(O[0], V0, P))
        def wm0(bg, bgp):
            if not beta:
                return f"s_add_u32 m0, s{bg}, {u*WPER}"
            if u < 2:
                return f"s_add_u32 m0, s{bgp}, {(u+2)*WPER}"
            return f"s_add_u32 m0, s{bg}, {(u-2)*WPER}"
        A(wm0(sM0Ag, sM0Agp))
        for x in g[3][:3]: A(x)
        A(f"buffer_load_dwordx4 v{vWA}, s[{SPA}:{SPA+3}], s{sWsA} offen lds")
        for x in g[3][3:]: A(x)
        A(f"s_add_u32 s{sWsA}, s{sWsA}, s{sStepA}")
        g = valu_groups(S[1])
        m16 = [mfma16(DACC + 4 * c, WF + 4 * c, ACT + 4 * u) for c in range(5)] if beta else []
        A("s_waitcnt lgkmcnt(0)")
        if "noprio" not in DBG: A(f"s_setprio {(2 if u % 2 == 0 else 0) if 'prioB' not in DBG else 0}")
        if "prioC" in DBG: A("s_setprio 1")
        A(mfma32(S[0], K0, Q0[0], "0"))
        for x in g[0][:3]: A(x)
        if beta: A(m16[0])
        for x in g[0][3:]: A(x)
        A(mfma32(O[0], V1, P + 4))
        for x in g[1][:3]: A(x)
        if beta: A(m16[1])
        for x in g[1][3:]: A(x)
        if "prioC" in DBG: A("s_setprio 0")
        A(mfma32(S[0], K1, Q1[0]))
        for x in g[2][:3]: A(x)
        if beta: A(m16[2])
        for x in g[2][3:]: A(x)
        A(mfma32(O[1], V0, P))
        if cls == "W":
            A(wm0(sM0Bg, sM0Bgp))
        elif u < 2:
            A(f"s_add_u32 m0, s{sKB0}, {(u+2)*KVSLOT}")
        else:
            A(f"s_add_u32 m0, s{sKB1}, {(u-2)*KVSLOT}")
        for x in g[3][:2]: A(x)
        if beta: A(m16[3])
        for x in g[3][2:3]: A(x)
        A(f"buffer_load_dwordx4 v{vPB}, s[{SPB}:{SPB+3}], s{sWsB} offen{SC1} lds")
        for x in g[3][3:]: A(x)
        A(f"s_add_u32 s{sWsB}, s{sWsB}, s{sStepB}")
        if beta: A(m16[4])
        if u == 2:
            A(f"v_add_u32 v{vK0}, s{sKd}, v{vK0}")
            A(f"v_add_u32 v{vK1}, s{sKd}, v{vK1}")

    def cond(val, body, wave0=False):
        if "nocond" in DBG and val not in (24,):
            return
        def b(lb):
            if wave0:
                A("s_cmp_eq_u32 s3, 0")
                A(f"s_cbranch_scc0 {lb}")
            body()
        A.rare([f"s_cmp_eq_u32 s{sP}, {val}"], b)

    def f2_issue():
        A(f"s_lshr_b32 s62, s{sTB64}, 1")
        A("s_lshl_b32 s62, s62, 6")
        A(f"s_add_u32 s62, s62, {F2_OFF}")
        A("v_and_b32 v56, 15, v1")
        A("v_lshlrev_b32 v56, 2, v56")
        A(f"buffer_load_dword v57, v56, {W}, s62 offen sc1")

    def f2_check():
        A(f"v_cmp_ne_u32 vcc, s{sNonce}, v57")
        A("s_nop 0")
        A("s_cmp_eq_u64 vcc, 0")

    def poll_f2():
        poll_pre(A, "f2", f2_issue, f2_check)

    def first_acts():
        for i in range(3):
            A(f"buffer_load_dwordx4 {v(ACT+4*i,4)}, v{vAct}, {W}, s{sActS} offen{SC1}")
            A(f"s_add_u32 s{sActS}, s{sActS}, 4096")

    def signal_f2():
        A(f"s_lshl_b32 s61, s{sTB}, 4")
        A(f"s_add_u32 s61, s61, s{sCG}")
        A("s_lshl_b32 s61, s61, 2")
        A(f"s_add_u32 s61, s61, {F2_OFF}")
        A(f"v_mov_b32 v2, s{sNonce}")
        A("v_mov_b32 v3, 0")
        A("s_mov_b64 exec, 1")
        A(f"buffer_store_dword v2, v3, {W}, s61 offen sc1")
        A("s_mov_b64 exec, -1")

    def switch_kind(cls):
        A(f"v_mov_b32 v{vWA}, v{vWAm}")
        for k in range(4):
            A(f"s_mov_b32 s{SPA+k}, s{SWO+k}")
        A(f"s_mul_i32 s{sWsA}, s{sParA}, {40*1280}")
        A(f"s_add_u32 s{sWsA}, s{sWsA}, s{sColb}")
        A(f"s_mov_b32 s{sStepA}, {80*1280}")
        if cls == "W":
            A(f"v_mov_b32 v{vPB}, v{vWBm}")
            for k in range(4):
                A(f"s_mov_b32 s{SPB+k}, s{SWO+k}")
            A(f"s_add_u32 s{sWsB}, s{sColb}, {40*1280}")
            A(f"s_mov_b32 s{sStepB}, {80*1280}")

    def iteration(lbl, beta, cls):
        A.label(lbl)
        for u in range(4):
            if beta and u == 2:
                cond(24, lambda: switch_kind(cls))
            period(u, beta, cls)
            bar = (u % 2 == 1)
            if "p2novm" not in DBG and (beta or bar):
                A(f"s_waitcnt vmcnt({7 if beta else 6})")
            if not beta and u == 1 and cls == "W":
                cond(PB - 4, poll_f2, wave0=True)
            if bar and "p2nobar" not in DBG:
                A("s_barrier")
            if not beta:
                if u == 1:
                    cond(PB - 4, first_acts)
                    if cls == "W":
                        cond(PB - 8, f2_issue, wave0=True)
                if u == 3 and cls == "W":
                    cond(0, signal_f2, wave0=True)
        A(f"s_add_u32 s{sP}, s{sP}, 4")
        A(f"s_mov_b32 s{sGp}, s{sG}")
        A(f"s_add_u32 s{sG}, s{sG}, {4*WPER}")
        A(f"s_cmp_eq_u32 s{sG}, {12*WPER}")
        A(f"s_cselect_b32 s{sG}, 0, s{sG}")
        A(f"s_add_u32 s{sM0Ag}, s{sM0A}, s{sG}")
        A(f"s_add_u32 s{sM0Agp}, s{sM0A}, s{sGp}")
        if cls == "W":
            A(f"s_add_u32 s{sM0Bg}, s{sM0B}, s{sG}")
            A(f"s_add_u32 s{sM0Bgp}, s{sM0B}, s{sGp}")
        else:
            A(f"s_sub_u32 s{sKB0}, s{sKB0}, s{sKd}")
            A(f"s_add_u32 s{sKB1}, s{sKB1}, s{sKd}")
        A(f"v_add_u32 v{vV}, s{sKd}, v{vV}")
        A(f"s_sub_u32 s{sKd}, 0, s{sKd}")
        if beta:
            A(f"s_sub_u32 s{sDG}, s{sG}, s{sGp}")
            A(f"v_add_u32 v{vWr}, s{sDG}, v{vWr}")

    def p2_loops(cls):
        A(f"s_mov_b32 s{sM0Ag}, s{sM0A}")
        A(f"s_mov_b32 s{sM0Agp}, s{sM0A}")
        if cls == "W":
            A(f"s_mov_b32 s{sM0Bg}, s{sM0B}")
            A(f"s_mov_b32 s{sM0Bgp}, s{sM0B}")
        else:
            A(f"s_mov_b32 s{sKB0}, s{sM0B}")
            A(f"s_add_u32 s{sKB1}, s{sM0B}, {4*KVSLOT}")
        iteration(f"L_alpha{cls}", False, cls)
        A(f"s_cmp_lt_u32 s{sP}, {PB}")
        A(f"s_cbranch_scc1 L_alpha{cls}")
        A(f"s_lshl_b32 s61, s{sStepA}, 1")
        A(f"s_sub_u32 s{sWsA}, s{sWsA}, s61")
        if cls == "W":
            A(f"s_lshl_b32 s61, s{sStepB}, 1")
            A(f"s_sub_u32 s{sWsB}, s{sWsB}, s61")
        iteration(f"L_beta{cls}", True, cls)
        A(f"s_cmp_lt_u32 s{sP}, 32")
        A(f"s_cbranch_scc1 L_beta{cls}")

    A("s_nop 7\ns_nop 7")
    A("s_cmp_lt_u32 s3, 2")
    A("s_cbranch_scc1 L_p2W")
    p2_loops("K")
    A("s_branch L_p2end")
    A.label("L_p2W")
    p2_loops("W")
    A.label("L_p2end")
    A("s_setprio 0")
    stamp(A, 7)
    A(f"v_cvt_pk_bf16_f32 v{P+7}, v{E+14}, v{E+15}")
    A(f"buffer_load_dwordx4 {v(ACT+12,4)}, v{vAct}, {W}, s{sActS} offen{SC1}")
    A("s_nop 0")
    A(mfma32(O[1], V1, P + 4))
    A("s_nop 7\ns_nop 7")
    A("s_mul_i32 s61, s3, 3072")
    A(f"s_add_u32 s61, s61, {XCH}")
    A(f"v_add_u32 v2, s61, v{vL16p}")
    A(f"s_cmp_eq_u32 s{sKH}, 0")
    A("s_cbranch_scc1 L_x0")
    for i in range(3):
        A(f"ds_write_b128 v2, {v(O[0]+4*i,4)} offset:{1024*i}")
    A("s_waitcnt lgkmcnt(0)")
    for r in range(12):
        A(f"v_mov_b32 v{O[0]+r}, v{O[1]+r}")
    A("s_branch L_x1")
    A.label("L_x0")
    for i in range(3):
        A(f"ds_write_b128 v2, {v(O[1]+4*i,4)} offset:{1024*i}")
    A("s_waitcnt lgkmcnt(0)")
    A.label("L_x1")
    A("s_barrier")
    A("s_xor_b32 s61, s3, 4")
    A("s_mul_i32 s61, s61, 3072")
    A(f"s_add_u32 s61, s61, {XCH}")
    A(f"v_add_u32 v2, s61, v{vL16p}")
    for i in range(3):
        A(f"ds_read_b128 {v(64+4*i,4)}, v2 offset:{1024*i}")
    A("s_waitcnt lgkmcnt(0)")
    OO = O[0]
    A("s_mov_b64 s[100:101], -1")
    for r in range(12):
        A(f"v_add_f32 v{OO+r}, v{OO+r}, v{64+r}")
    A.label("L_norm")
    A(f"v_mov_b32 v80, v{OO+8}")
    A(f"v_mov_b32 v81, v{OO+8}")
    A("v_mov_b32 v82, 0")
    A("s_nop 1")
    A("v_permlane32_swap_b32 v80, v81")
    for r in range(12):
        A(f"v_fma_f32 v82, v{OO+r}, 0, v82")
    A(f"s_mov_b32 s61, {hx(f2u(2.0**-80))}")
    A(f"s_mov_b32 s62, {hx(f2u(2.0**100))}")
    A("v_add_f32 v82, v82, v81")
    A("v_cmp_nle_f32 vcc, s61, v82")
    A("v_cmp_nge_f32 s[62:63], s62, v82") if False else None
    A(f"v_mov_b32 v83, {hx(f2u(2.0**100))}")
    A("v_cmp_nle_f32 s[62:63], v82, v83")
    A("s_or_b64 vcc, vcc, s[62:63]")
    A("s_and_b64 vcc, vcc, s[100:101]")
    A("s_cmp_lg_u64 vcc, 0")
    A("s_cbranch_scc1 L_fallback")

    def fallback():
        A.label("L_fallback")
        A("s_mov_b64 s[100:101], 0")
        QA, QB = 56, 60
        lk1, lk2 = A.newlabel("L_fq"), A.newlabel("L_fq")
        A(f"s_cmp_eq_u32 s{sKH}, 0")
        A(f"s_cbranch_scc0 {lk1}")
        for r in range(4):
            A(f"v_mov_b32 v{QA+r}, v{Q0[0]+r}")
            A(f"v_mov_b32 v{QB+r}, v{Q1[0]+r}")
        A(f"s_branch {lk2}")
        A.label(lk1)
        for r in range(4):
            A(f"v_mov_b32 v{QA+r}, v{Q0[1]+r}")
            A(f"v_mov_b32 v{QB+r}, v{Q1[1]+r}")
        A.label(lk2)
        SKs = f"s[{SK}:{SK+3}]"
        vVa, vM = 96, 97
        A("v_lshrrev_b32 v98, 5, v1")
        A("v_mul_u32_u24 v98, 320, v98")
        A("v_and_b32 v99, 31, v1")
        A(f"v_lshl_add_u32 v{vVa}, v99, 4, v98")
        A(f"v_mov_b32 v{vM}, 0xff800000")
        A(f"s_mul_i32 s61, s{sHead}, 163840")
        A("s_mov_b32 s62, 0")
        A.label("L_fb1")
        A(f"buffer_load_dwordx4 {v(K0,4)}, v{vL16p}, {SKs}, s61 offen sc1")
        A(f"buffer_load_dwordx2 {v(K1,2)}, v{vT8p}, {SKs}, s61 offen offset:1024 sc1")
        A("s_waitcnt vmcnt(0)")
        A(mfma32(64, K0, QA, "0"))
        A(mfma32(64, K1, QB))
        A("s_nop 7\ns_nop 7")
        for r in range(0, 16, 2):
            A(f"v_max3_f32 v{vM}, v{vM}, v{64+r}, v{65+r}")
        A("s_add_u32 s61, s61, 2560")
        A("s_add_u32 s62, s62, 1")
        A("s_cmp_lt_u32 s62, 64")
        A("s_cbranch_scc1 L_fb1")
        A(f"v_mov_b32 v98, v{vM}")
        A(f"v_mov_b32 v99, v{vM}")
        A("s_nop 1")
        A("v_permlane32_swap_b32 v98, v99")
        A("s_nop 1")
        A("v_max3_f32 v98, v98, v99, v97")
        A("v_sub_f32 v98, 0, v98")
        A("v_and_b32 v99, 0xffff0000, v98")
        A("v_sub_f32 v98, v98, v99")
        A("v_and_b32 v100, 0xffff0000, v98")
        A("v_sub_f32 v98, v98, v100")
        A("v_lshrrev_b32 v99, 16, v99")
        A("v_or_b32 v99, v99, v100")
        A("v_cvt_pk_bf16_f32 v100, v98, 0")
        A("v_cmp_gt_u32 vcc, 32, v1")
        A("s_nop 1")
        A(f"v_cndmask_b32 v{QB+2}, 0, v99, vcc")
        A(f"v_cndmask_b32 v{QB+3}, 0, v100, vcc")
        for r in range(16):
            A(f"v_mov_b32 v{O[1]+r}, 0")
        A(f"s_mul_i32 s61, s{sHead}, 163840")
        A("s_mov_b32 s62, 0")
        A.label("L_fb2")
        A(f"buffer_load_dwordx4 {v(K0,4)}, v{vL16p}, {SKs}, s61 offen sc1")
        A(f"buffer_load_dwordx2 {v(K1,2)}, v{vT8p}, {SKs}, s61 offen offset:1024 sc1")
        A(f"s_mov_b64 exec, s[{sVm}:{sVm+1}]")
        A(f"buffer_load_dwordx4 {v(V0,4)}, v{vVa}, {SKs}, s61 offen offset:1280 sc1")
        A(f"buffer_load_dwordx4 {v(V1,4)}, v{vVa}, {SKs}, s61 offen offset:1920 sc1")
        A("s_mov_b64 exec, -1")
        A("s_waitcnt vmcnt(0)")
        A(mfma32(64, K0, QA, "0"))
        A(mfma32(64, K1, QB))
        A("s_nop 7\ns_nop 7")
        for r in range(16):
            A(f"v_exp_f32 v{100+r}, v{64+r}") if 100 + r < 112 else A(f"v_exp_f32 v{80+r-12}, v{64+r}")
        A("s_nop 0")
        ex = [100 + r if r < 12 else 80 + r - 12 for r in range(16)]
        for p_ in range(8):
            A(f"v_cvt_pk_bf16_f32 v{P+p_}, v{ex[2*p_]}, v{ex[2*p_+1]}")
        A("s_nop 1")
        A(mfma32(O[1], V0, P))
        A(mfma32(O[1], V1, P + 4))
        A("s_add_u32 s61, s61, 2560")
        A("s_add_u32 s62, s62, 1")
        A("s_cmp_lt_u32 s62, 64")
        A("s_cbranch_scc1 L_fb2")
        A("s_nop 7\ns_nop 7")
        for r in range(12):
            A(f"v_mov_b32 v{OO+r}, v{O[1]+r}")
        A("s_branch L_norm")
    A.defer(fallback)
    A("v_rcp_f32 v81, v81")
    A("s_nop 0")
    A(f"v_mul_f32 v81, v81, v{vGt}")
    for r in range(12):
        A(f"v_mul_f32 v{OO+r}, v81, v{OO+r}")
    for p in range(6):
        A(f"v_cvt_pk_bf16_f32 v{84+p}, v{OO+2*p}, v{OO+2*p+1}")
    sTq = 61
    A(f"s_add_u32 s{sTq}, s{sQT}, s{sKH}")
    A(f"s_mul_i32 s62, s{sTq}, 40")
    A(f"s_add_u32 s63, s62, s{sHead}")
    A("s_lshl_b32 s63, s63, 10")
    A(f"s_add_u32 s63, s63, {O_OFF}")
    A(f"buffer_store_dwordx4 {v(84,4)}, v{vL16p}, {W}, s63 offen{SC1}")
    A(f"s_lshr_b32 s63, s{sHead}, 2")
    A("s_add_u32 s63, s63, 32")
    A("s_add_u32 s63, s63, s62")
    A("s_lshl_b32 s63, s63, 10")
    A(f"s_bfe_u32 s62, s{sHead}, 0x10001")
    A("s_lshl_b32 s62, s62, 9")
    A("s_add_u32 s63, s63, s62")
    A(f"s_and_b32 s62, s{sHead}, 1")
    A("s_lshl_b32 s62, s62, 3")
    A("s_add_u32 s63, s63, s62")
    A(f"s_add_u32 s63, s63, {O_OFF}")
    A("s_mov_b32 exec_hi, 0")
    A(f"buffer_store_dwordx2 {v(88,2)}, v{vL16p}, {W}, s63 offen{SC1}")
    A("s_mov_b32 exec_hi, -1")
    sF3 = 35
    A(f"s_lshl_b32 s{sF3}, s{sTq}, 5")
    A(f"s_add_u32 s{sF3}, s{sF3}, s{sHead}")
    A(f"s_lshl_b32 s{sF3}, s{sF3}, 2")
    A(f"s_add_u32 s{sF3}, s{sF3}, {F3_OFF}")
    def consume(qs, actreg):
        n = len(qs)

        def rd(i):
            base = WF2[i % 2]
            o = (qs[i] % 12) * WPER
            out = []
            for c in range(5):
                for hf in range(2):
                    oo = o + 32 * c + 1280 * hf
                    a, oo = (vW0, oo) if oo < 65536 else (vW1, oo - 61440)
                    out.append(f"ds_read_b64_tr_b16 {v(base+4*c+2*hf,2)}, v{a} offset:{oo}")
            return out
        for x in rd(0): A(x)
        for i in range(n):
            if i + 1 < n:
                for x in rd(i + 1): A(x)
                A("s_waitcnt lgkmcnt(10)")
            else:
                A("s_waitcnt lgkmcnt(0)")
            vm = actreg(i)
            if vm[1] is not None:
                A(f"s_waitcnt vmcnt({vm[1]})")
            for c in range(5):
                A(mfma16(DACC + 4 * c, WF2[i % 2] + 4 * c, vm[0]))

    for q in (30, 31):
        A(f"s_add_u32 m0, s{sM0A}, {(q%12)*WPER}")
        A("s_nop 0")
        A(f"buffer_load_dwordx4 v{vWA}, s[{SPA}:{SPA+3}], s{sWsA} offen lds")
        A(f"s_add_u32 s{sWsA}, s{sWsA}, s{sStepA}")
    l, l2 = A.newlabel("L_w31"), A.newlabel("L_w32")
    A(f"v_mov_b32 v2, s{sNonce}")
    A("v_mov_b32 v3, 0")
    A(f"s_cmp_eq_u32 s{sIsW}, 0")
    A(f"s_cbranch_scc1 {l}")
    for q in (30, 31):
        A(f"s_add_u32 m0, s{sM0B}, {(q%12)*WPER}")
        A("s_nop 0")
        A(f"buffer_load_dwordx4 v{vPB}, s[{SPB}:{SPB+3}], s{sWsB} offen lds")
        A(f"s_add_u32 s{sWsB}, s{sWsB}, s{sStepB}")
    A("s_waitcnt vmcnt(6)")
    A(f"s_branch {l2}")
    A.label(l)
    A("s_waitcnt vmcnt(4)")
    A.label(l2)
    consume(list(range(NB, 24)), lambda i: (ACT + 4 * i, None))
    l, l2 = A.newlabel("L_w33"), A.newlabel("L_w34")
    A(f"s_cmp_eq_u32 s{sIsW}, 0")
    A(f"s_cbranch_scc1 {l}")
    A("s_waitcnt vmcnt(4)")
    A(f"s_branch {l2}")
    A.label(l)
    A("s_waitcnt vmcnt(2)")
    A.label(l2)
    A("s_mov_b64 exec, 1")
    A(f"buffer_store_dword v2, v3, {W}, s{sF3} offen sc1")
    A("s_mov_b64 exec, -1")
    stamp(A, 8)

    A("s_waitcnt vmcnt(1)")
    A(f"v_sub_f32 v56, 1.0, v{vG2}")
    A("s_nop 7")
    for r in range(20):
        A(f"v_mul_f32 v{DACC+r}, v56, v{DACC+r}")
    A("s_barrier")
    for i in range(2):
        q = 32 + i
        A(f"s_mul_i32 s61, s{sParA}, {160*1280}")
        A(f"s_add_u32 s61, s61, {i*320*1280}")
        A(f"s_add_u32 s61, s61, s{sColb}")
        A(f"s_add_u32 m0, s{sM0A}, {(q%12)*WPER}")
        A("s_nop 0")
        A(f"buffer_load_dwordx4 v{vWAr}, s[{SWO}:{SWO+3}], s61 offen lds")
    l = A.newlabel("L_rb")
    A(f"s_cmp_eq_u32 s{sIsW}, 0")
    A(f"s_cbranch_scc1 {l}")
    for i in range(2):
        q = 32 + i
        A(f"s_add_u32 s61, s{sColb}, {(160 + i*320)*1280}")
        A(f"s_add_u32 m0, s{sM0B}, {(q%12)*WPER}")
        A("s_nop 0")
        A(f"buffer_load_dwordx4 v{vWBr}, s[{SWO}:{SWO+3}], s61 offen lds")
    A.label(l)
    l = A.newlabel("L_f3")
    A("s_cmp_eq_u32 s3, 0")
    A(f"s_cbranch_scc0 {l}")
    A("v_lshlrev_b32 v2, 2, v1")
    A(f"s_lshl_b32 s63, s{sTB64}, 8")
    A(f"s_add_u32 s63, s63, {F3_OFF}")
    A(f"s_mov_b32 s{sSpin}, 0")
    A("s_waitcnt vmcnt(0)")
    lp, ld = A.newlabel("L_f3p"), A.newlabel("L_f3d")
    A(f"buffer_load_dword v3, v2, {W}, s63 offen sc1")
    A("s_sleep 3")
    A(f"buffer_load_dword v56, v2, {W}, s63 offen sc1")
    A("s_sleep 3")
    A.label(lp)
    A(f"buffer_load_dword v57, v2, {W}, s63 offen sc1")
    A("s_waitcnt vmcnt(2)")
    A(f"v_cmp_ne_u32 vcc, s{sNonce}, v3")
    A("s_nop 0")
    A("s_cmp_eq_u64 vcc, 0")
    A(f"s_cbranch_scc1 {ld}")
    A(f"buffer_load_dword v3, v2, {W}, s63 offen sc1")
    A("s_waitcnt vmcnt(2)")
    A(f"v_cmp_ne_u32 vcc, s{sNonce}, v56")
    A("s_nop 0")
    A("s_cmp_eq_u64 vcc, 0")
    A(f"s_cbranch_scc1 {ld}")
    A(f"buffer_load_dword v56, v2, {W}, s63 offen sc1")
    A("s_waitcnt vmcnt(2)")
    A(f"v_cmp_ne_u32 vcc, s{sNonce}, v57")
    A("s_nop 0")
    A("s_cmp_eq_u64 vcc, 0")
    A(f"s_cbranch_scc1 {ld}")
    A(f"s_add_u32 s{sSpin}, s{sSpin}, 1")
    A(f"s_cmp_lt_u32 s{sSpin}, {SPIN_MAX}")
    A(f"s_cbranch_scc1 {lp}")
    A.label(ld)
    A.label(l)
    A("s_barrier")
    stamp(A, 9)
    A(f"s_mul_i32 s61, s{sTile3}, {40*1024}")
    A(f"s_lshl_b32 s62, s{sPar}, 11")
    A("s_add_u32 s61, s61, s62")
    A(f"s_add_u32 s61, s61, {O_OFF}")
    for i in range(10):
        A(f"buffer_load_dwordx4 {v(ACTX+4*i,4)}, v{vActReal}, {W}, s61 offen{SC1}")
        A("s_add_u32 s61, s61, 4096")
    consume(list(range(24, 32)), lambda i: (ACTX + 4 * i, 9 - i))
    A("s_waitcnt vmcnt(0)")
    A("s_barrier")
    consume(list(range(32, 34)), lambda i: (ACTX + 4 * (8 + i), None))
    stamp(A, 10)
    A("s_nop 7")
    A(f"s_mul_i32 s61, s{sT16}, 5120")
    A(f"s_add_u32 s61, s61, {XCH}")
    A(f"v_add_u32 v56, s61, v{vL16p}")
    A(f"s_cmp_eq_u32 s{sPar}, 0")
    A("s_cbranch_scc1 L_red")
    for t in range(5):
        A(f"ds_write_b128 v56, {v(DACC+4*t,4)} offset:{1024*t}")
    A("s_waitcnt lgkmcnt(0)")
    A("s_barrier")
    prof_end(A)
    A("s_endpgm")
    A.label("L_red")
    A("s_barrier")
    for t in range(5):
        A(f"ds_read_b128 {v(32+4*t,4)}, v56 offset:{1024*t}")
    A("s_waitcnt lgkmcnt(0)")
    for r in range(20):
        A(f"v_add_f32 v{DACC+r}, v{DACC+r}, v{32+r}")
    A("v_and_b32 v57, 15, v1")
    A("v_mul_u32_u24 v57, 1280, v57")
    A("v_lshrrev_b32 v2, 4, v1")
    A("v_lshl_add_u32 v57, v2, 3, v57")
    A(f"s_lshl_b32 s61, s{sTB64}, 6")
    A(f"s_lshl_b32 s62, s{sT16}, 4")
    A("s_add_u32 s61, s61, s62")
    A("s_mul_i32 s61, s61, 1280")
    A(f"s_add_u32 s61, s61, s{sColb}")
    for t in range(5):
        A(f"v_cvt_pk_bf16_f32 v{64+2*t}, v{DACC+4*t}, v{DACC+4*t+1}")
        A(f"v_cvt_pk_bf16_f32 v{64+2*t+1}, v{DACC+4*t+2}, v{DACC+4*t+3}")
        A(f"buffer_store_dwordx2 {v(64+2*t,2)}, v57, s[{SOUT}:{SOUT+3}], s61 offen offset:{32*t}{OUTF}")
    prof_end(A)
    A("s_endpgm")
    return A.text()


HEADER = """; gated mix of MHA block and GEGLU FFN -- single persistent kernel, 256 workgroups x 512 threads
"""


def build():
    out = HEADER
    out += f"; @launch grid=(256,1,1) block=(512,1,1) lds={LDS_SZ}\n"
    out += '.amdgcn_target "amdgcn-amd-amdhsa--gfx950"\n.text\n'
    out += f".globl {KNAME}\n" + gen()
    out += kernel_desc(KNAME, 256)
    return out


if __name__ == "__main__":
    if "--prof" in sys.argv:
        PROF = True
        sys.argv.remove("--prof")
    dst = sys.argv[1] if len(sys.argv) > 1 else f"cdna_kernels/{NAME}.s"
    open(dst, "w").write(build())
    print("wrote", dst)
```
